```python
import torch

def _softmax(x, axis=-1):
    return torch.softmax(x, dim=axis)
def _gelu(x):
    return torch.nn.functional.gelu(x, approximate="tanh")
def _silu(x):
    return torch.nn.functional.silu(x)
def _sigmoid(x):
    return torch.sigmoid(x)
def _layernorm(x, axis=-1, eps=1e-5):
    m = x.mean(dim=axis, keepdim=True)
    v = x.var(dim=axis, keepdim=True, unbiased=False)
    return (x - m) / torch.sqrt(v + eps)
def _scatter_add(tgt, idx, src, axis=0):
    return tgt.clone().index_add_(axis, idx, src)
def _segment_sum(src, seg, n):
    out = torch.zeros((n,) + src.shape[1:], dtype=src.dtype)
    return out.index_add_(0, seg, src)
def _pad(x, pw):
    flat = tuple(v for pair in reversed(pw) for v in pair)
    return torch.nn.functional.pad(x, flat)

kernel_name = 'sequential_preLN__linear_kernel_hedgehog__dense_activation_squared_relu__prompt'

def setup_inputs():

    _w = (lambda a: (lambda t: t.to(torch.bfloat16) if t.is_floating_point() else t)(torch.as_tensor(a)))
    def _A_setup():
        B, S, D, H = 1, 2048, 1024, 32
        Dh = D // H
        return {
            "x": _w((lambda *s: torch.randn(*s, dtype=torch.bfloat16) * 0.05)(B, S, D)),
            "wqkv": _w((lambda *s: torch.randn(*s, dtype=torch.bfloat16) * 0.2)(D, 3 * D)),
            "w_phi": _w((lambda *s: torch.randn(*s, dtype=torch.bfloat16) * 0.2)(H, Dh, Dh) * (Dh ** -0.5)),
            "wo": _w((lambda *s: torch.randn(*s, dtype=torch.bfloat16) * 0.05)(D, D)),
        }
    _A_in = _A_setup()

    def _B_setup():
        B, S, D, F = 1, 2048, 1024, 3584
        return {
            "x": _w((lambda *s: torch.randn(*s, dtype=torch.bfloat16) * 0.05)(B, S, D)),
            "w1": _w((lambda *s: torch.randn(*s, dtype=torch.bfloat16) * 0.05)(D, F)),
            "b1": _w((lambda *s: torch.randn(*s, dtype=torch.bfloat16) * 0.4)(F)),
            "w2": _w((lambda *s: torch.randn(*s, dtype=torch.bfloat16) * 0.05)(F, D)),
            "b2": _w((lambda *s: torch.randn(*s, dtype=torch.bfloat16) * 3.2)(D)),
        }
    _B_in = _B_setup()

    return {
        "A_x": _A_in["x"],
        "A_wqkv": _A_in["wqkv"],
        "A_w_phi": _A_in["w_phi"],
        "A_wo": _A_in["wo"],
        "B_x": _B_in["x"],
        "B_w1": _B_in["w1"],
        "B_b1": _B_in["b1"],
        "B_w2": _B_in["w2"],
        "B_b2": _B_in["b2"],
    }

def reference(A_x, A_wqkv, A_w_phi, A_wo, B_x, B_w1, B_b1, B_w2, B_b2):
    def _A_ref(x, wqkv, w_phi, wo):
        B, S, D = x.shape
        H = 32; Dh = D // H
        qkv = (lambda x, *d: x.permute(*d))((x @ wqkv).reshape(B, S, 3, H, Dh), 2, 0, 3, 1, 4)
        q, k, v = qkv[0], qkv[1], qkv[2]
        pq = torch.einsum("bhsd,hdf->bhsf", q, w_phi)
        pk = torch.einsum("bhsd,hdf->bhsf", k, w_phi)
        phi_q = torch.concatenate([_softmax(pq, axis=-1), _softmax(-pq, axis=-1)], axis=-1)
        phi_k = torch.concatenate([_softmax(pk, axis=-1), _softmax(-pk, axis=-1)], axis=-1)
        kv = torch.einsum("bhsf,bhsd->bhfd", phi_k, v)
        z  = torch.einsum("bhsf->bhf", phi_k)
        num = torch.einsum("bhqf,bhfd->bhqd", phi_q, kv)
        den = torch.einsum("bhqf,bhf->bhq", phi_q, z)[..., None] + 1e-6
        o = num / den
        return (lambda x, *d: x.permute(*d))(o, 0, 2, 1, 3).reshape(B, S, D) @ wo

    def _B_ref(x, w1, b1, w2, b2):
        h = torch.einsum("bsd,df->bsf", x, w1) + b1
        zero = torch.zeros_like(h)
        r = torch.where(h > zero, h, zero)
        h = r * r
        out = torch.einsum("bsf,fd->bsd", h, w2) + b2
        return out

    x = A_x
    h = x + _A_ref(_layernorm(x, axis=-1), A_wqkv, A_w_phi, A_wo)
    h2 = h + _B_ref(_layernorm(h, axis=-1), B_w1, B_b1, B_w2, B_b2)
    return h2
```

```python
class Asm:
    def __init__(self):
        self.lines = []
    def __call__(self, s):
        for ln in s.split("\n"):
            ln = ln.strip()
            if ln:
                self.lines.append("    " + ln)
    def label(self, n):
        self.lines.append(n + ":")
    def comment(self, s):
        self.lines.append("    ; " + s)
    def raw(self, s):
        self.lines.append(s)
    def text(self):
        return "\n".join(self.lines) + "\n"

def vr(b, n=1):
    return "v%d" % b if n == 1 else "v[%d:%d]" % (b, b + n - 1)
def sr(b, n=1):
    return "s%d" % b if n == 1 else "s[%d:%d]" % (b, b + n - 1)

KERNARG = dict(x=0, wqkv=8, wphi=16, wo=24, bx=32, w1=40, b1=48, w2=56, b2=64, out=72, dbg=80, ws=88)

def kernel_header(a, name):
    a.raw(".globl %s" % name)
    a.raw(".p2align 8")
    a.raw(".type %s,@function" % name)
    a.raw("%s:" % name)

def kernel_desc(name, vgprs, sgprs=102, accum=None):
    if accum is None:
        accum = (vgprs + 3) // 4 * 4
    return """.amdhsa_kernel %s
  .amdhsa_next_free_vgpr %d
  .amdhsa_next_free_sgpr %d
  .amdhsa_accum_offset %d
  .amdhsa_group_segment_fixed_size 0
  .amdhsa_kernarg_size 96
  .amdhsa_user_sgpr_count 2
  .amdhsa_user_sgpr_kernarg_segment_ptr 1
  .amdhsa_system_sgpr_workgroup_id_x 1
  .amdhsa_float_denorm_mode_32 3
  .amdhsa_float_denorm_mode_16_64 3
.end_amdhsa_kernel
""" % (name, vgprs, sgprs, accum)

def make_srd(a, s, ptr_s, nbytes, off=0):
    if off:
        a("s_add_u32 s%d, s%d, 0x%x" % (s, ptr_s, off))
        a("s_addc_u32 s%d, s%d, 0" % (s + 1, ptr_s + 1))
    else:
        a("s_mov_b32 s%d, s%d" % (s, ptr_s))
        a("s_mov_b32 s%d, s%d" % (s + 1, ptr_s + 1))
    a("s_mov_b32 s%d, 0x%x" % (s + 2, nbytes))
    a("s_mov_b32 s%d, 0x20000" % (s + 3))

class LgkmSched:
    def __init__(self, a):
        self.a = a
        self.q = []
    def issue(self, text, tag):
        self.a(text)
        self.q.append(tag)
        assert len(self.q) <= 15 + 100
    def need(self, tags):
        idx = -1
        for i, t in enumerate(self.q):
            if t in tags:
                idx = i
        if idx >= 0:
            n = len(self.q) - idx - 1
            n = min(n, 15)
            self.a("s_waitcnt lgkmcnt(%d)" % n)
            self.q = self.q[len(self.q) - n:] if n > 0 else []
    def drain(self):
        if self.q:
            self.a("s_waitcnt lgkmcnt(0)")
            self.q = []
```

```python
from asmlib import *

class GemmCfg:
    def __init__(self, **kw):
        self.name = "g"
        self.shape = 32
        self.WM = 2; self.WN = 2
        self.MT = 2; self.NT = 3
        self.K = 1024
        self.NS = 3
        self.blocks = []
        self.ldb = 6144
        self.do_mfma = True; self.do_read = True; self.do_dma = True
        self.dma_once = False
        self.repeat = 1
        self.swap_tiles = set()
        self.acc0 = 64
        self.frag0 = 16
        self.rd_per_gap = None
        self.prio = 0
        self.__dict__.update(kw)
        self.TS = self.shape
        self.KS = 16 if self.shape == 32 else 32
        self.NSUB = 64 // self.KS
        self.ACC = 16 if self.shape == 32 else 4
        self.BM = self.WM * self.MT * self.TS
        self.T = self.K // 64
        self.A_bytes = self.BM * 128
        off = self.A_bytes
        self.blk_off = []
        for b in self.blocks:
            self.blk_off.append(off)
            off += 8192 if b == 'full' else 4096
        self.stage = off
        self.lds = self.stage * self.NS

S_SRDA = 4; S_SRDB = 8; S_WAVE = 16; S_CNT = 19; S_STG = 20; S_KA = 21; S_KB = 22; S_T0 = 23; S_T1 = 24; S_T2 = 25; S_RD = 26; S_NEG = 27; S_POS = 28
S_KCNT = 30

def loader_setup(a, c, s_mtbase, blk_col_sgprs, vbase=2):
    nmt = c.BM // c.TS
    per = nmt // 4
    assert per * 4 == nmt
    va = []
    v = vbase
    a("s_sub_u32 s%d, s%d, 4" % (S_T0, S_WAVE))
    a("v_lshlrev_b32 v%d, 4, v1" % v)
    lane16 = v; v += 1
    for i in range(per):
        a("s_mul_i32 s%d, s%d, %d" % (S_T1, S_T0, per))
        a("s_add_u32 s%d, s%d, s%d" % (S_T1, S_T1, s_mtbase))
        a("s_add_u32 s%d, s%d, %d" % (S_T1, S_T1, i))
        a("s_mul_i32 s%d, s%d, %d" % (S_T1, S_T1, c.K // c.KS * 1024))
        a("v_add_u32 v%d, s%d, v%d" % (v, S_T1, lane16))
        va.append(v); v += 1
    tmp = v; v += 1
    tmp2 = v; v += 1
    patf = v; v += 1
    path = v; v += 1
    a("s_mov_b32 s%d, %d" % (S_T1, c.ldb))
    a("v_lshrrev_b32 v%d, 3, v1" % tmp)
    a("v_mul_lo_u32 v%d, v%d, s%d" % (patf, tmp, S_T1))
    if c.shape == 32:
        a("v_bfe_u32 v%d, v1, 4, 1" % tmp); a("v_lshlrev_b32 v%d, 2, v%d" % (tmp, tmp))
    else:
        a("v_bfe_u32 v%d, v1, 4, 2" % tmp); a("v_lshlrev_b32 v%d, 1, v%d" % (tmp, tmp))
    a("v_and_b32 v%d, 7, v1" % tmp2)
    a("v_xor_b32 v%d, v%d, v%d" % (tmp, tmp, tmp2))
    a("v_lshlrev_b32 v%d, 4, v%d" % (tmp, tmp))
    a("v_add_u32 v%d, v%d, v%d" % (patf, patf, tmp))
    a("v_lshrrev_b32 v%d, 2, v1" % tmp)
    a("v_mul_lo_u32 v%d, v%d, s%d" % (path, tmp, S_T1))
    a("v_and_b32 v%d, 3, v1" % tmp)
    if c.shape == 16:
        a("v_bfe_u32 v%d, v1, 4, 1" % tmp2); a("v_lshlrev_b32 v%d, 1, v%d" % (tmp2, tmp2))
        a("v_xor_b32 v%d, v%d, v%d" % (tmp, tmp, tmp2))
    a("v_lshlrev_b32 v%d, 4, v%d" % (tmp, tmp))
    a("v_add_u32 v%d, v%d, v%d" % (path, path, tmp))
    vb = []
    for bi, b in enumerate(c.blocks):
        if b == 'full':
            regs = []
            for e in range(2):
                a("s_mul_i32 s%d, s%d, %d" % (S_T1, S_T0, 16 * c.ldb))
                a("s_add_u32 s%d, s%d, %s" % (S_T1, S_T1, blk_col_sgprs[bi]))
                if e:
                    a("s_add_u32 s%d, s%d, %d" % (S_T1, S_T1, 8 * c.ldb - 1024))
                a("v_add_u32 v%d, s%d, v%d" % (v, S_T1, patf))
                regs.append(v); v += 1
            vb.append(regs)
        else:
            a("s_mul_i32 s%d, s%d, %d" % (S_T1, S_T0, 16 * c.ldb))
            a("s_add_u32 s%d, s%d, %s" % (S_T1, S_T1, blk_col_sgprs[bi]))
            a("v_add_u32 v%d, s%d, v%d" % (v, S_T1, path))
            vb.append([v]); v += 1
    a("s_mul_i32 s27, s%d, %d" % (S_T0, per * c.NSUB * 1024))
    a("s_lshl_b32 s28, s%d, 11" % S_T0)
    a("s_lshl_b32 s29, s%d, 10" % S_T0)
    ndma = per * c.NSUB + sum(2 if b == 'full' else 1 for b in c.blocks)
    return dict(va=va, vb=vb, ndma=ndma, per=per)

def loader_issue(a, c, L):
    for i, v in enumerate(L['va']):
        a("s_add_u32 s%d, s%d, s27" % (S_T1, S_STG))
        if i:
            a("s_add_u32 m0, s%d, %d" % (S_T1, i * c.NSUB * 1024))
        else:
            a("s_mov_b32 m0, s%d" % S_T1)
        a("s_nop 0")
        for s in range(c.NSUB):
            a("buffer_load_dwordx4 v%d, s[%d:%d], s%d offen offset:%d lds" % (v, S_SRDA, S_SRDA + 3, S_KA, s * 1024))
    for bi, b in enumerate(c.blocks):
        a("s_add_u32 s%d, s%d, s%d" % (S_T1, S_STG, 28 if b == 'full' else 29))
        a("s_add_u32 m0, s%d, %d" % (S_T1, c.blk_off[bi]))
        a("s_nop 0")
        for e, v in enumerate(L['vb'][bi]):
            a("buffer_load_dwordx4 v%d, s[%d:%d], s%d offen offset:%d lds" % (v, S_SRDB, S_SRDB + 3, S_KB, e * 1024))

def loader_advance(a, c):
    a("s_add_u32 s%d, s%d, %d" % (S_KA, S_KA, c.NSUB * 1024))
    a("s_add_u32 s%d, s%d, %d" % (S_KB, S_KB, 64 * c.ldb))
    if c.repeat > 1:
        a("s_cmp_eq_u32 s%d, %d" % (S_KA, c.T * c.NSUB * 1024))
        a("s_cselect_b32 s%d, 0, s%d" % (S_KA, S_KA))
        a("s_cselect_b32 s%d, 0, s%d" % (S_KB, S_KB))
    a("s_add_u32 s%d, s%d, %d" % (S_STG, S_STG, c.stage))
    a("s_cmp_eq_u32 s%d, %d" % (S_STG, c.stage * c.NS))
    a("s_cselect_b32 s%d, 0, s%d" % (S_STG, S_STG))

def loader_loop(a, c, L, lbl):
    nd = L['ndma']
    NS = c.NS
    T = c.T * c.repeat
    a("s_mov_b32 s%d, 0" % S_STG); a("s_mov_b32 s%d, 0" % S_KA); a("s_mov_b32 s%d, 0" % S_KB)
    pre = NS - 1
    if not c.do_dma or c.dma_once:
        if c.dma_once:
            for p in range(NS):
                loader_issue(a, c, L); loader_advance(a, c)
            a("s_waitcnt vmcnt(0)")
        a("s_mov_b32 s%d, %d" % (S_CNT, T))
        a.label(lbl + "_lloop")
        a("s_barrier")
        a("s_sub_u32 s%d, s%d, 1" % (S_CNT, S_CNT))
        a("s_cmp_lg_u32 s%d, 0" % S_CNT)
        a("s_cbranch_scc1 %s_lloop" % lbl)
        return
    for p in range(pre):
        loader_issue(a, c, L); loader_advance(a, c)
    a("s_mov_b32 s%d, %d" % (S_CNT, T - pre))
    a.label(lbl + "_lloop")
    a("s_waitcnt vmcnt(%d)" % (nd * (pre - 1)))
    a("s_barrier")
    loader_issue(a, c, L); loader_advance(a, c)
    a("s_sub_u32 s%d, s%d, 1" % (S_CNT, S_CNT))
    a("s_cmp_lg_u32 s%d, 0" % S_CNT)
    a("s_cbranch_scc1 %s_lloop" % lbl)
    for r in range(pre):
        a("s_waitcnt vmcnt(%d)" % (nd * (pre - 1 - r)))
        a("s_barrier")

def compute_setup(a, c, vA, vB, vBh, tmp, s_par=None):
    if c.WN == 1:
        a("s_mov_b32 s%d, s%d" % (S_T0, S_WAVE)); a("s_mov_b32 s%d, 0" % S_T1)
    elif c.WN == 2:
        a("s_lshr_b32 s%d, s%d, 1" % (S_T0, S_WAVE)); a("s_and_b32 s%d, s%d, 1" % (S_T1, S_WAVE))
    elif c.WN == 4:
        a("s_mov_b32 s%d, 0" % S_T0); a("s_mov_b32 s%d, s%d" % (S_T1, S_WAVE))
    a("s_mul_i32 s%d, s%d, %d" % (S_T2, S_T0, c.MT * c.NSUB * 1024))
    a("v_lshlrev_b32 v%d, 4, v1" % vA)
    a("v_add_u32 v%d, s%d, v%d" % (vA, S_T2, vA))
    t0, t1, t2 = tmp, tmp + 1, tmp + 2
    if c.shape == 32:
        a("v_lshrrev_b32 v%d, 5, v1" % t0)
        a("v_lshlrev_b32 v%d, 2, v%d" % (t0, t0))
        a("v_bfe_u32 v%d, v1, 2, 2" % t1)
        a("v_add_u32 v%d, v%d, v%d" % (t0, t0, t1))
        a("v_bfe_u32 v%d, v1, 4, 1" % t1)
        a("v_lshlrev_b32 v%d, 1, v%d" % (t1, t1))
        a("v_bfe_u32 v%d, v1, 1, 1" % t2)
        a("v_add_u32 v%d, v%d, v%d" % (t1, t1, t2))
        a("v_bfe_u32 v%d, v1, 3, 1" % t2)
        a("v_lshlrev_b32 v%d, 2, v%d" % (t2, t2))
        a("v_xor_b32 v%d, v%d, v%d" % (t1, t1, t2))
        a("v_lshlrev_b32 v%d, 4, v%d" % (t1, t1))
        a("v_lshlrev_b32 v%d, 7, v%d" % (vB[0], t0))
        a("v_add_u32 v%d, v%d, v%d" % (vB[0], vB[0], t1))
        a("v_and_b32 v%d, 1, v1" % t2)
        a("v_lshlrev_b32 v%d, 3, v%d" % (t2, t2))
        a("v_add_u32 v%d, v%d, v%d" % (vB[0], vB[0], t2))
        a("v_xor_b32 v%d, 64, v%d" % (vB[1], vB[0]))
        a("v_lshlrev_b32 v%d, 6, v%d" % (vBh[0], t0))
        a("v_bfe_u32 v%d, v1, 4, 1" % t1)
        a("v_lshlrev_b32 v%d, 5, v%d" % (t1, t1))
        a("v_add_u32 v%d, v%d, v%d" % (vBh[0], vBh[0], t1))
        a("v_and_b32 v%d, 3, v1" % t1)
        a("v_lshlrev_b32 v%d, 3, v%d" % (t1, t1))
        a("v_add_u32 v%d, v%d, v%d" % (vBh[0], vBh[0], t1))
    else:
        a("v_lshrrev_b32 v%d, 2, v1" % t0)
        a("v_bfe_u32 v%d, v1, 1, 1" % t1)
        a("v_bfe_u32 v%d, v1, 3, 2" % t2)
        a("v_lshlrev_b32 v%d, 1, v%d" % (t2, t2))
        a("v_xor_b32 v%d, v%d, v%d" % (t1, t1, t2))
        a("v_lshlrev_b32 v%d, 4, v%d" % (t1, t1))
        a("v_lshlrev_b32 v%d, 7, v%d" % (vB[0], t0))
        a("v_add_u32 v%d, v%d, v%d" % (vB[0], vB[0], t1))
        a("v_and_b32 v%d, 1, v1" % t2)
        a("v_lshlrev_b32 v%d, 3, v%d" % (t2, t2))
        a("v_add_u32 v%d, v%d, v%d" % (vB[0], vB[0], t2))
        for t in range(1, 4):
            a("v_xor_b32 v%d, %d, v%d" % (vB[t], t * 32, vB[0]))
        a("v_bfe_u32 v%d, v1, 1, 1" % t1)
        a("v_bfe_u32 v%d, v1, 4, 1" % t2)
        a("v_lshlrev_b32 v%d, 1, v%d" % (t2, t2))
        a("v_xor_b32 v%d, v%d, v%d" % (t1, t1, t2))
        a("v_lshlrev_b32 v%d, 4, v%d" % (t1, t1))
        a("v_lshlrev_b32 v%d, 6, v%d" % (vBh[0], t0))
        a("v_add_u32 v%d, v%d, v%d" % (vBh[0], vBh[0], t1))
        a("v_and_b32 v%d, 1, v1" % t2)
        a("v_lshlrev_b32 v%d, 3, v%d" % (t2, t2))
        a("v_add_u32 v%d, v%d, v%d" % (vBh[0], vBh[0], t2))
        a("v_xor_b32 v%d, 32, v%d" % (vBh[1], vBh[0]))

def compute_loop(a, c, lbl, tilemap, vA):
    MT, NT = c.MT, c.NT
    fs = (MT + NT) * 4
    P = c.frag0; Q = c.frag0 + fs
    assert c.frag0 + 2 * fs <= c.acc0, (c.frag0 + 2 * fs, c.acc0)
    def act(setb, i): return setb + i * 4
    def wt(setb, j): return setb + MT * 4 + j * 4
    def accr(i, j): return c.acc0 + (i * NT + j) * c.ACC
    sch = LgkmSched(a)
    addr_regs = sorted(set([vA] + [t[0] for t in tilemap]))
    mn = "v_mfma_f32_32x32x16_bf16" if c.shape == 32 else "v_mfma_f32_16x16x32_bf16"
    def reads(setb, s):
        out = []
        order = []
        order.append(('a', 0)); order.append(('w', 0))
        for i in range(1, MT): order.append(('a', i))
        for j in range(1, NT): order.append(('w', j))
        for kind, j in order:
            if kind == 'a':
                out.append(("ds_read_b128 %s, v%d offset:%d" % (vr(act(setb, j), 4), vA, (j * c.NSUB + s) * 1024), (setb, 'a', j)))
            else:
                reg, imm, bk = tilemap[j]
                rb = 128 if bk == 'full' else 64
                if c.shape == 32: st = (16 * rb, 8 * rb)
                else: st = (32 * rb, 16 * rb)
                for jj in range(2):
                    out.append(("ds_read_b64_tr_b16 %s, v%d offset:%d" % (vr(wt(setb, j) + jj * 2, 2), reg, imm + s * st[0] + jj * st[1]), (setb, 'w', j)))
        return out
    ms = [(i, j) for j in range(NT) for i in range(MT)]
    def group(setc, setn, s_next, pre_barrier=False, noreads=False):
        rd = [] if noreads or not c.do_read else reads(setn, s_next)
        nm = len(ms)
        if pre_barrier:
            sch.drain()
            a("s_barrier")
            a("s_add_u32 s%d, s%d, %d" % (S_RD, S_RD, c.stage))
            a("s_cmp_eq_u32 s%d, %d" % (S_RD, c.stage * c.NS))
            a("s_cselect_b32 s%d, s%d, s%d" % (S_T0, S_NEG, S_POS))
            a("s_cselect_b32 s%d, 0, s%d" % (S_RD, S_RD))
            for r in addr_regs:
                a("v_add_u32 v%d, s%d, v%d" % (r, S_T0, r))
        if c.rd_per_gap:
            per, every = c.rd_per_gap
        else:
            per, every = ((2, 1) if c.shape == 32 else (1, 1))
        ri = 0
        for k, (i, j) in enumerate(ms):
            if c.do_read:
                sch.need({(setc, 'a', i), (setc, 'w', j)})
            if c.do_mfma:
                A_, B_ = wt(setc, j), act(setc, i)
                if j in c.swap_tiles: A_, B_ = B_, A_
                a("%s %s, %s, %s, %s" % (mn, vr(accr(i, j), c.ACC), vr(A_, 4), vr(B_, 4), vr(accr(i, j), c.ACC)))
            if k % every == 0:
                for _ in range(per):
                    if ri < len(rd):
                        sch.issue(*rd[ri]); ri += 1
        while ri < len(rd):
            sch.issue(*rd[ri]); ri += 1
    for r in range(c.acc0, c.acc0 + MT * NT * c.ACC):
        a("v_mov_b32 v%d, 0" % r)
    a("s_mov_b32 s%d, 0" % S_RD)
    a("s_mov_b32 s%d, 0x%x" % (S_NEG, -(c.stage * (c.NS - 1)) & 0xffffffff))
    a("s_mov_b32 s%d, %d" % (S_POS, c.stage))
    if c.prio:
        a("s_setprio %d" % c.prio)
    a("s_barrier")
    if c.do_read:
        for t in reads(P, 0): sch.issue(*t)
    elif c.dma_once:
        for t in reads(P, 0): a(t[0])
        a("s_waitcnt lgkmcnt(0)")
        for t in reads(Q, 1): a(t[0])
        a("s_waitcnt lgkmcnt(0)")
    a("s_mov_b32 s%d, %d" % (S_CNT, c.T * c.repeat - 1))
    q0 = list(sch.q)
    def step(last):
        sets = [P, Q]
        for s in range(c.NSUB):
            cur, nxt = sets[s % 2], sets[(s + 1) % 2]
            if s < c.NSUB - 1:
                group(cur, nxt, s + 1)
            else:
                if last: group(cur, nxt, 0, noreads=True)
                else: group(cur, nxt, 0, pre_barrier=True)
    if getattr(c, 'trace', False):
        a("v_mov_b32 v14, 0"); a("v_mov_b32 v15, 0"); a("s_mov_b32 s72, 0")
    a.label(lbl + "_cloop")
    if getattr(c, 'trace', False):
        a("s_memtime s[74:75]"); a("s_memrealtime s[76:77]")
    step(False)
    if getattr(c, 'trace', False):
        a("s_waitcnt lgkmcnt(0)")
        a("s_mov_b32 m0, s72")
        a("s_nop 1")
        a("v_writelane_b32 v14, s74, m0"); a("v_writelane_b32 v15, s76, m0")
        a("s_add_u32 s72, s72, 1")
        for t in reads(P, 0): sch.q.append(t[1])
    assert sch.q[-len(q0):] == q0 or not c.do_read, (sch.q, q0)
    a("s_sub_u32 s%d, s%d, 1" % (S_CNT, S_CNT))
    a("s_cmp_lg_u32 s%d, 0" % S_CNT)
    a("s_cbranch_scc1 %s_cloop" % lbl)
    step(True)
```

```python
import re
TRANS = ("v_exp_f32", "v_log_f32", "v_rcp_f32", "v_rsq_f32", "v_sqrt_f32", "v_sin_f32", "v_cos_f32", "v_rcp_iflag_f32")
def regs_of(tok):
    tok = tok.strip()
    neg = tok.lstrip("-")
    m = re.fullmatch(r"abs\((.*)\)", neg)
    if m: neg = m.group(1)
    neg = neg.strip("|")
    m = re.fullmatch(r"([vsa])(\d+)", neg)
    if m: return {(m.group(1), int(m.group(2)))}
    m = re.fullmatch(r"([vsa])\[(\d+):(\d+)\]", neg)
    if m: return {(m.group(1), i) for i in range(int(m.group(2)), int(m.group(3)) + 1)}
    if neg in ("vcc", "vcc_lo", "vcc_hi"): return {("x", "vcc")}
    if neg in ("exec", "exec_lo", "exec_hi"): return {("x", "exec")}
    if neg == "m0": return {("x", "m0")}
    return set()

def parse(line):
    s = line.split(";")[0].strip()
    if not s or s.endswith(":") or s.startswith("."): return None
    parts = s.split(None, 1)
    mn = parts[0]
    ops = []
    if len(parts) > 1:
        body = parts[1]
        toks = [t.strip() for t in re.split(r",(?![^\[]*\])", body)]
        out = []
        for t in toks:
            out.append(t.split()[0] if t else t)
        ops = out
        mods = body
    else:
        mods = ""
    return mn, ops, mods

def classify(mn, ops, mods):
    base = re.sub(r"_(e32|e64|dpp|sdwa)$", "", mn)
    d = dict(kind="other", wr=set(), rd=set(), passes=0, base=base, srcC=set(), lds=False, dpp=("_dpp" in mn or "row_" in mods or "quad_perm" in mods))
    R = [regs_of(o) for o in ops]
    if base.startswith("v_mfma"):
        d["kind"] = "mfma"; d["wr"] = R[0]; d["rd"] = R[1] | R[2] | R[3]; d["srcC"] = R[3]; d["ab"] = R[1] | R[2]
        d["passes"] = 8 if "32x32" in base else 4
    elif base.startswith("v_cmp"):
        d["kind"] = "valu"; d["wr"] = R[0]; d["rd"] = set().union(*R[1:]) if len(R) > 1 else set()
    elif base in ("v_readfirstlane_b32", "v_readlane_b32"):
        d["kind"] = "valu"; d["wr"] = R[0]; d["rd"] = set().union(*R[1:]); d["readlane"] = True
    elif base == "v_writelane_b32":
        d["kind"] = "valu"; d["wr"] = R[0]; d["rd"] = set().union(*R[1:]) | R[0]
    elif base.startswith("v_permlane"):
        d["kind"] = "valu"; d["wr"] = R[0] | R[1]; d["rd"] = R[0] | R[1]; d["permlane"] = True
    elif base.startswith("v_"):
        d["kind"] = "valu"; d["wr"] = set(R[0]); d["rd"] = set().union(*R[1:]) if len(R) > 1 else set()
        if base in ("v_fmac_f32", "v_dot2c_f32_bf16", "v_pk_fmac_f16") : d["rd"] |= R[0]
        if base in ("v_add_co_u32", "v_sub_co_u32", "v_addc_co_u32", "v_subb_co_u32", "v_subrev_co_u32"):
            d["wr"] |= R[1]; d["rd"] = set().union(*R[2:])
        if base == "v_cndmask_b32" and len(ops) == 3: d["rd"] |= {("x", "vcc")}
        if base in ("v_mad_u64_u32",): d["wr"] |= R[1]; d["rd"] = set().union(*R[2:])
        if base in TRANS: d["trans"] = True
    elif base.startswith("buffer_") or base.startswith("global_") or base.startswith("flat_"):
        d["kind"] = "vmem"
        islds = re.search(r"\blds\b", mods) is not None or "_lds_" in base
        d["lds"] = islds
        if "load" in base and not islds:
            d["wr"] = R[0]; d["rd"] = set().union(*R[1:])
        elif "atomic" in base and re.search(r"\bsc0\b", mods):
            if base.startswith("global"): d["wr"] = R[0]; d["rd"] = set().union(*R[1:])
            else: d["wr"] = R[0]; d["rd"] = set().union(*R)
        else:
            d["rd"] = set().union(*R) if R else set()
        if islds: d["rd"] |= {("x", "m0")}
        if "store" in base and ("x4" in base or "x3" in base):
            d["widestore"] = R[1] if base.startswith("global") else R[0]
    elif base.startswith("ds_"):
        d["kind"] = "ds"
        if "read" in base or "bpermute" in base or "permute" in base or "swizzle" in base:
            d["wr"] = R[0]; d["rd"] = set().union(*R[1:]) if len(R) > 1 else set()
        else:
            d["rd"] = set().union(*R)
    elif base.startswith("s_"):
        d["kind"] = "salu"
        if base in ("s_waitcnt", "s_nop", "s_barrier", "s_endpgm", "s_branch", "s_setprio", "s_sleep") or base.startswith("s_cbranch") or base.startswith("s_cmp"):
            d["rd"] = set().union(*R) if R else set()
        else:
            d["wr"] = R[0] if R else set(); d["rd"] = set().union(*R[1:]) if len(R) > 1 else set()
        if "saveexec" in base: d["wr"] |= {("x", "exec")}
    return d

def nstates(mn, ops):
    if mn == "s_nop":
        return int(ops[0], 0) + 1
    return 1

def fix(lines, verbose=False):
    out = []
    hist = []
    pos = 0
    nins = 0
    for line in lines:
        p = parse(line)
        if p is None:
            out.append(line); continue
        mn, ops, mods = p
        d = classify(mn, ops, mods)
        need = 0
        def dist(h): return pos - h[1] - 1
        for h in reversed(hist[-40:]):
            pd = h[0]; ds = pos - h[1]
            req = 0
            vw = {r for r in pd["wr"] if r[0] in "va"}
            sw = {r for r in pd["wr"] if r[0] == "s" or r == ("x", "vcc")}
            if pd["kind"] == "valu":
                if d["kind"] == "mfma" and (vw & d["rd"]): req = max(req, 2)
                if pd.get("trans") and d["kind"] in ("valu",) and not d.get("trans") and (vw & d["rd"]): req = max(req, 1)
                if pd.get("trans") and d["kind"] == "mfma" and (vw & d["rd"]): req = max(req, 2)
                if d.get("permlane") and (vw & d["rd"]): req = max(req, 2)
                if d["dpp"] and (vw & d["rd"]): req = max(req, 2)
                if d.get("readlane") and (vw & d["rd"]): req = max(req, 1)
                if d["kind"] == "valu" and (sw & d["rd"]): req = max(req, 4 if (d.get("readlane") or d["base"] == "v_writelane_b32") else 2)
                if d["kind"] == "vmem" and (sw & d["rd"]): req = max(req, 5)
                if d["kind"] == "salu" and (sw & d["rd"]): req = max(req, 4)
                if ("x", "exec") in pd["wr"] and d["kind"] in ("valu", "mfma"): req = max(req, 5)
            if pd["kind"] == "mfma":
                P = pd["passes"]
                dw = pd["wr"]
                if d["kind"] == "mfma":
                    if dw & d.get("ab", set()): req = max(req, 8 if P == 4 else 12)
                    if dw & d["srcC"]:
                        if not (dw == d["srcC"] and d["passes"] == P): req = max(req, 6 if P == 4 else 10)
                    if (dw & d["wr"]) and not (dw == d["wr"] and dw == d["srcC"]) and not (dw & d["srcC"]):
                        req = max(req, 6 if P == 4 else 10)
                elif d["kind"] in ("valu", "vmem", "ds"):
                    if dw & (d["rd"] | d["wr"]): req = max(req, 8 if P == 4 else 12)
                if d["kind"] == "valu" and (pd["srcC"] & d["wr"]): req = max(req, 3 if P == 4 else 7)
            if pd.get("widestore") and d["kind"] in ("valu", "mfma") and (pd["widestore"] & d["wr"]): req = max(req, 2)
            if pd.get("widestore") and d["kind"] in ("vmem", "ds") and (pd["widestore"] & d["wr"]): req = max(req, 1)
            if pd["kind"] == "salu" and ("x", "m0") in pd["wr"] and (d["lds"] or d["base"] == "v_writelane_b32" or d["base"].startswith("ds_") and "addtid" in d["base"]): req = max(req, 1)
            have = ds - 1 + 0
            if req > have:
                need = max(need, req - have)
        while need > 0:
            n = min(need, 16)
            out.append("    s_nop %d" % (n - 1))
            pos += n; need -= n; nins += 1
        out.append(line)
        hist.append((d, pos))
        pos += nstates(mn, ops)
        if mn == "s_nop":
            hist[-1] = (d, pos - 1)
    return out, nins
```

```python
import sys, json
from asmlib import *
from gemm_core import *
import hazard

NAME = "sequential_preLN__linear_kernel_hedgehog__dense_activation_squared_relu__prompt"
MB = 1 << 20
WS_XN = 0
WS_PHIQ = 4 * MB
WS_KVP = 12 * MB
KVP_STRIDE = 8704
WS_O = 20 * MB
WS_H = 24 * MB
WS_STATS = 28 * MB
WS_CS1 = 29 * MB
WS_H1 = 32 * MB
WS_SIZE = 268435456
LOG2E = 0x3fb8aa3b

def ld_ptr(a, s, key):
    a("s_load_dwordx2 s[%d:%d], s[0:1], %d" % (s, s + 1, KERNARG[key]))

def wave_lane(a):
    a("v_and_b32 v1, 63, v0")
    a("v_lshrrev_b32 v2, 6, v0")
    a("s_nop 0")
    a("v_readfirstlane_b32 s%d, v2" % S_WAVE)

def bf16_round(a, dst, src, tmp=None):
    a("v_cvt_pk_bf16_f32 v%d, v%d, v%d" % (dst, src, src))
    a("v_lshlrev_b32 v%d, 16, v%d" % (dst, dst))

def gen_k0(a):
    name = "k0_kernel"
    kernel_header(a, name)
    a("s_cmp_ge_u32 s2, 240"); a("s_cbranch_scc1 K0_end")
    ld_ptr(a, 30, 'x'); ld_ptr(a, 32, 'w1'); ld_ptr(a, 34, 'ws')
    wave_lane(a)
    a("s_waitcnt lgkmcnt(0)")
    a("s_cmp_ge_u32 s2, 128"); a("s_cbranch_scc1 K0_cs")
    make_srd(a, 4, 30, 2048 * 1024 * 2)
    make_srd(a, 8, 34, 4 * MB, off=WS_XN)
    a("v_and_b32 v2, 15, v1"); a("v_lshrrev_b32 v3, 4, v1")
    a("s_lshl_b32 s20, s2, 4")
    a("v_add_u32 v4, s20, v2"); a("v_lshlrev_b32 v4, 11, v4")
    a("v_lshlrev_b32 v5, 3, v3"); a("v_add_u32 v4, v4, v5")
    a("s_lshl_b32 s21, s%d, 9" % S_WAVE)
    a("v_add_u32 v4, s21, v4")
    for i in range(8):
        a("buffer_load_dwordx2 v[%d:%d], v4, s[4:7], 0 offen offset:%d" % (16 + 4 * i, 17 + 4 * i, i * 64))
        a("buffer_load_dwordx2 v[%d:%d], v4, s[4:7], 0 offen offset:%d" % (18 + 4 * i, 19 + 4 * i, i * 64 + 32))
    a("s_waitcnt vmcnt(0)")
    for i in range(32):
        a("v_lshlrev_b32 v%d, 16, v%d" % (64 + 2 * i, 16 + i))
        a("v_and_b32 v%d, 0xffff0000, v%d" % (65 + 2 * i, 16 + i))
    a("v_add_f32 v6, v64, v65"); a("v_add_f32 v7, v66, v67"); a("v_add_f32 v8, v68, v69"); a("v_add_f32 v9, v70, v71")
    for i in range(72 - 64, 64, 4):
        for q in range(4):
            a("v_add_f32 v%d, v%d, v%d" % (6 + q, 6 + q, 64 + i + q))
    a("v_add_f32 v6, v6, v7"); a("v_add_f32 v8, v8, v9"); a("v_add_f32 v6, v6, v8")
    def xlane_sum(r, t):
        a("v_mov_b32 v%d, v%d" % (t, r)); a("v_permlane32_swap_b32 v%d, v%d" % (r, t)); a("v_add_f32 v%d, v%d, v%d" % (r, r, t))
        a("v_mov_b32 v%d, v%d" % (t, r)); a("v_permlane16_swap_b32 v%d, v%d" % (r, t)); a("v_add_f32 v%d, v%d, v%d" % (r, r, t))
    xlane_sum(6, 7)
    a("v_lshlrev_b32 v10, 2, v2"); a("s_lshl_b32 s21, s%d, 6" % S_WAVE); a("v_add_u32 v11, s21, v10")
    a("ds_write_b32 v11, v6")
    a("s_waitcnt lgkmcnt(0)"); a("s_barrier")
    a("ds_read_b32 v12, v10"); a("ds_read_b32 v13, v10 offset:64"); a("ds_read_b32 v14, v10 offset:128"); a("ds_read_b32 v15, v10 offset:192")
    a("s_waitcnt lgkmcnt(0)")
    a("v_add_f32 v12, v12, v13"); a("v_add_f32 v14, v14, v15"); a("v_add_f32 v12, v12, v14")
    a("v_mul_f32 v12, 0x3a800000, v12")
    for q in range(4): a("v_mov_b32 v%d, 0" % (6 + q))
    for i in range(64):
        a("v_sub_f32 v48, v%d, v12" % (64 + i))
        a("v_fmac_f32 v%d, v48, v48" % (6 + (i & 3)))
    a("v_add_f32 v6, v6, v7"); a("v_add_f32 v8, v8, v9"); a("v_add_f32 v6, v6, v8")
    xlane_sum(6, 7)
    a("ds_write_b32 v11, v6 offset:256")
    a("s_waitcnt lgkmcnt(0)"); a("s_barrier")
    a("ds_read_b32 v13, v10 offset:256"); a("ds_read_b32 v14, v10 offset:320"); a("ds_read_b32 v15, v10 offset:384"); a("ds_read_b32 v48, v10 offset:448")
    a("s_waitcnt lgkmcnt(0)")
    a("v_add_f32 v13, v13, v14"); a("v_add_f32 v15, v15, v48"); a("v_add_f32 v13, v13, v15")
    a("v_mul_f32 v13, 0x3a800000, v13")
    bf16_round(a, 12, 12)
    bf16_round(a, 13, 13)
    a("v_add_f32 v13, 0x3727c5ac, v13")
    bf16_round(a, 13, 13)
    a("v_sqrt_f32 v13, v13")
    bf16_round(a, 13, 13)
    a("v_rcp_f32 v13, v13")
    for i in range(32):
        lo, hi = 64 + 2 * i, 65 + 2 * i
        a("v_sub_f32 v%d, v%d, v12" % (lo, lo)); a("v_sub_f32 v%d, v%d, v12" % (hi, hi))
        a("v_cvt_pk_bf16_f32 v48, v%d, v%d" % (lo, hi))
        a("v_lshlrev_b32 v%d, 16, v48" % lo); a("v_and_b32 v%d, 0xffff0000, v48" % hi)
        a("v_mul_f32 v%d, v%d, v13" % (lo, lo)); a("v_mul_f32 v%d, v%d, v13" % (hi, hi))
        a("v_cvt_pk_bf16_f32 v%d, v%d, v%d" % (16 + i, lo, hi))
    a("s_lshl_b32 s20, s2, 15"); a("s_lshl_b32 s21, s%d, 13" % S_WAVE); a("s_add_u32 s20, s20, s21")
    a("v_lshlrev_b32 v4, 4, v1"); a("v_add_u32 v4, s20, v4")
    for i in range(8):
        if i == 4: a("v_add_u32 v4, 4096, v4")
        a("buffer_store_dwordx4 v[%d:%d], v4, s[8:11], 0 offen offset:%d" % (16 + 4 * i, 19 + 4 * i, (i & 3) * 1024))
    a("s_endpgm")
    a.label("K0_cs")
    make_srd(a, 4, 32, 1024 * 3584 * 2)
    make_srd(a, 8, 34, 3584 * 4, off=WS_CS1)
    a("s_sub_u32 s20, s2, 128"); a("s_lshl_b32 s21, s20, 6")
    a("v_lshrrev_b32 v2, 2, v0"); a("v_and_b32 v3, 3, v0")
    a("s_mov_b32 s22, 7168"); a("v_mul_lo_u32 v4, v2, s22")
    a("v_lshlrev_b32 v5, 4, v3"); a("v_add_u32 v4, v4, v5"); a("v_add_u32 v4, s21, v4")
    for i in range(16):
        a("s_mov_b32 s23, %d" % (i * 64 * 7168))
        a("buffer_load_dwordx4 v[%d:%d], v4, s[4:7], s23 offen" % (16 + 4 * i, 19 + 4 * i))
    for q in range(8): a("v_mov_b32 v%d, 0" % (96 + q))
    for i in range(16):
        a("s_waitcnt vmcnt(%d)" % (15 - i))
        for dw in range(4):
            r = 16 + 4 * i + dw
            a("v_lshlrev_b32 v6, 16, v%d" % r); a("v_and_b32 v7, 0xffff0000, v%d" % r)
            a("v_add_f32 v%d, v%d, v6" % (96 + 2 * dw, 96 + 2 * dw)); a("v_add_f32 v%d, v%d, v7" % (97 + 2 * dw, 97 + 2 * dw))
    a("v_lshlrev_b32 v8, 5, v0")
    a("ds_write_b128 v8, v[96:99]"); a("ds_write_b128 v8, v[100:103] offset:16")
    a("s_waitcnt lgkmcnt(0)"); a("s_barrier")
    a("v_cmp_gt_u32 vcc, 32, v0"); a("s_and_saveexec_b64 s[40:41], vcc"); a("s_cbranch_execz K0_end")
    a("v_lshlrev_b32 v8, 2, v0")
    a("v_mov_b32 v9, 0")
    for blk in range(8):
        for i in range(8): a("ds_read_b32 v%d, v8 offset:%d" % (16 + i, (blk * 8 + i) * 128))
        a("s_waitcnt lgkmcnt(0)")
        for i in range(8): a("v_add_f32 v9, v9, v%d" % (16 + i))
    a("s_lshl_b32 s21, s20, 7"); a("v_add_u32 v8, s21, v8")
    a("buffer_store_dword v9, v8, s[8:11], 0 offen")
    a.label("K0_end")
    a("s_endpgm")
    return name, dict(grid=240, block=256, lds=8192, vgprs=128)

def tile_map(a, mode):
    a("s_and_b32 s40, s2, 7"); a("s_lshr_b32 s41, s2, 3")
    if mode == '8x4':
        a("s_and_b32 s42, s40, 1"); a("s_lshl_b32 s42, s42, 3"); a("s_and_b32 s43, s41, 7"); a("s_add_u32 s17, s42, s43")
        a("s_lshr_b32 s42, s40, 1"); a("s_lshl_b32 s42, s42, 2"); a("s_lshr_b32 s43, s41, 3"); a("s_add_u32 s18, s42, s43")
    elif mode == '4x8':
        a("s_and_b32 s42, s40, 3"); a("s_lshl_b32 s42, s42, 2"); a("s_and_b32 s43, s41, 3"); a("s_add_u32 s17, s42, s43")
        a("s_lshr_b32 s42, s40, 2"); a("s_lshl_b32 s42, s42, 3"); a("s_lshr_b32 s43, s41, 2"); a("s_add_u32 s18, s42, s43")
    elif mode == '2x16':
        a("s_lshl_b32 s42, s40, 1"); a("s_and_b32 s43, s41, 1"); a("s_add_u32 s17, s42, s43")
        a("s_lshr_b32 s18, s41, 1")

def gemm_prologue(a, c, L, a_off, a_bytes, b_key, b_bytes, mode):
    a("s_cmp_ge_u32 s2, 256"); a("s_cbranch_scc1 %s_end" % L)
    ld_ptr(a, 34, 'ws'); ld_ptr(a, 32, b_key)


def xlane16_32(a, op, r, t):
    a("v_mov_b32 v%d, v%d" % (t, r)); a("v_permlane32_swap_b32 v%d, v%d" % (r, t)); a("%s v%d, v%d, v%d" % (op, r, r, t))
    a("v_mov_b32 v%d, v%d" % (t, r)); a("v_permlane16_swap_b32 v%d, v%d" % (r, t)); a("%s v%d, v%d, v%d" % (op, r, r, t))

def dual_softmax(a, p, e, t):
    mx, mn, tmp, sp, sm = t, t + 1, t + 2, t + 3, t + 4
    a("v_max3_f32 v%d, v%d, v%d, v%d" % (mx, p, p + 1, p + 2)); a("v_min3_f32 v%d, v%d, v%d, v%d" % (mn, p, p + 1, p + 2))
    a("v_max3_f32 v%d, v%d, v%d, v%d" % (mx, mx, p + 3, p + 4)); a("v_min3_f32 v%d, v%d, v%d, v%d" % (mn, mn, p + 3, p + 4))
    a("v_max3_f32 v%d, v%d, v%d, v%d" % (mx, mx, p + 5, p + 6)); a("v_min3_f32 v%d, v%d, v%d, v%d" % (mn, mn, p + 5, p + 6))
    a("v_max_f32 v%d, v%d, v%d" % (mx, mx, p + 7)); a("v_min_f32 v%d, v%d, v%d" % (mn, mn, p + 7))
    a("v_mov_b32 v%d, v%d" % (tmp, mx)); a("v_mov_b32 v%d, v%d" % (tmp + 3, mn))
    a("v_permlane32_swap_b32 v%d, v%d" % (mx, tmp)); a("v_permlane32_swap_b32 v%d, v%d" % (mn, tmp + 3))
    a("v_max_f32 v%d, v%d, v%d" % (mx, mx, tmp)); a("v_min_f32 v%d, v%d, v%d" % (mn, mn, tmp + 3))
    a("v_mov_b32 v%d, v%d" % (tmp, mx)); a("v_mov_b32 v%d, v%d" % (tmp + 3, mn))
    a("v_permlane16_swap_b32 v%d, v%d" % (mx, tmp)); a("v_permlane16_swap_b32 v%d, v%d" % (mn, tmp + 3))
    a("v_max_f32 v%d, v%d, v%d" % (mx, mx, tmp)); a("v_min_f32 v%d, v%d, v%d" % (mn, mn, tmp + 3))
    a("v_mul_f32 v%d, s46, v%d" % (mx, mx)); a("v_mul_f32 v%d, s46, v%d" % (mn, mn))
    for i in range(8):
        a("v_fma_f32 v%d, v%d, s46, -v%d" % (e + i, p + i, mx))
        a("v_fma_f32 v%d, -v%d, s46, v%d" % (p + i, p + i, mn))
    for i in range(8):
        a("v_exp_f32 v%d, v%d" % (e + i, e + i)); a("v_exp_f32 v%d, v%d" % (p + i, p + i))
    a("v_add_f32 v%d, v%d, v%d" % (sp, e, e + 1)); a("v_add_f32 v%d, v%d, v%d" % (sm, p, p + 1))
    for i in range(2, 8):
        a("v_add_f32 v%d, v%d, v%d" % (sp, sp, e + i)); a("v_add_f32 v%d, v%d, v%d" % (sm, sm, p + i))
    a("v_mov_b32 v%d, v%d" % (mx, sp)); a("v_mov_b32 v%d, v%d" % (mn, sm))
    a("v_permlane32_swap_b32 v%d, v%d" % (sp, mx)); a("v_permlane32_swap_b32 v%d, v%d" % (sm, mn))
    a("v_add_f32 v%d, v%d, v%d" % (sp, sp, mx)); a("v_add_f32 v%d, v%d, v%d" % (sm, sm, mn))
    a("v_mov_b32 v%d, v%d" % (mx, sp)); a("v_mov_b32 v%d, v%d" % (mn, sm))
    a("v_permlane16_swap_b32 v%d, v%d" % (sp, mx)); a("v_permlane16_swap_b32 v%d, v%d" % (sm, mn))
    a("v_add_f32 v%d, v%d, v%d" % (sp, sp, mx)); a("v_add_f32 v%d, v%d, v%d" % (sm, sm, mn))
    a("v_rcp_f32 v%d, v%d" % (sp, sp)); a("v_rcp_f32 v%d, v%d" % (sm, sm))
    for i in range(8):
        a("v_mul_f32 v%d, v%d, v%d" % (e + i, e + i, sp)); a("v_mul_f32 v%d, v%d, v%d" % (p + i, p + i, sm))

MF = "v_mfma_f32_16x16x32_bf16"

def gen_k1(a, opt):
    name = "k1_kernel"; L = "K1"
    c = GemmCfg(shape=16, WM=2, WN=2, MT=4, NT=6, K=1024, NS=3, blocks=['full'] * 3, ldb=6144, acc0=112, swap_tiles={4, 5})
    kernel_header(a, name)
    a("s_cmp_ge_u32 s2, 256"); a("s_cbranch_scc1 K1_end")
    ld_ptr(a, 34, 'ws'); ld_ptr(a, 32, 'wqkv'); ld_ptr(a, 36, 'wphi')
    wave_lane(a)
    tile_map(a, '8x4')
    a("s_waitcnt lgkmcnt(0)")
    make_srd(a, S_SRDA, 34, 4 * MB, off=WS_XN)
    make_srd(a, S_SRDB, 32, 1024 * 3072 * 2)
    a("s_lshl_b32 s44, s17, 3")
    for b in range(3):
        a("s_lshl_b32 s%d, s18, 7" % (45 + b)); a("s_add_u32 s%d, s%d, %d" % (45 + b, 45 + b, b * 2048))
    a("s_cmp_ge_u32 s%d, 4" % S_WAVE); a("s_cbranch_scc1 K1_loader")
    vA = 2; vB = [3, 4, 5, 6]; vBh = [7, 8]
    compute_setup(a, c, vA, vB, vBh, tmp=9)
    a("s_mov_b32 s38, s%d" % S_T0); a("s_mov_b32 s39, s%d" % S_T1)
    a("s_lshl_b32 s25, s24, 6"); a("v_xor_b32 v3, s25, v3"); a("v_xor_b32 v4, s25, v4")
    tm = [(vB[j & 1], c.blk_off[j >> 1], 'full') for j in range(6)]
    make_srd(a, 12, 36, 32 * 32 * 32 * 2)
    a("s_lshl_b32 s40, s18, 1"); a("s_add_u32 s40, s40, s39")
    a("s_mov_b32 s45, s40")
    a("s_lshl_b32 s41, s40, 11")
    a("v_lshrrev_b32 v9, 4, v1"); a("v_lshlrev_b32 v9, 8, v9")
    a("v_and_b32 v10, 15, v1"); a("v_lshlrev_b32 v10, 1, v10")
    a("v_add_u32 v9, v9, v10"); a("v_add_u32 v9, s41, v9")
    WP = 96
    for u in range(2):
        for j in range(8):
            d_off = (16 * (j >> 2) + (j & 3)) * 64 + u * 32
            a("buffer_load_ushort v%d, v9, s[12:15], 0 offen offset:%d" % (WP + u * 8 + j, d_off))
    compute_loop(a, c, L, tm, vA)
    a("s_waitcnt vmcnt(0)")
    for u in range(2):
        for p in range(4):
            a("v_lshl_or_b32 v%d, v%d, 16, v%d" % (WP + u * 4 + p, WP + u * 8 + 2 * p + 1, WP + u * 8 + 2 * p))
    a("s_mov_b32 s46, 0x%x" % LOG2E)
    make_srd(a, 48, 34, 8 * MB, off=WS_PHIQ)
    make_srd(a, 52, 34, 8 * MB, off=WS_KVP)
    def acc(i, j): return c.acc0 + (i * 6 + j) * 4
    a("s_barrier")
    a("v_and_b32 v9, 15, v1"); a("v_lshlrev_b32 v10, 7, v9")
    a("v_bfe_u32 v11, v1, 1, 2"); a("v_lshlrev_b32 v11, 1, v11")
    a("v_lshrrev_b32 v12, 5, v1"); a("v_xor_b32 v11, v11, v12"); a("v_lshlrev_b32 v11, 4, v11"); a("v_add_u32 v10, v10, v11")
    a("v_bfe_u32 v11, v1, 4, 1"); a("v_lshlrev_b32 v11, 3, v11"); a("v_add_u32 v10, v10, v11")
    a("s_lshl_b32 s41, s%d, 13" % S_WAVE); a("v_add_u32 v10, s41, v10")
    for k in range(1, 4): a("v_xor_b32 v%d, %d, v10" % (10 + k, k * 32))
    a("s_lshl_b32 s41, s45, 7"); a("s_add_u32 s41, s41, s44"); a("s_lshl_b32 s42, s38, 2"); a("s_add_u32 s41, s41, s42"); a("s_lshl_b32 s41, s41, 11")
    a("v_lshlrev_b32 v14, 4, v1"); a("v_add_u32 v14, s41, v14")
    F = 16
    for which, j0 in (('q', 0), ('k', 2)):
        for i in range(4):
            for jj in range(2):
                b = acc(i, j0 + jj)
                a("v_cvt_pk_bf16_f32 v%d, v%d, v%d" % (F + i * 4 + jj * 2, b, b + 1)); a("v_cvt_pk_bf16_f32 v%d, v%d, v%d" % (F + i * 4 + jj * 2 + 1, b + 2, b + 3))
        for i in range(4):
            for u in range(2):
                a("%s v[%d:%d], v[%d:%d], v[%d:%d], 0" % (MF, 32 + i * 8 + u * 4, 35 + i * 8 + u * 4, WP + u * 4, WP + u * 4 + 3, F + i * 4, F + i * 4 + 3))
        for i in range(4):
            p = 32 + i * 8; e = 64; t = 72
            dual_softmax(a, p, e, t)
            for q in range(4):
                a("v_cvt_pk_bf16_f32 v%d, v%d, v%d" % (80 + q, e + 2 * q, e + 2 * q + 1)); a("v_cvt_pk_bf16_f32 v%d, v%d, v%d" % (84 + q, p + 2 * q, p + 2 * q + 1))
            if which == 'q':
                a("buffer_store_dwordx4 v[80:83], v14, s[48:51], 0 offen offset:%d" % ((i & 1) * 2048))
                a("buffer_store_dwordx4 v[84:87], v14, s[48:51], 0 offen offset:%d" % ((i & 1) * 2048 + 1024))
                if i == 1: a("v_add_u32 v14, 4096, v14")
            else:
                a("ds_write_b64 v10, v[80:81] offset:%d" % (i * 2048)); a("ds_write_b64 v11, v[82:83] offset:%d" % (i * 2048))
                a("ds_write_b64 v12, v[84:85] offset:%d" % (i * 2048)); a("ds_write_b64 v13, v[86:87] offset:%d" % (i * 2048))
    for ms in range(2):
        for dt in range(2):
            r = F + (ms * 2 + dt) * 4
            for h in range(2):
                b = acc(2 * ms + h, 4 + dt)
                a("v_cvt_pk_bf16_f32 v%d, v%d, v%d" % (r + 2 * h, b, b + 1)); a("v_cvt_pk_bf16_f32 v%d, v%d, v%d" % (r + 2 * h + 1, b + 2, b + 3))
    for q in range(4): a("v_mov_b32 v%d, 0x3f803f80" % (88 + q))
    a("v_lshrrev_b32 v9, 2, v1"); a("v_bfe_u32 v15, v1, 1, 1"); a("v_bfe_u32 v3, v1, 3, 2"); a("v_lshlrev_b32 v3, 1, v3")
    a("v_xor_b32 v15, v15, v3"); a("v_lshlrev_b32 v15, 4, v15"); a("v_lshlrev_b32 v3, 7, v9"); a("v_add_u32 v3, v3, v15")
    a("v_and_b32 v15, 1, v1"); a("v_lshlrev_b32 v15, 3, v15"); a("v_add_u32 v3, v3, v15")
    a("s_lshl_b32 s41, s%d, 13" % S_WAVE); a("v_add_u32 v3, s41, v3")
    for t in range(1, 4): a("v_xor_b32 v%d, %d, v3" % (3 + t, t * 32))
    a("s_waitcnt lgkmcnt(0)")
    for ms in range(2):
        for ft in range(4):
            r = 32 + (ms * 4 + ft) * 4
            a("ds_read_b64_tr_b16 v[%d:%d], v%d offset:%d" % (r, r + 1, 3 + ft, ms * 4096))
            a("ds_read_b64_tr_b16 v[%d:%d], v%d offset:%d" % (r + 2, r + 3, 3 + ft, ms * 4096 + 2048))
    a("s_waitcnt lgkmcnt(0)")
    KV = 112
    for ms in range(2):
        for ft in range(4):
            for dt in range(3):
                d = KV + (ft * 3 + dt) * 4
                B = (F + (ms * 2 + dt) * 4) if dt < 2 else 88
                A = 32 + (ms * 4 + ft) * 4
                cin = "0" if ms == 0 else "v[%d:%d]" % (d, d + 3)
                a("%s v[%d:%d], v[%d:%d], v[%d:%d], %s" % (MF, d, d + 3, A, A + 3, B, B + 3, cin))
    a("v_lshlrev_b32 v9, 4, v1"); a("s_mul_i32 s41, s39, 12288"); a("s_add_u32 s41, s41, 32768"); a("v_add_u32 v9, s41, v9")
    a("s_cmp_eq_u32 s38, 0"); a("s_cbranch_scc1 K1_red0")
    for t in range(12): a("ds_write_b128 v9, v[%d:%d] offset:%d" % (KV + t * 4, KV + t * 4 + 3, t * 1024))
    a("s_waitcnt lgkmcnt(0)"); a("s_barrier")
    a("s_branch K1_end")
    a.label("K1_red0")
    a("s_barrier")
    for t in range(12): a("ds_read_b128 v[%d:%d], v9 offset:%d" % (16 + t * 4, 19 + t * 4, t * 1024))
    a("s_waitcnt lgkmcnt(0)")
    for t in range(48): a("v_add_f32 v%d, v%d, v%d" % (KV + t, KV + t, 16 + t))
    a("s_lshl_b32 s41, s45, 4"); a("s_add_u32 s41, s41, s17"); a("s_mul_i32 s41, s41, %d" % KVP_STRIDE)
    a("v_lshlrev_b32 v9, 4, v1"); a("v_add_u32 v9, s41, v9")
    for ft in range(4):
        for dt in range(2):
            d = KV + (ft * 3 + dt) * 4
            off = (ft * 2 + dt) * 1024
            if off >= 4096:
                if off == 4096: a("v_add_u32 v9, 4096, v9")
                off -= 4096
            a("buffer_store_dwordx4 v[%d:%d], v9, s[52:55], 0 offen offset:%d" % (d, d + 3, off))
    a("v_lshrrev_b32 v9, 4, v1"); a("v_lshlrev_b32 v9, 4, v9"); a("s_add_u32 s41, s41, 8192"); a("v_add_u32 v9, s41, v9")
    a("v_and_b32 v10, 15, v1"); a("v_cmp_eq_u32 vcc, 0, v10"); a("s_and_saveexec_b64 s[40:41], vcc")
    for ft in range(4):
        d = KV + (ft * 3 + 2) * 4
        a("buffer_store_dwordx4 v[%d:%d], v9, s[52:55], 0 offen offset:%d" % (d, d + 3, ft * 64))
    a("s_branch K1_end")
    a.label("K1_loader")
    Ld = loader_setup(a, c, 44, ["s45", "s46", "s47"])
    loader_loop(a, c, Ld, L)
    a("s_barrier")
    a("s_barrier")
    a.label("K1_end")
    a("s_endpgm")
    return name, dict(grid=256, block=512, lds=c.lds, vgprs=256)

def gen_k1b(a, opt):
    name = "k1b_kernel"
    kernel_header(a, name)
    a("s_cmp_ge_u32 s2, 256"); a("s_cbranch_scc1 K1B_end")
    ld_ptr(a, 34, 'ws')
    wave_lane(a)
    a("s_and_b32 s17, s2, 31"); a("s_lshr_b32 s18, s2, 5")
    a("s_waitcnt lgkmcnt(0)")
    make_srd(a, 4, 34, 8 * MB, off=WS_KVP)
    make_srd(a, 8, 34, 8 * MB, off=WS_PHIQ)
    make_srd(a, 12, 34, 4 * MB, off=WS_O)
    a("s_mul_i32 s20, s17, %d" % (16 * KVP_STRIDE))
    a("s_lshl_b32 s21, s%d, 11" % S_WAVE); a("s_add_u32 s21, s21, s20")
    a("v_lshlrev_b32 v2, 4, v1"); a("v_add_u32 v3, s21, v2")
    a("s_lshl_b32 s21, s%d, 6" % S_WAVE); a("s_add_u32 s21, s21, s20"); a("s_add_u32 s21, s21, 8192")
    a("v_lshrrev_b32 v4, 4, v1"); a("v_lshlrev_b32 v4, 4, v4"); a("v_add_u32 v4, s21, v4")
    a("s_lshl_b32 s22, s17, 7"); a("s_lshl_b32 s23, s18, 4"); a("s_add_u32 s22, s22, s23"); a("s_lshl_b32 s23, s%d, 2" % S_WAVE); a("s_add_u32 s22, s22, s23")
    a("s_lshl_b32 s22, s22, 11"); a("v_add_u32 v5, s22, v2")
    for q in range(12): a("v_mov_b32 v%d, 0" % (16 + q))
    for bt in range(4):
        for p in range(4):
            pi = bt * 4 + p
            a("s_mov_b32 s24, %d" % (pi * KVP_STRIDE))
            r = 32 + (bt & 1) * 48 + p * 12
            a("buffer_load_dwordx4 v[%d:%d], v3, s[4:7], s24 offen" % (r, r + 3))
            a("buffer_load_dwordx4 v[%d:%d], v3, s[4:7], s24 offen offset:1024" % (r + 4, r + 7))
            a("buffer_load_dwordx4 v[%d:%d], v4, s[4:7], s24 offen" % (r + 8, r + 11))
        if bt == 1:
            pass
        if bt >= 1:
            a("s_waitcnt vmcnt(12)")
            for p in range(4):
                r = 32 + ((bt - 1) & 1) * 48 + p * 12
                for q in range(12): a("v_add_f32 v%d, v%d, v%d" % (16 + q, 16 + q, r + q))
    for i in range(4):
        for fs in range(2):
            off = (i & 1) * 2048 + fs * 1024
            a("buffer_load_dwordx4 v[%d:%d], v5, s[8:11], 0 offen offset:%d" % (128 + (i * 2 + fs) * 4, 131 + (i * 2 + fs) * 4, off))
        if i == 1: a("v_add_u32 v5, 4096, v5")
    a("s_waitcnt vmcnt(8)")
    for p in range(4):
        r = 32 + 48 + p * 12
        for q in range(12): a("v_add_f32 v%d, v%d, v%d" % (16 + q, 16 + q, r + q))
    for dt in range(3):
        a("v_cvt_pk_bf16_f32 v%d, v%d, v%d" % (28 + 0, 16 + dt * 4, 17 + dt * 4)); a("v_cvt_pk_bf16_f32 v%d, v%d, v%d" % (28 + 1, 18 + dt * 4, 19 + dt * 4))
        a("v_lshlrev_b32 v6, 3, v1"); a("s_lshl_b32 s21, s%d, 9" % S_WAVE); a("v_add_u32 v6, s21, v6")
        a("ds_write_b64 v6, v[28:29] offset:%d" % (dt * 2048))
    a("s_waitcnt lgkmcnt(0)"); a("s_barrier")
    a("v_lshlrev_b32 v6, 3, v1")
    for dt in range(3):
        for fs in range(2):
            r = 32 + (dt * 2 + fs) * 4
            a("ds_read_b64 v[%d:%d], v6 offset:%d" % (r, r + 1, dt * 2048 + (2 * fs) * 512))
            a("ds_read_b64 v[%d:%d], v6 offset:%d" % (r + 2, r + 3, dt * 2048 + (2 * fs + 1) * 512))
    a("s_waitcnt vmcnt(0) lgkmcnt(0)")
    for i in range(4):
        for dt in range(3):
            d = 64 + i * 12 + dt * 4
            for fs in range(2):
                A = 32 + (dt * 2 + fs) * 4; B = 128 + (i * 2 + fs) * 4
                cin = "0" if fs == 0 else "v[%d:%d]" % (d, d + 3)
                a("%s v[%d:%d], v[%d:%d], v[%d:%d], %s" % (MF, d, d + 3, A, A + 3, B, B + 3, cin))
    a("s_lshl_b32 s22, s18, 4"); a("s_lshl_b32 s23, s%d, 2" % S_WAVE); a("s_add_u32 s22, s22, s23"); a("s_lshl_b32 s22, s22, 5"); a("s_add_u32 s22, s22, s17"); a("s_lshl_b32 s22, s22, 10")
    a("v_add_u32 v5, s22, v2")
    for i in range(4):
        b = 64 + i * 12
        den = b + 8
        bf16_round(a, den, den)
        a("v_add_f32 v%d, 0x358637bd, v%d" % (den, den))
        bf16_round(a, den, den)
        a("v_rcp_f32 v%d, v%d" % (den, den))
        for h in range(4):
            a("v_cvt_pk_bf16_f32 v16, v%d, v%d" % (b + 2 * h, b + 2 * h + 1))
            a("v_lshlrev_b32 v17, 16, v16"); a("v_and_b32 v18, 0xffff0000, v16")
            a("v_mul_f32 v17, v17, v%d" % den); a("v_mul_f32 v18, v18, v%d" % den)
            a("v_cvt_pk_bf16_f32 v%d, v17, v18" % (20 + h))
        a("s_mov_b32 s24, %d" % (i * 32 * 1024))
        a("buffer_store_dwordx4 v[20:23], v5, s[12:15], s24 offen")
    a.label("K1B_end")
    a("s_endpgm")
    return name, dict(grid=256, block=256, lds=8192, vgprs=160)

def gen_k2(a, opt):
    name = "k2_kernel"; L = "K2"
    c = GemmCfg(shape=16, WM=2, WN=2, MT=4, NT=2, K=1024, NS=opt.get('k2ns', 5), blocks=['full'], ldb=2048, acc0=112)
    kernel_header(a, name)
    a("s_cmp_ge_u32 s2, 256"); a("s_cbranch_scc1 K2_end")
    ld_ptr(a, 34, 'ws'); ld_ptr(a, 32, 'wo'); ld_ptr(a, 36, 'x')
    wave_lane(a)
    tile_map(a, '8x4')
    a("s_waitcnt lgkmcnt(0)")
    make_srd(a, S_SRDA, 34, 4 * MB, off=WS_O)
    make_srd(a, S_SRDB, 32, 1024 * 1024 * 2)
    a("s_lshl_b32 s44, s17, 3")
    a("s_lshl_b32 s45, s18, 7")
    a("s_cmp_ge_u32 s%d, 4" % S_WAVE); a("s_cbranch_scc1 K2_loader")
    vA = 2; vB = [3, 4, 5, 6]; vBh = [7, 8]
    compute_setup(a, c, vA, vB, vBh, tmp=9)
    a("s_mov_b32 s38, s%d" % S_T0); a("s_mov_b32 s39, s%d" % S_T1)
    a("s_lshl_b32 s25, s24, 6"); a("v_xor_b32 v3, s25, v3"); a("v_xor_b32 v4, s25, v4")
    tm = [(vB[j], c.blk_off[0], 'full') for j in range(2)]
    make_srd(a, 12, 36, 2048 * 1024 * 2)
    a("s_lshl_b32 s40, s17, 7"); a("s_lshl_b32 s41, s38, 6"); a("s_add_u32 s40, s40, s41")
    a("v_and_b32 v9, 15, v1"); a("v_add_u32 v9, s40, v9"); a("v_lshlrev_b32 v9, 11, v9")
    a("s_lshl_b32 s41, s18, 7"); a("s_lshl_b32 s42, s39, 6"); a("s_add_u32 s41, s41, s42")
    a("v_lshrrev_b32 v10, 4, v1"); a("v_lshlrev_b32 v10, 3, v10"); a("v_add_u32 v9, v9, v10"); a("v_add_u32 v9, s41, v9")
    for i in range(4):
        a("s_mov_b32 s42, %d" % (i * 16 * 2048))
        for j in range(2):
            a("buffer_load_dwordx2 v[%d:%d], v9, s[12:15], s42 offen offset:%d" % (80 + (i * 2 + j) * 2, 81 + (i * 2 + j) * 2, j * 32))
    compute_loop(a, c, L, tm, vA)
    a("s_waitcnt vmcnt(0)")
    make_srd(a, 48, 34, 4 * MB, off=WS_H)
    make_srd(a, 52, 34, 1 * MB, off=WS_STATS)
    def acc(i, j): return c.acc0 + (i * 2 + j) * 4
    a("s_lshl_b32 s40, s38, 2"); a("s_add_u32 s40, s40, s44"); a("s_lshl_b32 s40, s40, 5"); a("s_lshl_b32 s41, s18, 1"); a("s_add_u32 s41, s41, s39"); a("s_add_u32 s40, s40, s41")
    a("s_lshl_b32 s40, s40, 10")
    a("v_lshlrev_b32 v14, 4, v1"); a("v_add_u32 v14, s40, v14")
    a("s_lshl_b32 s40, s17, 7"); a("s_lshl_b32 s42, s38, 6"); a("s_add_u32 s40, s40, s42")
    a("v_and_b32 v9, 15, v1"); a("v_add_u32 v9, s40, v9"); a("v_lshlrev_b32 v9, 8, v9"); a("s_lshl_b32 s41, s41, 3"); a("v_add_u32 v9, s41, v9")
    for i in range(4):
        for j in range(2):
            b = acc(i, j); xr = 80 + (i * 2 + j) * 2
            for h in range(2):
                a("v_cvt_pk_bf16_f32 v16, v%d, v%d" % (b + 2 * h, b + 2 * h + 1))
                a("v_lshlrev_b32 v17, 16, v16"); a("v_and_b32 v18, 0xffff0000, v16")
                a("v_lshlrev_b32 v19, 16, v%d" % (xr + h)); a("v_and_b32 v20, 0xffff0000, v%d" % (xr + h))
                a("v_add_f32 v17, v17, v19"); a("v_add_f32 v18, v18, v20")
                a("v_cvt_pk_bf16_f32 v%d, v17, v18" % (24 + j * 2 + h))
                a("v_lshlrev_b32 v%d, 16, v%d" % (32 + j * 4 + 2 * h, 24 + j * 2 + h)); a("v_and_b32 v%d, 0xffff0000, v%d" % (33 + j * 4 + 2 * h, 24 + j * 2 + h))
        a("s_mov_b32 s42, %d" % (i * 32 * 1024))
        a("buffer_store_dwordx4 v[24:27], v14, s[48:51], s42 offen")
        a("v_add_f32 v40, v32, v33")
        for q in range(2, 8): a("v_add_f32 v40, v40, v%d" % (32 + q))
        xlane16_32(a, "v_add_f32", 40, 41)
        a("v_mul_f32 v40, 0x3d000000, v40")
        a("v_mov_b32 v42, 0")
        for q in range(8):
            a("v_sub_f32 v43, v%d, v40" % (32 + q)); a("v_fmac_f32 v42, v43, v43")
        xlane16_32(a, "v_add_f32", 42, 41)
        a("v_mov_b32 v41, v42")
        a("v_cmp_gt_u32 vcc, 16, v1"); a("s_and_saveexec_b64 s[56:57], vcc")
        a("s_mov_b32 s42, %d" % (i * 16 * 256))
        a("buffer_store_dwordx2 v[40:41], v9, s[52:55], s42 offen")
        a("s_mov_b64 exec, s[56:57]")
    a("s_branch K2_end")
    a.label("K2_loader")
    Ld = loader_setup(a, c, 44, ["s45"])
    loader_loop(a, c, Ld, L)
    a.label("K2_end")
    a("s_endpgm")
    return name, dict(grid=256, block=512, lds=c.lds, vgprs=256)

def gen_k3(a, opt):
    name = "k3_kernel"; L = "K3"
    c = GemmCfg(shape=16, WM=2, WN=2, MT=4, NT=7, K=1024, NS=3, blocks=['full'] * 4, ldb=7168, acc0=112)
    kernel_header(a, name)
    a("s_cmp_ge_u32 s2, 256"); a("s_cbranch_scc1 K3_end")
    ld_ptr(a, 34, 'ws'); ld_ptr(a, 32, 'w1'); ld_ptr(a, 36, 'b1')
    wave_lane(a)
    tile_map(a, '8x4')
    a("s_waitcnt lgkmcnt(0)")
    make_srd(a, S_SRDA, 34, 4 * MB, off=WS_H)
    make_srd(a, S_SRDB, 32, 1024 * 3584 * 2)
    a("s_lshl_b32 s44, s17, 3")
    a("s_and_b32 s43, s18, 1")
    a("s_mul_i32 s45, s18, 448"); a("s_lshl_b32 s42, s43, 6"); a("s_sub_u32 s45, s45, s42")
    for b in range(1, 4): a("s_add_u32 s%d, s45, %d" % (45 + b, b * 128))
    a("s_cmp_ge_u32 s%d, 4" % S_WAVE); a("s_cbranch_scc1 K3_loader")
    vA = 2; vB = [3, 4, 5, 6]; vBh = [7, 8]
    compute_setup(a, c, vA, vB, vBh, tmp=9)
    a("s_mov_b32 s38, s%d" % S_T0); a("s_mov_b32 s39, s%d" % S_T1)
    a("s_mul_i32 s40, s39, 7"); a("s_lshl_b32 s41, s43, 1"); a("s_add_u32 s40, s40, s41")
    a("v_mov_b32 v9, v3")
    for j in range(4):
        a("s_add_u32 s41, s40, %d" % j); a("s_and_b32 s42, s41, 3"); a("s_lshl_b32 s42, s42, 5"); a("v_xor_b32 v%d, s42, v9" % (3 + j))
        a("s_lshr_b32 s42, s41, 2"); a("s_lshl_b32 s42, s42, 13"); a("v_add_u32 v%d, s42, v%d" % (3 + j, 3 + j))
    tm = [(vB[j & 3], c.blk_off[0] + (j >> 2) * 8192, 'full') for j in range(7)]
    make_srd(a, 12, 34, 1 * MB, off=WS_STATS)
    a("s_lshl_b32 s40, s17, 7"); a("s_lshl_b32 s42, s38, 6"); a("s_add_u32 s40, s40, s42")
    a("v_and_b32 v9, 15, v1"); a("v_add_u32 v9, s40, v9"); a("v_lshlrev_b32 v9, 8, v9")
    a("v_lshrrev_b32 v10, 4, v1"); a("v_lshlrev_b32 v10, 6, v10"); a("v_add_u32 v9, v9, v10")
    for i in range(4):
        a("s_mov_b32 s42, %d" % (i * 16 * 256))
        for q in range(4):
            a("buffer_load_dwordx4 v[%d:%d], v9, s[12:15], s42 offen offset:%d" % (112 + i * 16 + q * 4, 115 + i * 16 + q * 4, q * 16))
    a("s_waitcnt vmcnt(0)")
    for i in range(4):
        b = 112 + i * 16
        a("v_add_f32 v10, v%d, v%d" % (b, b + 2))
        for q in range(2, 8): a("v_add_f32 v10, v10, v%d" % (b + 2 * q))
        xlane16_32(a, "v_add_f32", 10, 11)
        a("v_mul_f32 v10, 0x3d000000, v10")
        a("v_mov_b32 v12, 0")
        for q in range(8):
            a("v_sub_f32 v11, v%d, v10" % (b + 2 * q)); a("v_mul_f32 v11, v11, v11")
            a("v_mul_f32 v11, 0x42000000, v11")
            a("v_add_f32 v11, v11, v%d" % (b + 2 * q + 1)); a("v_add_f32 v12, v12, v11")
        xlane16_32(a, "v_add_f32", 12, 11)
        a("v_mul_f32 v12, 0x3a800000, v12")
        bf16_round(a, 10, 10); bf16_round(a, 12, 12)
        a("v_add_f32 v12, 0x3727c5ac, v12"); bf16_round(a, 12, 12)
        a("v_sqrt_f32 v12, v12"); bf16_round(a, 12, 12)
        a("v_rcp_f32 v%d, v12" % (224 + i))
        a("v_mul_f32 v%d, v%d, v10" % (228 + i, 224 + i))
    compute_loop(a, c, L, tm, vA)
    make_srd(a, 48, 34, 2048 * 3584 * 2, off=WS_H1)
    make_srd(a, 52, 34, 3584 * 4, off=WS_CS1)
    make_srd(a, 56, 36, 3584 * 2)
    def acc(i, j): return c.acc0 + (i * 7 + j) * 4
    a("s_mul_i32 s40, s18, 224"); a("s_mul_i32 s41, s39, 112"); a("s_add_u32 s40, s40, s41")
    a("v_lshrrev_b32 v9, 4, v1"); a("v_lshlrev_b32 v9, 2, v9"); a("v_add_u32 v9, s40, v9")
    a("v_lshlrev_b32 v10, 2, v9"); a("v_lshlrev_b32 v11, 1, v9")
    for j in range(7):
        a("buffer_load_dwordx4 v[%d:%d], v10, s[52:55], 0 offen offset:%d" % (16 + j * 4, 19 + j * 4, j * 64))
        a("buffer_load_dwordx2 v[%d:%d], v11, s[56:59], 0 offen offset:%d" % (48 + j * 2, 49 + j * 2, j * 32))
    a("s_waitcnt vmcnt(0)")
    for j in range(7):
        for h in range(2):
            a("v_lshlrev_b32 v%d, 16, v%d" % (64 + j * 4 + 2 * h, 48 + j * 2 + h)); a("v_and_b32 v%d, 0xffff0000, v%d" % (65 + j * 4 + 2 * h, 48 + j * 2 + h))
    a("s_lshl_b32 s40, s38, 2"); a("s_add_u32 s40, s40, s44"); a("s_mul_i32 s40, s40, 112")
    a("s_mul_i32 s41, s18, 7"); a("s_add_u32 s40, s40, s41")
    a("s_mul_i32 s41, s39, 3"); a("s_add_u32 s40, s40, s41")
    a("s_lshl_b32 s40, s40, 10")
    a("v_lshlrev_b32 v14, 4, v1"); a("v_add_u32 v14, s40, v14")
    def emit_tile_vals(i, j, dst):
        b = acc(i, j)
        for r in range(4):
            a("v_mul_f32 v94, v%d, v%d" % (228 + i, 16 + j * 4 + r))
            a("v_fma_f32 v%d, v%d, v%d, -v94" % (b + r, b + r, 224 + i))
        a("v_cvt_pk_bf16_f32 v92, v%d, v%d" % (b, b + 1)); a("v_cvt_pk_bf16_f32 v93, v%d, v%d" % (b + 2, b + 3))
        a("v_lshlrev_b32 v%d, 16, v92" % b); a("v_and_b32 v%d, 0xffff0000, v92" % (b + 1))
        a("v_lshlrev_b32 v%d, 16, v93" % (b + 2)); a("v_and_b32 v%d, 0xffff0000, v93" % (b + 3))
        for r in range(4): a("v_add_f32 v%d, v%d, v%d" % (b + r, b + r, 64 + j * 4 + r))
        a("v_cvt_pk_bf16_f32 v92, v%d, v%d" % (b, b + 1)); a("v_cvt_pk_bf16_f32 v93, v%d, v%d" % (b + 2, b + 3))
        a("v_lshlrev_b32 v%d, 16, v92" % b); a("v_and_b32 v%d, 0xffff0000, v92" % (b + 1))
        a("v_lshlrev_b32 v%d, 16, v93" % (b + 2)); a("v_and_b32 v%d, 0xffff0000, v93" % (b + 3))
        for r in range(4):
            a("v_max_f32 v%d, 0, v%d" % (b + r, b + r)); a("v_mul_f32 v%d, v%d, v%d" % (b + r, b + r, b + r))
        a("v_cvt_pk_bf16_f32 v%d, v%d, v%d" % (dst, b, b + 1)); a("v_cvt_pk_bf16_f32 v%d, v%d, v%d" % (dst + 1, b + 2, b + 3))
    a("s_cmp_eq_u32 s39, 0"); a("s_cbranch_scc0 K3_epi1")
    for i in range(4):
        a("s_mov_b32 s42, %d" % (i * 112 * 1024))
        for pr in range(3):
            emit_tile_vals(i, 2 * pr, 96); emit_tile_vals(i, 2 * pr + 1, 98)
            a("buffer_store_dwordx4 v[96:99], v14, s[48:51], s42 offen offset:%d" % (pr * 1024))
        emit_tile_vals(i, 6, 96)
        a("buffer_store_dwordx2 v[96:97], v14, s[48:51], s42 offen offset:3072")
    a("s_branch K3_end")
    a.label("K3_epi1")
    for i in range(4):
        a("s_mov_b32 s42, %d" % (i * 112 * 1024))
        emit_tile_vals(i, 0, 96)
        a("buffer_store_dwordx2 v[96:97], v14, s[48:51], s42 offen offset:8")
        for pr in range(3):
            emit_tile_vals(i, 2 * pr + 1, 96); emit_tile_vals(i, 2 * pr + 2, 98)
            a("buffer_store_dwordx4 v[96:99], v14, s[48:51], s42 offen offset:%d" % ((pr + 1) * 1024))
    a("s_branch K3_end")
    a.label("K3_loader")
    Ld = loader_setup(a, c, 44, ["s45", "s46", "s47", "s48"])
    loader_loop(a, c, Ld, L)
    a.label("K3_end")
    a("s_endpgm")
    return name, dict(grid=256, block=512, lds=c.lds, vgprs=256)

def gen_k4(a, opt):
    name = "k4_kernel"; L = "K4"
    c = GemmCfg(shape=16, WM=2, WN=2, MT=4, NT=2, K=3584, NS=opt.get('k4ns', 5), blocks=['full'], ldb=2048, acc0=112)
    kernel_header(a, name)
    a("s_cmp_ge_u32 s2, 256"); a("s_cbranch_scc1 K4_end")
    ld_ptr(a, 34, 'ws'); ld_ptr(a, 32, 'w2'); ld_ptr(a, 36, 'b2'); ld_ptr(a, 38, 'out')
    wave_lane(a)
    tile_map(a, opt.get('k4map', '4x8'))
    a("s_waitcnt lgkmcnt(0)")
    make_srd(a, S_SRDA, 34, 2048 * 3584 * 2, off=WS_H1)
    make_srd(a, S_SRDB, 32, 3584 * 1024 * 2)
    make_srd(a, 52, 38, 2048 * 1024 * 2)
    make_srd(a, 56, 36, 1024 * 2)
    a("s_lshl_b32 s44, s17, 3")
    a("s_lshl_b32 s45, s18, 7")
    a("s_cmp_ge_u32 s%d, 4" % S_WAVE); a("s_cbranch_scc1 K4_loader")
    vA = 2; vB = [3, 4, 5, 6]; vBh = [7, 8]
    compute_setup(a, c, vA, vB, vBh, tmp=9)
    a("s_mov_b32 s38, s%d" % S_T0); a("s_mov_b32 s39, s%d" % S_T1)
    a("s_lshl_b32 s25, s24, 6"); a("v_xor_b32 v3, s25, v3"); a("v_xor_b32 v4, s25, v4")
    tm = [(vB[j], c.blk_off[0], 'full') for j in range(2)]
    make_srd(a, 48, 34, 4 * MB, off=WS_H)
    a("s_lshl_b32 s40, s38, 2"); a("s_add_u32 s40, s40, s44"); a("s_lshl_b32 s40, s40, 5"); a("s_lshl_b32 s41, s18, 1"); a("s_add_u32 s41, s41, s39"); a("s_add_u32 s40, s40, s41")
    a("s_lshl_b32 s40, s40, 10")
    a("v_lshlrev_b32 v14, 4, v1"); a("v_add_u32 v14, s40, v14")
    for i in range(4):
        a("s_mov_b32 s42, %d" % (i * 32 * 1024))
        a("buffer_load_dwordx4 v[%d:%d], v14, s[48:51], s42 offen" % (80 + i * 4, 83 + i * 4))
    a("s_lshl_b32 s40, s18, 6"); a("s_lshl_b32 s41, s39, 5"); a("s_add_u32 s40, s40, s41")
    a("v_lshrrev_b32 v9, 4, v1"); a("v_lshlrev_b32 v9, 2, v9"); a("v_add_u32 v9, s40, v9"); a("v_lshlrev_b32 v9, 1, v9")
    for j in range(2): a("buffer_load_dwordx2 v[%d:%d], v9, s[56:59], 0 offen offset:%d" % (96 + j * 2, 97 + j * 2, j * 32))
    compute_loop(a, c, L, tm, vA)
    a("s_waitcnt vmcnt(0)")
    def acc(i, j): return c.acc0 + (i * 2 + j) * 4
    for j in range(2):
        for h in range(2):
            a("v_lshlrev_b32 v%d, 16, v%d" % (100 + j * 4 + 2 * h, 96 + j * 2 + h)); a("v_and_b32 v%d, 0xffff0000, v%d" % (101 + j * 4 + 2 * h, 96 + j * 2 + h))
    a("s_lshl_b32 s40, s17, 7"); a("s_lshl_b32 s42, s38, 6"); a("s_add_u32 s40, s40, s42")
    a("v_and_b32 v9, 15, v1"); a("v_add_u32 v9, s40, v9"); a("v_lshlrev_b32 v9, 11, v9")
    a("v_bfe_u32 v10, v1, 4, 1"); a("v_lshlrev_b32 v10, 5, v10"); a("v_add_u32 v9, v9, v10")
    a("v_lshrrev_b32 v10, 5, v1"); a("v_lshlrev_b32 v10, 4, v10"); a("v_add_u32 v9, v9, v10")
    a("s_lshl_b32 s41, s18, 7"); a("s_lshl_b32 s42, s39, 6"); a("s_add_u32 s41, s41, s42"); a("v_add_u32 v9, s41, v9")
    for i in range(4):
        for j in range(2):
            b = acc(i, j); hr = 80 + i * 4 + j * 2
            for h in range(2):
                a("v_cvt_pk_bf16_f32 v16, v%d, v%d" % (b + 2 * h, b + 2 * h + 1))
                a("v_lshlrev_b32 v17, 16, v16"); a("v_and_b32 v18, 0xffff0000, v16")
                a("v_add_f32 v17, v17, v%d" % (100 + j * 4 + 2 * h)); a("v_add_f32 v18, v18, v%d" % (101 + j * 4 + 2 * h))
                a("v_cvt_pk_bf16_f32 v16, v17, v18")
                a("v_lshlrev_b32 v17, 16, v16"); a("v_and_b32 v18, 0xffff0000, v16")
                a("v_lshlrev_b32 v19, 16, v%d" % (hr + h)); a("v_and_b32 v20, 0xffff0000, v%d" % (hr + h))
                a("v_add_f32 v17, v17, v19"); a("v_add_f32 v18, v18, v20")
                a("v_cvt_pk_bf16_f32 v%d, v17, v18" % (24 + j * 2 + h))
        a("v_permlane16_swap_b32 v24, v26"); a("v_permlane16_swap_b32 v25, v27")
        a("s_mov_b32 s42, %d" % (i * 16 * 2048))
        a("buffer_store_dwordx4 v[24:27], v9, s[52:55], s42 offen")
    a("s_branch K4_end")
    a.label("K4_loader")
    Ld = loader_setup(a, c, 44, ["s45"])
    loader_loop(a, c, Ld, L)
    a.label("K4_end")
    a("s_endpgm")
    return name, dict(grid=256, block=512, lds=c.lds, vgprs=256)

def build(opt):
    hdr = open("cdna_kernels/%s.s.ref" % NAME).read().split("; Override launch")[0]
    kernels = []
    body = []
    for g in (gen_k0, lambda a: gen_k1(a, opt), lambda a: gen_k1b(a, opt), lambda a: gen_k2(a, opt), lambda a: gen_k3(a, opt), lambda a: gen_k4(a, opt)):
        a = Asm()
        name, info = g(a)
        lines, n = hazard.fix(a.lines)
        body.append("\n".join(lines) + "\n")
        kernels.append((name, info))
    order = opt.get('order', [k for k, _ in kernels])
    info = dict(kernels)
    txt = hdr
    for k in order:
        i = info[k]
        txt += "; @launch kernel=%s grid=(%d,1,1) block=(%d,1,1) lds=%d\n" % (k, i['grid'], i['block'], i['lds'])
    txt += '.amdgcn_target "amdgcn-amd-amdhsa--gfx950"\n.text\n' + "".join(body)
    txt += '.section .rodata,"a"\n'
    for k, i in kernels:
        txt += ".p2align 6\n" + kernel_desc(k, i['vgprs'])
    return txt

if __name__ == "__main__":
    opt = json.loads(sys.argv[2]) if len(sys.argv) > 2 else {}
    open(sys.argv[1], "w").write(build(opt))
```

```python
from asmlib import *

S_SRDA = 4; S_SRDB = 8; S_WAVE = 16; S_CNT = 19; S_STG = 20; S_KA = 21; S_KB = 22; S_T0 = 23; S_T1 = 24; S_T2 = 25; S_RD = 26; S_NEG = 27; S_POS = 28
MF = "v_mfma_f32_16x16x32_bf16"

class Cfg:
    def __init__(self, **kw):
        self.WM = 2; self.WN = 2; self.MT = 4; self.NT = 6
        self.K = 1024; self.NS = 3; self.nblk = 3; self.ldb = 6144
        self.swap_tiles = set(); self.acc0 = 112; self.frag0 = 16
        self.aflags = ""; self.bflags = ""
        self.after_b0 = None
        self.__dict__.update(kw)
        self.BM = self.WM * self.MT * 16
        self.T = self.K // 64
        self.A_bytes = self.BM * 128
        self.blk_off = [self.A_bytes + 8192 * b for b in range(self.nblk)]
        self.stage = self.A_bytes + 8192 * self.nblk
        self.lds = self.stage * self.NS

def loader_setup(a, c, s_mtbase, blk_col_sgprs, vbase=2):
    nmt = c.BM // 16
    per = nmt // 4
    va = []
    v = vbase
    a("s_sub_u32 s%d, s%d, 4" % (S_T0, S_WAVE))
    a("v_lshlrev_b32 v%d, 4, v1" % v)
    lane16 = v; v += 1
    a("s_mul_i32 s%d, s%d, %d" % (S_T1, S_T0, per))
    a("s_add_u32 s%d, s%d, s%d" % (S_T1, S_T1, s_mtbase))
    a("s_mul_i32 s%d, s%d, %d" % (S_T1, S_T1, c.K // 32 * 1024))
    for i in range(per):
        a("v_add_u32 v%d, s%d, v%d" % (v, S_T1, lane16))
        if i < per - 1: a("s_add_u32 s%d, s%d, %d" % (S_T1, S_T1, c.K // 32 * 1024))
        va.append(v); v += 1
    tmp = v; v += 1
    tmp2 = v; v += 1
    patf = v; v += 1
    a("s_mov_b32 s%d, %d" % (S_T1, c.ldb))
    a("v_lshrrev_b32 v%d, 3, v1" % tmp)
    a("v_mul_lo_u32 v%d, v%d, s%d" % (patf, tmp, S_T1))
    a("v_bfe_u32 v%d, v1, 4, 2" % tmp); a("v_lshlrev_b32 v%d, 1, v%d" % (tmp, tmp))
    a("v_and_b32 v%d, 7, v1" % tmp2)
    a("v_xor_b32 v%d, v%d, v%d" % (tmp, tmp, tmp2))
    a("v_lshl_add_u32 v%d, v%d, 4, v%d" % (patf, tmp, patf))
    a("s_mul_i32 s%d, s%d, %d" % (S_T2, S_T0, 16 * c.ldb))
    vb = []
    for bi in range(c.nblk):
        a("s_add_u32 s%d, s%d, %s" % (S_T1, S_T2, blk_col_sgprs[bi]))
        a("v_add_u32 v%d, s%d, v%d" % (v, S_T1, patf))
        a("v_add_u32 v%d, %d, v%d" % (v + 1, 8 * c.ldb - 1024, v))
        vb.append([v, v + 1]); v += 2
    a("s_mul_i32 s27, s%d, %d" % (S_T0, per * 2048))
    a("s_lshl_b32 s28, s%d, 11" % S_T0)
    ndma = per * 2 + 2 * c.nblk
    return dict(va=va, vb=vb, ndma=ndma, per=per, vnext=v)

def loader_issue(a, c, L):
    for i, v in enumerate(L['va']):
        if i == 0:
            a("s_add_u32 m0, s%d, s27" % S_STG)
        else:
            a("s_add_u32 m0, m0, 2048")
        for s in range(2):
            a("buffer_load_dwordx4 v%d, s[%d:%d], s%d offen offset:%d %s lds" % (v, S_SRDA, S_SRDA + 3, S_KA, s * 1024, c.aflags))
    a("s_add_u32 s%d, s%d, s28" % (S_T1, S_STG))
    for bi in range(c.nblk):
        a("s_add_u32 m0, s%d, %d" % (S_T1, c.blk_off[bi]))
        for e, v in enumerate(L['vb'][bi]):
            a("buffer_load_dwordx4 v%d, s[%d:%d], s%d offen offset:%d %s lds" % (v, S_SRDB, S_SRDB + 3, S_KB, e * 1024, c.bflags))

def loader_advance(a, c):
    a("s_add_u32 s%d, s%d, 2048" % (S_KA, S_KA))
    a("s_add_u32 s%d, s%d, %d" % (S_KB, S_KB, 64 * c.ldb))
    a("s_add_u32 s%d, s%d, %d" % (S_STG, S_STG, c.stage))
    a("s_cmp_eq_u32 s%d, %d" % (S_STG, c.stage * c.NS))
    a("s_cselect_b32 s%d, 0, s%d" % (S_STG, S_STG))

def loader_loop(a, c, L, lbl, tail_loads=None, n_tail=0):
    nd = L['ndma']; NS = c.NS; T = c.T
    pre = NS - 1
    a("s_mov_b32 s%d, 0" % S_STG); a("s_mov_b32 s%d, 0" % S_KA); a("s_mov_b32 s%d, 0" % S_KB)
    p0 = min(2, pre)
    for p in range(p0):
        loader_issue(a, c, L); loader_advance(a, c)
    a("s_waitcnt vmcnt(%d)" % (nd * (p0 - 1)))
    a("s_barrier")
    for p in range(p0, NS):
        loader_issue(a, c, L); loader_advance(a, c)
    a("s_mov_b32 s%d, %d" % (S_CNT, T - pre - 1))
    a.label(lbl + "_lloop")
    a("s_waitcnt vmcnt(%d)" % (nd * (pre - 1)))
    a("s_barrier")
    loader_issue(a, c, L); loader_advance(a, c)
    a("s_sub_u32 s%d, s%d, 1" % (S_CNT, S_CNT))
    a("s_cmp_lg_u32 s%d, 0" % S_CNT)
    a("s_cbranch_scc1 %s_lloop" % lbl)
    if tail_loads: tail_loads(a)
    for r in range(pre):
        n = nd * (pre - 1 - r) + n_tail
        assert n <= 63
        a("s_waitcnt vmcnt(%d)" % n)
        a("s_barrier")

def compute_setup(a, c, vA, vB, tmp):
    a("s_lshr_b32 s38, s%d, 1" % S_WAVE); a("s_and_b32 s39, s%d, 1" % S_WAVE)
    a("s_mul_i32 s%d, s38, %d" % (S_T2, c.MT * 2048))
    a("v_lshlrev_b32 v%d, 4, v1" % vA)
    a("v_add_u32 v%d, s%d, v%d" % (vA, S_T2, vA))
    tr_pattern(a, vB[0], tmp)

def tr_pattern(a, dst, tmp):
    t0, t1 = tmp, tmp + 1
    a("v_bfe_u32 v%d, v1, 1, 1" % t0)
    a("v_bfe_u32 v%d, v1, 3, 2" % t1)
    a("v_lshlrev_b32 v%d, 1, v%d" % (t1, t1))
    a("v_xor_b32 v%d, v%d, v%d" % (t0, t0, t1))
    a("v_lshrrev_b32 v%d, 2, v1" % t1)
    a("v_lshlrev_b32 v%d, 7, v%d" % (dst, t1))
    a("v_lshl_add_u32 v%d, v%d, 4, v%d" % (dst, t0, dst))
    a("v_and_b32 v%d, 1, v1" % t1)
    a("v_lshl_add_u32 v%d, v%d, 3, v%d" % (dst, t1, dst))

def compute_loop(a, c, lbl, tilemap, vA):
    MT, NT = c.MT, c.NT
    fs = (MT + NT) * 4
    P = c.frag0; Q = c.frag0 + fs
    assert c.frag0 + 2 * fs <= c.acc0
    def act(setb, i): return setb + i * 4
    def wt(setb, j): return setb + MT * 4 + j * 4
    def accr(i, j): return c.acc0 + (i * NT + j) * 4
    sch = LgkmSched(a)
    addr_regs = sorted(set([vA] + [t[0] for t in tilemap]))
    def reads(setb, s):
        out = []
        order = [('a', 0), ('w', 0)] + [('a', i) for i in range(1, MT)] + [('w', j) for j in range(1, NT)]
        for kind, j in order:
            if kind == 'a':
                out.append(("ds_read_b128 %s, v%d offset:%d" % (vr(act(setb, j), 4), vA, (j * 2 + s) * 1024), (setb, 'a', j)))
            else:
                reg, imm = tilemap[j]
                for jj in range(2):
                    out.append(("ds_read_b64_tr_b16 %s, v%d offset:%d" % (vr(wt(setb, j) + jj * 2, 2), reg, imm + s * 4096 + jj * 2048), (setb, 'w', j)))
        return out
    ms = [(i, j) for j in range(NT) for i in range(MT)]
    def advance():
        a("s_add_u32 s%d, s%d, %d" % (S_RD, S_RD, c.stage))
        a("s_cmp_eq_u32 s%d, %d" % (S_RD, c.stage * c.NS))
        a("s_cselect_b32 s%d, s%d, s%d" % (S_T0, S_NEG, S_POS))
        a("s_cselect_b32 s%d, 0, s%d" % (S_RD, S_RD))
        for r in addr_regs:
            a("v_add_u32 v%d, s%d, v%d" % (r, S_T0, r))
    T_ = getattr(c, 'touch', None)
    def do_touch():
        if not T_: return
        a("buffer_load_dword v%d, v%d, s[%d:%d], s%d offen" % (T_['dst'], T_['vA'], S_SRDA, S_SRDA + 3, T_['sA']))
        a("s_add_u32 s%d, s%d, 2048" % (T_['sA'], T_['sA']))
        a("buffer_load_dword v%d, v%d, s[%d:%d], s%d offen" % (T_['dst'] + 1, T_['vB'], S_SRDB, S_SRDB + 3, T_['sB']))
        a("s_add_u32 s%d, s%d, %d" % (T_['sB'], T_['sB'], 64 * c.ldb))
    def group(setc, setn, s_next, pre_barrier=False, noreads=False, post=None, first=False, touch=False):
        rd = [] if noreads else reads(setn, s_next)
        if pre_barrier:
            sch.drain()
            a("s_barrier")
        ri = 0
        nm = len(ms)
        for k, (i, j) in enumerate(ms):
            sch.need({(setc, 'a', i), (setc, 'w', j)})
            A_, B_ = wt(setc, j), act(setc, i)
            if j in c.swap_tiles: A_, B_ = B_, A_
            cin = "0" if first else vr(accr(i, j), 4)
            a("%s %s, %s, %s, %s" % (MF, vr(accr(i, j), 4), vr(A_, 4), vr(B_, 4), cin))
            if ri < len(rd):
                sch.issue(*rd[ri]); ri += 1
                if ri == len(rd) and post: post(); post = None
            if touch and k == nm - 2: do_touch()
        while ri < len(rd):
            sch.issue(*rd[ri]); ri += 1
        if post: post()
    a("s_mov_b32 s%d, 0" % S_RD)
    a("s_mov_b32 s%d, 0x%x" % (S_NEG, -(c.stage * (c.NS - 1)) & 0xffffffff))
    a("s_mov_b32 s%d, %d" % (S_POS, c.stage))
    a("s_mov_b32 s%d, %d" % (S_CNT, c.T - 2))
    a("s_barrier")
    for t in reads(P, 0): sch.issue(*t)
    if c.after_b0: c.after_b0(a)
    q0 = list(sch.q)
    group(P, Q, 1, post=advance, first=True, touch=True)
    group(Q, P, 0, pre_barrier=True)
    assert sch.q == q0
    def cnt():
        advance()
    a.label(lbl + "_cloop")
    group(P, Q, 1, post=advance, touch=True)
    a("s_sub_u32 s%d, s%d, 1" % (S_CNT, S_CNT))
    group(Q, P, 0, pre_barrier=True)
    assert sch.q == q0
    a("s_cmp_lg_u32 s%d, 0" % S_CNT)
    a("s_cbranch_scc1 %s_cloop" % lbl)
    group(P, Q, 1)
    group(Q, P, 0, noreads=True)


def touch_setup(a, c, nA, nB, s_idxA, s_idxB, s_mtbase, s_col0, blkstride, vA, vB, tmp, sA, sB, dst, LA):
    LW = 32 // nA; RW = 16 // nB
    a("s_mul_i32 s%d, s%d, %d" % (S_T0, s_idxA, 128 // nA)); a("s_mul_i32 s%d, s%d, %d" % (S_T1, S_WAVE, LW)); a("s_add_u32 s%d, s%d, s%d" % (S_T0, S_T0, S_T1))
    a("v_add_u32 v%d, s%d, v1" % (tmp, S_T0))
    a("v_lshrrev_b32 v%d, 4, v%d" % (tmp + 1, tmp)); a("v_add_u32 v%d, s%d, v%d" % (tmp + 1, s_mtbase, tmp + 1))
    a("s_mov_b32 s%d, %d" % (S_T1, c.K // 32 * 1024)); a("v_mul_lo_u32 v%d, v%d, s%d" % (vA, tmp + 1, S_T1))
    a("v_and_b32 v%d, 15, v%d" % (tmp, tmp)); a("v_lshl_add_u32 v%d, v%d, 7, v%d" % (vA, tmp, vA))
    a("v_mov_b32 v%d, 0x7ff00000" % (tmp + 1))
    a("v_cmp_gt_u32 vcc, %d, v1" % LW); a("v_cndmask_b32 v%d, v%d, v%d, vcc" % (vA, tmp + 1, vA))
    sh = RW.bit_length() - 1
    a("s_mul_i32 s%d, s%d, %d" % (S_T0, s_idxB, 64 // nB)); a("s_mul_i32 s%d, s%d, %d" % (S_T1, S_WAVE, RW)); a("s_add_u32 s%d, s%d, s%d" % (S_T0, S_T0, S_T1))
    a("v_and_b32 v%d, %d, v1" % (tmp, RW - 1)); a("v_add_u32 v%d, s%d, v%d" % (tmp, S_T0, tmp))
    a("s_mov_b32 s%d, %d" % (S_T1, c.ldb)); a("v_mul_lo_u32 v%d, v%d, s%d" % (vB, tmp, S_T1))
    a("v_lshrrev_b32 v%d, %d, v1" % (tmp, sh)); a("s_mov_b32 s%d, %d" % (S_T1, blkstride)); a("v_mul_lo_u32 v%d, v%d, s%d" % (tmp, tmp, S_T1))
    a("v_add_u32 v%d, v%d, v%d" % (vB, vB, tmp)); a("v_add_u32 v%d, s%d, v%d" % (vB, s_col0, vB))
    a("v_cmp_gt_u32 vcc, %d, v1" % (RW * c.nblk)); a("v_cndmask_b32 v%d, v%d, v%d, vcc" % (vB, tmp + 1, vB))
    a("s_mov_b32 s%d, %d" % (sA, c.NS * 2048)); a("s_mov_b32 s%d, %d" % (sB, c.NS * 64 * c.ldb))
    for t in range(c.NS, LA):
        a("buffer_load_dword v%d, v%d, s[%d:%d], s%d offen" % (dst, vA, S_SRDA, S_SRDA + 3, sA))
        a("s_add_u32 s%d, s%d, 2048" % (sA, sA))
        a("buffer_load_dword v%d, v%d, s[%d:%d], s%d offen" % (dst + 1, vB, S_SRDB, S_SRDB + 3, sB))
        a("s_add_u32 s%d, s%d, %d" % (sB, sB, 64 * c.ldb))
    c.touch = dict(vA=vA, vB=vB, sA=sA, sB=sB, dst=dst)


def compute_loop_full(a, c, lbl, tilemap, vA):
    MT, NT = c.MT, c.NT
    fs1 = (MT + NT) * 4
    fs = 2 * fs1
    P = c.frag0; Q = c.frag0 + fs
    assert c.frag0 + 2 * fs <= c.acc0
    def act(setb, s, i): return setb + s * fs1 + i * 4
    def wt(setb, s, j): return setb + s * fs1 + MT * 4 + j * 4
    def accr(i, j): return c.acc0 + (i * NT + j) * 4
    sch = LgkmSched(a)
    addr_regs = sorted(set([vA] + [t[0] for t in tilemap]))
    def reads(setb):
        out = []
        for s in range(2):
            order = [('a', 0), ('w', 0)] + [('a', i) for i in range(1, MT)] + [('w', j) for j in range(1, NT)]
            for kind, j in order:
                if kind == 'a':
                    out.append(("ds_read_b128 %s, v%d offset:%d" % (vr(act(setb, s, j), 4), vA, (j * 2 + s) * 1024), (setb, s, 'a', j)))
                else:
                    reg, imm = tilemap[j]
                    for jj in range(2):
                        out.append(("ds_read_b64_tr_b16 %s, v%d offset:%d" % (vr(wt(setb, s, j) + jj * 2, 2), reg, imm + s * 4096 + jj * 2048), (setb, s, 'w', j)))
        return out
    ms = [(s, i, j) for s in range(2) for j in range(NT) for i in range(MT)]
    def advance():
        a("s_add_u32 s%d, s%d, %d" % (S_RD, S_RD, c.stage))
        a("s_cmp_eq_u32 s%d, %d" % (S_RD, c.stage * c.NS))
        a("s_cselect_b32 s%d, s%d, s%d" % (S_T0, S_NEG, S_POS))
        a("s_cselect_b32 s%d, 0, s%d" % (S_RD, S_RD))
        for r in addr_regs:
            a("v_add_u32 v%d, s%d, v%d" % (r, S_T0, r))
    def step(setc, setn, barrier=True, noreads=False, first=False):
        rd = [] if noreads else reads(setn)
        if barrier:
            sch.drain()
            a("s_barrier")
        ri = 0
        for k, (s, i, j) in enumerate(ms):
            sch.need({(setc, s, 'a', i), (setc, s, 'w', j)})
            A_, B_ = wt(setc, s, j), act(setc, s, i)
            if j in c.swap_tiles: A_, B_ = B_, A_
            cin = "0" if (first and s == 0) else vr(accr(i, j), 4)
            a("%s %s, %s, %s, %s" % (MF, vr(accr(i, j), 4), vr(A_, 4), vr(B_, 4), cin))
            if ri < len(rd):
                sch.issue(*rd[ri]); ri += 1
        while ri < len(rd):
            sch.issue(*rd[ri]); ri += 1
        if not noreads: advance()
    a("s_mov_b32 s%d, 0" % S_RD)
    a("s_mov_b32 s%d, 0x%x" % (S_NEG, -(c.stage * (c.NS - 1)) & 0xffffffff))
    a("s_mov_b32 s%d, %d" % (S_POS, c.stage))
    assert c.T % 2 == 0
    a("s_mov_b32 s%d, %d" % (S_CNT, (c.T - 2) // 2))
    a("s_barrier")
    for t in reads(P): sch.issue(*t)
    advance()
    if c.after_b0: c.after_b0(a)
    step(P, Q, first=True)
    a.label(lbl + "_cloop")
    step(Q, P)
    a("s_sub_u32 s%d, s%d, 1" % (S_CNT, S_CNT))
    step(P, Q)
    a("s_cmp_lg_u32 s%d, 0" % S_CNT)
    a("s_cbranch_scc1 %s_cloop" % lbl)
    step(Q, P, barrier=False, noreads=True)
```

```python
import sys, json
from asmlib import *
from core2 import *
import hazard

NAME = "sequential_preLN__linear_kernel_hedgehog__dense_activation_squared_relu__prompt"
MB = 1 << 20
WS_XN = 0
WS_PHIQ = 4 * MB
WS_KVP = 12 * MB
KVP_STRIDE = 4352
WS_O = 20 * MB
WS_H = 24 * MB
WS_STATS = 28 * MB
WS_CS1 = 29 * MB
WS_H1 = 32 * MB
WS_STAMP = 200 * MB
LOG2E = 0x3fb8aa3b
OPT = {}
STAMP = {'on': False}

def ld_ptr(a, s, key):
    a("s_load_dwordx2 s[%d:%d], s[0:1], %d" % (s, s + 1, KERNARG[key]))

def wave_lane(a):
    a("v_and_b32 v1, 63, v0")
    a("v_lshrrev_b32 v2, 6, v0")
    a("s_nop 0")
    a("v_readfirstlane_b32 s%d, v2" % S_WAVE)

def bf16_round(a, dst, src):
    a("v_cvt_pk_bf16_f32 v%d, v%d, v%d" % (dst, src, src))
    a("v_lshlrev_b32 v%d, 16, v%d" % (dst, dst))

def stamp(a, idx):
    if STAMP['on']:
        a("s_memrealtime s[%d:%d]" % (80 + 2 * idx, 81 + 2 * idx)); a("s_waitcnt lgkmcnt(0)")
def stamp_flush(a, kid, n, wave=0):
    if not STAMP['on']: return
    lbl = "ST_skip_%d_%d" % (kid, len(a.lines))
    stamp(a, n)
    a("s_waitcnt vmcnt(0)")
    n += 1
    stamp(a, n)
    a("s_cmp_lg_u32 s%d, %d" % (S_WAVE, wave)); a("s_cbranch_scc1 %s" % lbl)
    a("s_load_dwordx2 s[70:71], s[0:1], %d" % KERNARG['ws']); a("s_waitcnt lgkmcnt(0)")
    make_srd(a, 72, 70, 1 * MB, off=WS_STAMP)
    a("s_add_u32 s76, s2, %d" % (kid * 512)); a("s_lshl_b32 s76, s76, 5")
    a("s_mov_b64 exec, 1")
    a("v_mov_b32 v5, s76")
    for i in range(n + 1):
        a("v_mov_b32 v4, s%d" % (80 + 2 * i))
        a("buffer_store_dword v4, v5, s[72:75], 0 offen offset:%d" % (i * 4))
        a("s_nop 1")
    a.label(lbl)

def pk(op, d, s0, s1, s2=None, mods=""):
    ops = [d, s0, s1] + ([s2] if s2 is not None else [])
    def f(x): return x if isinstance(x, str) else "v[%d:%d]" % (x, x + 1)
    return "%s %s %s" % (op, ", ".join(f(x) for x in ops), mods)

def touch(a, vdst, vaddr, srd, soff="0"):
    a("buffer_load_dword v%d, v%d, s[%d:%d], %s offen" % (vdst, vaddr, srd, srd + 3, soff))

def st_flags(key):
    return OPT.get('st_' + key, OPT.get('st', ''))

def allreduce4(a, op, r, t):
    a("v_permlane32_swap_b32 v%d, v%d" % (r[0], r[1])); a("v_permlane32_swap_b32 v%d, v%d" % (r[2], r[3]))
    a("%s v%d, v%d, v%d" % (op, r[0], r[0], r[1])); a("%s v%d, v%d, v%d" % (op, r[2], r[2], r[3]))
    a("v_permlane16_swap_b32 v%d, v%d" % (r[0], r[2]))
    a("%s v%d, v%d, v%d" % (op, r[0], r[0], r[2]))
    a("v_mov_b32 v%d, v%d" % (r[2], r[0]))
    a("v_permlane16_swap_b32 v%d, v%d" % (r[0], r[2]))
    a("v_mov_b32 v%d, v%d" % (r[1], r[0])); a("v_mov_b32 v%d, v%d" % (r[3], r[2]))
    a("v_permlane32_swap_b32 v%d, v%d" % (r[0], r[1])); a("v_permlane32_swap_b32 v%d, v%d" % (r[2], r[3]))

def gen_k0(a):
    name = "k0_kernel"
    kernel_header(a, name)
    a.label("CODE_BEGIN")
    a("s_cmp_ge_u32 s2, 256"); a("s_cbranch_scc1 K0_end")
    stamp(a, 0)
    ld_ptr(a, 30, 'x'); ld_ptr(a, 34, 'ws'); ld_ptr(a, 32, 'wqkv'); ld_ptr(a, 36, 'wo'); ld_ptr(a, 38, 'w1')
    wave_lane(a)
    a("v_and_b32 v2, 7, v0"); a("v_lshrrev_b32 v3, 3, v0")
    a("s_lshl_b32 s20, s2, 3"); a("v_add_u32 v4, s20, v2"); a("v_lshlrev_b32 v4, 11, v4"); a("v_lshl_add_u32 v4, v3, 6, v4")
    a("s_waitcnt lgkmcnt(0)")
    make_srd(a, 4, 30, 2048 * 1024 * 2)
    for i in range(4):
        a("buffer_load_dwordx4 v[%d:%d], v4, s[4:7], 0 offen offset:%d" % (16 + 4 * i, 19 + 4 * i, i * 16))
    make_srd(a, 12, 32, 1024 * 3072 * 2)
    a("s_lshl_b32 s21, s2, 2"); a("s_add_u32 s21, s21, s%d" % S_WAVE); a("s_lshl_b32 s21, s21, 13")
    a("v_lshlrev_b32 v5, 7, v1")
    touch(a, 10, 5, 12, "s21")
    make_srd(a, 12, 36, 1024 * 1024 * 2)
    touch(a, 32, 5, 12, "s21")
    make_srd(a, 12, 38, 1024 * 3584 * 2)
    touch(a, 33, 5, 12, "s21")
    a("s_getpc_b64 s[24:25]")
    a.label("K0_pc")
    a("s_sub_u32 s24, s24, K0_pc-CODE_BEGIN"); a("s_subb_u32 s25, s25, 0")
    a("s_mov_b32 s26, CODE_END-CODE_BEGIN"); a("s_mov_b32 s27, 0x20000")
    a("s_lshr_b32 s21, s2, 3"); a("s_and_b32 s21, s21, 15"); a("s_lshl_b32 s21, s21, 13")
    touch(a, 11, 5, 24, "s21")
    make_srd(a, 8, 34, 4 * MB, off=WS_XN)
    a("s_waitcnt vmcnt(4)")
    for i in range(16):
        a("v_lshlrev_b32 v%d, 16, v%d" % (64 + 2 * i, 16 + i))
        a("v_and_b32 v%d, 0xffff0000, v%d" % (65 + 2 * i, 16 + i))
    def rowsum(src_pairs, dst):
        pass
    for i in range(8): a(pk("v_pk_add_f32", 40 + 2 * i, 64 + 2 * i, 80 + 2 * i))
    for i in range(4): a(pk("v_pk_add_f32", 40 + 2 * i, 40 + 2 * i, 48 + 2 * i))
    for i in range(2): a(pk("v_pk_add_f32", 40 + 2 * i, 40 + 2 * i, 44 + 2 * i))
    a(pk("v_pk_add_f32", 40, 40, 42)); a("v_add_f32 v6, v40, v41")
    def xl(r, t):
        a("v_add_f32_dpp v%d, v%d, v%d row_ror:8 row_mask:0xf bank_mask:0xf" % (r, r, r))
        a("v_mov_b32 v%d, v%d" % (t, r)); a("v_permlane16_swap_b32 v%d, v%d" % (r, t)); a("v_add_f32 v%d, v%d, v%d" % (r, r, t))
        a("v_mov_b32 v%d, v%d" % (t, r)); a("v_permlane32_swap_b32 v%d, v%d" % (r, t)); a("v_add_f32 v%d, v%d, v%d" % (r, r, t))
    xl(6, 7)
    a("v_lshlrev_b32 v8, 2, v2"); a("s_lshl_b32 s21, s%d, 5" % S_WAVE); a("v_add_u32 v9, s21, v8")
    a("ds_write_b32 v9, v6")
    a("s_waitcnt lgkmcnt(0)"); a("s_barrier")
    a("ds_read_b32 v12, v8"); a("ds_read_b32 v13, v8 offset:32"); a("ds_read_b32 v14, v8 offset:64"); a("ds_read_b32 v15, v8 offset:96")
    a("s_waitcnt lgkmcnt(0)")
    a("v_add_f32 v12, v12, v13"); a("v_add_f32 v14, v14, v15"); a("v_add_f32 v12, v12, v14")
    a("v_mul_f32 v12, 0x3a800000, v12")
    for i in range(16): a(pk("v_pk_add_f32", 96 + 2 * i, 64 + 2 * i, 12, mods="op_sel_hi:[1,0] neg_lo:[0,1] neg_hi:[0,1]"))
    for i in range(4): a(pk("v_pk_mul_f32", 40 + 2 * i, 96 + 2 * i, 96 + 2 * i))
    for i in range(4, 16): a(pk("v_pk_fma_f32", 40 + 2 * (i & 3), 96 + 2 * i, 96 + 2 * i, 40 + 2 * (i & 3)))
    a(pk("v_pk_add_f32", 40, 40, 42)); a(pk("v_pk_add_f32", 44, 44, 46)); a(pk("v_pk_add_f32", 40, 40, 44)); a("v_add_f32 v6, v40, v41")
    xl(6, 7)
    a("ds_write_b32 v9, v6 offset:128")
    a("s_waitcnt lgkmcnt(0)"); a("s_barrier")
    a("ds_read_b32 v13, v8 offset:128"); a("ds_read_b32 v14, v8 offset:160"); a("ds_read_b32 v15, v8 offset:192"); a("ds_read_b32 v6, v8 offset:224")
    a("s_waitcnt lgkmcnt(0)")
    a("v_add_f32 v13, v13, v14"); a("v_add_f32 v15, v15, v6"); a("v_add_f32 v13, v13, v15")
    a("v_mul_f32 v14, 0x3a800000, v13")
    bf16_round(a, 12, 12); bf16_round(a, 14, 14)
    a("v_add_f32 v14, 0x3727c5ac, v14"); bf16_round(a, 14, 14)
    a("v_sqrt_f32 v14, v14"); bf16_round(a, 14, 14)
    a("v_rcp_f32 v14, v14")
    for i in range(16):
        p = 64 + 2 * i
        a(pk("v_pk_add_f32", p, p, 12, mods="op_sel_hi:[1,0] neg_lo:[0,1] neg_hi:[0,1]"))
    for i in range(16):
        p = 64 + 2 * i
        a("v_cvt_pk_bf16_f32 v%d, v%d, v%d" % (96 + i, p, p + 1))
    for i in range(16):
        p = 64 + 2 * i
        a("v_lshlrev_b32 v%d, 16, v%d" % (p, 96 + i)); a("v_and_b32 v%d, 0xffff0000, v%d" % (p + 1, 96 + i))
    for i in range(16):
        p = 64 + 2 * i
        a(pk("v_pk_mul_f32", p, p, 14, mods="op_sel_hi:[1,0]"))
    for g in range(4):
        for q, dw in enumerate((2 * g, 2 * g + 1, 8 + 2 * g, 9 + 2 * g)):
            a("v_cvt_pk_bf16_f32 v%d, v%d, v%d" % (16 + 4 * g + q, 64 + 2 * dw, 65 + 2 * dw))
    a("s_lshr_b32 s20, s2, 1"); a("s_lshl_b32 s20, s20, 15"); a("s_and_b32 s21, s2, 1"); a("s_lshl_b32 s21, s21, 7"); a("s_add_u32 s20, s20, s21")
    a("v_lshlrev_b32 v4, 10, v3"); a("v_lshl_add_u32 v4, v2, 4, v4"); a("v_add_u32 v4, s20, v4")
    for g in range(4):
        a("buffer_store_dwordx4 v[%d:%d], v4, s[8:11], 0 offen offset:%d %s" % (16 + 4 * g, 19 + 4 * g, g * 256, st_flags('k0')))
    stamp(a, 1); stamp(a, 2)
    stamp_flush(a, 0, 3)
    a.label("K0_end")
    a("s_endpgm")
    return name, dict(grid=256, block=256, lds=1024, vgprs=128)

def map_share(mode):
    return {'8x4': (4, 8), '4x8': (8, 4), '2x16': (16, 2)}[mode]
def tile_map(a, mode):
    a("s_and_b32 s40, s2, 7"); a("s_lshr_b32 s41, s2, 3")
    sh = {'8x4': 3, '4x8': 2, '2x16': 1}[mode]
    a("s_lshr_b32 s66, s41, %d" % sh); a("s_and_b32 s67, s41, %d" % ((1 << sh) - 1))
    if mode == '8x4':
        a("s_and_b32 s42, s40, 1"); a("s_lshl_b32 s42, s42, 3"); a("s_and_b32 s43, s41, 7"); a("s_add_u32 s17, s42, s43")
        a("s_lshr_b32 s42, s40, 1"); a("s_lshl_b32 s42, s42, 2"); a("s_lshr_b32 s43, s41, 3"); a("s_add_u32 s18, s42, s43")
    elif mode == '4x8':
        a("s_and_b32 s42, s40, 3"); a("s_lshl_b32 s42, s42, 2"); a("s_and_b32 s43, s41, 3"); a("s_add_u32 s17, s42, s43")
        a("s_lshr_b32 s42, s40, 2"); a("s_lshl_b32 s42, s42, 3"); a("s_lshr_b32 s43, s41, 2"); a("s_add_u32 s18, s42, s43")
    elif mode == '2x16':
        a("s_lshl_b32 s42, s40, 1"); a("s_and_b32 s43, s41, 1"); a("s_add_u32 s17, s42, s43")
        a("s_lshr_b32 s18, s41, 1")

def exp4(a, P, E, T):
    MX = [T + 0, T + 2, T + 4, T + 6]; MN = [T + 8, T + 10, T + 12, T + 14]
    for i in range(4):
        p = P + 8 * i
        a("v_max3_f32 v%d, v%d, v%d, v%d" % (MX[i], p, p + 1, p + 2)); a("v_min3_f32 v%d, v%d, v%d, v%d" % (MN[i], p, p + 1, p + 2))
    for i in range(4):
        p = P + 8 * i
        a("v_max3_f32 v%d, v%d, v%d, v%d" % (MX[i], MX[i], p + 3, p + 4)); a("v_min3_f32 v%d, v%d, v%d, v%d" % (MN[i], MN[i], p + 3, p + 4))
    for i in range(4):
        p = P + 8 * i
        a("v_max3_f32 v%d, v%d, v%d, v%d" % (MX[i], MX[i], p + 5, p + 6)); a("v_min3_f32 v%d, v%d, v%d, v%d" % (MN[i], MN[i], p + 5, p + 6))
    for i in range(4):
        p = P + 8 * i
        a("v_max_f32 v%d, v%d, v%d" % (MX[i], MX[i], p + 7)); a("v_min_f32 v%d, v%d, v%d" % (MN[i], MN[i], p + 7))
    interleave(a, lambda b: allreduce4(b, "v_max_f32", MX, None), lambda b: allreduce4(b, "v_min_f32", MN, None))
    for i in range(4):
        a("v_mul_f32 v%d, s46, v%d" % (MX[i], MX[i])); a("v_mul_f32 v%d, s46, v%d" % (MN[i], MN[i]))
    for i in range(4):
        for h in range(4):
            p = P + 8 * i + 2 * h; e = E + 8 * i + 2 * h
            a(pk("v_pk_fma_f32", e, p, "s[46:47]", MX[i], mods="op_sel_hi:[1,1,0] neg_lo:[0,0,1] neg_hi:[0,0,1]"))
            a(pk("v_pk_fma_f32", p, p, "s[46:47]", MN[i], mods="op_sel_hi:[1,1,0] neg_lo:[1,0,0] neg_hi:[1,0,0]"))
    for i in range(4):
        for q in range(8):
            a("v_exp_f32 v%d, v%d" % (E + 8 * i + q, E + 8 * i + q)); a("v_exp_f32 v%d, v%d" % (P + 8 * i + q, P + 8 * i + q))

def norm4(a, P, E, T):
    MX = [T + 0, T + 2, T + 4, T + 6]; MN = [T + 8, T + 10, T + 12, T + 14]
    for i in range(4):
        e = E + 8 * i; p = P + 8 * i
        a(pk("v_pk_add_f32", MX[i], e, e + 2)); a(pk("v_pk_add_f32", MN[i], p, p + 2))
    for i in range(4):
        e = E + 8 * i; p = P + 8 * i
        a(pk("v_pk_add_f32", MX[i], MX[i], e + 4)); a(pk("v_pk_add_f32", MN[i], MN[i], p + 4))
    for i in range(4):
        e = E + 8 * i; p = P + 8 * i
        a(pk("v_pk_add_f32", MX[i], MX[i], e + 6)); a(pk("v_pk_add_f32", MN[i], MN[i], p + 6))
    for i in range(4):
        a("v_add_f32 v%d, v%d, v%d" % (MX[i], MX[i], MX[i] + 1)); a("v_add_f32 v%d, v%d, v%d" % (MN[i], MN[i], MN[i] + 1))
    interleave(a, lambda b: allreduce4(b, "v_add_f32", MX, None), lambda b: allreduce4(b, "v_add_f32", MN, None))
    for i in range(4):
        a("v_rcp_f32 v%d, v%d" % (MX[i], MX[i])); a("v_rcp_f32 v%d, v%d" % (MN[i], MN[i]))
    for i in range(4):
        for h in range(4):
            p = P + 8 * i + 2 * h; e = E + 8 * i + 2 * h
            a(pk("v_pk_mul_f32", e, e, MX[i], mods="op_sel_hi:[1,0]")); a(pk("v_pk_mul_f32", p, p, MN[i], mods="op_sel_hi:[1,0]"))

def interleave(a, f, g):
    x = Asm(); y = Asm(); f(x); g(y)
    for i in range(max(len(x.lines), len(y.lines))):
        if i < len(x.lines): a.lines.append(x.lines[i])
        if i < len(y.lines): a.lines.append(y.lines[i])

def wphi_loads(a, WP, s_head, vtmp):
    a("s_lshl_b32 s41, s%d, 11" % s_head)
    a("v_lshrrev_b32 v%d, 4, v1" % vtmp); a("v_lshlrev_b32 v%d, 8, v%d" % (vtmp, vtmp))
    a("v_and_b32 v%d, 15, v1" % (vtmp + 1)); a("v_lshl_add_u32 v%d, v%d, 1, v%d" % (vtmp, vtmp + 1, vtmp)); a("v_add_u32 v%d, s41, v%d" % (vtmp, vtmp))
    for u in range(2):
        for j in range(8):
            d_off = (16 * (j >> 2) + (j & 3)) * 64 + u * 32
            a("buffer_load_ushort v%d, v%d, s[12:15], 0 offen offset:%d" % (WP + u * 8 + j, vtmp, d_off))
def wphi_pack(a, WP):
    for u in range(2):
        for p in range(4):
            a("v_lshl_or_b32 v%d, v%d, 16, v%d" % (WP + u * 4 + p, WP + u * 8 + 2 * p + 1, WP + u * 8 + 2 * p))

def gen_k1(a):
    name = "k1_kernel"; L = "K1"
    c = Cfg(MT=4, NT=6, K=1024, NS=3, nblk=3, ldb=6144, acc0=112, swap_tiles={4, 5})
    XCH = c.lds
    lds_total = c.lds + 32768
    kernel_header(a, name)
    a("s_cmp_ge_u32 s2, 256"); a("s_cbranch_scc1 K1_end")
    stamp(a, 0)
    ld_ptr(a, 34, 'ws'); ld_ptr(a, 32, 'wqkv'); ld_ptr(a, 36, 'wphi'); ld_ptr(a, 60, 'wo'); ld_ptr(a, 62, 'w2'); ld_ptr(a, 64, 'w1')
    wave_lane(a)
    tile_map(a, '8x4')
    a("s_lshl_b32 s44, s17, 3")
    for b in range(3):
        a("s_lshl_b32 s%d, s18, 7" % (45 + b)); a("s_add_u32 s%d, s%d, %d" % (45 + b, 45 + b, b * 2048))
    a("s_waitcnt lgkmcnt(0)")
    make_srd(a, S_SRDA, 34, 4 * MB, off=WS_XN)
    make_srd(a, S_SRDB, 32, 1024 * 3072 * 2)
    a("s_cmp_ge_u32 s%d, 4" % S_WAVE); a("s_cbranch_scc1 K1_loader")
    vA = 2; vB = [3, 4]
    compute_setup(a, c, vA, vB, tmp=9)
    a("s_lshl_b32 s25, s39, 6"); a("v_xor_b32 v3, s25, v3"); a("v_xor_b32 v4, 32, v3")
    tm = [(vB[j & 1], c.blk_off[j >> 1]) for j in range(6)]
    if OPT.get('touch_k1', OPT.get('touch', 0)):
        nA, nB = map_share(OPT.get('k1map', '8x4'))
        touch_setup(a, c, nA, nB, 66, 67, 44, 45, 2048, 252, 253, 12, 68, 69, 254, OPT.get('touch_k1', OPT.get('touch', 0)))
    make_srd(a, 12, 36, 32 * 32 * 32 * 2)
    a("s_lshl_b32 s45, s18, 1"); a("s_add_u32 s45, s45, s39")
    WP = 96
    wphi_loads(a, WP, 45, 9)
    def after_b0(a):
        stamp(a, 1)
        a("s_lshl_b32 s40, s2, 2"); a("s_add_u32 s40, s40, s%d" % S_WAVE); a("s_lshl_b32 s40, s40, 13")
        a("v_lshlrev_b32 v9, 7, v1")
        if not OPT.get('k1pf'): return
        make_srd(a, 48, 62, 3584 * 1024 * 2); touch(a, 10, 9, 48, "s40")
        make_srd(a, 52, 64, 1024 * 3584 * 2); touch(a, 11, 9, 52, "s40")
        make_srd(a, 56, 60, 1024 * 1024 * 2); touch(a, 12, 9, 56, "s40")
    c.after_b0 = after_b0
    compute_loop(a, c, L, tm, vA)
    stamp(a, 2)
    def acc(i, j): return c.acc0 + (i * 6 + j) * 4
    F = 16
    for i in range(4):
        for jj in range(2):
            b = acc(i, 2 + jj)
            a("v_cvt_pk_bf16_f32 v%d, v%d, v%d" % (F + i * 4 + jj * 2, b, b + 1)); a("v_cvt_pk_bf16_f32 v%d, v%d, v%d" % (F + i * 4 + jj * 2 + 1, b + 2, b + 3))
    for ms in range(2):
        for dt in range(2):
            r = 32 + (ms * 2 + dt) * 4
            for h in range(2):
                b = acc(2 * ms + h, 4 + dt)
                a("v_cvt_pk_bf16_f32 v%d, v%d, v%d" % (r + 2 * h, b, b + 1)); a("v_cvt_pk_bf16_f32 v%d, v%d, v%d" % (r + 2 * h + 1, b + 2, b + 3))
    a("v_lshlrev_b32 v9, 4, v1"); a("s_lshl_b32 s41, s%d, 13" % S_WAVE); a("s_add_u32 s41, s41, %d" % XCH); a("v_add_u32 v9, s41, v9")
    for t in range(8): a("ds_write_b128 v9, v[%d:%d] offset:%d" % (F + t * 4, F + t * 4 + 3, t * 1024))
    for i in range(4):
        for jj in range(2):
            b = acc(i, jj)
            a("v_cvt_pk_bf16_f32 v%d, v%d, v%d" % (48 + i * 4 + jj * 2, b, b + 1)); a("v_cvt_pk_bf16_f32 v%d, v%d, v%d" % (48 + i * 4 + jj * 2 + 1, b + 2, b + 3))
    a("s_waitcnt lgkmcnt(0)"); a("s_barrier")
    if OPT.get('k1fine'): stamp(a, 3)
    a("s_waitcnt vmcnt(0)")
    wphi_pack(a, WP)
    a("s_mov_b32 s46, 0x%x" % LOG2E); a("s_mov_b32 s47, 0x%x" % LOG2E)
    make_srd(a, 48, 34, 8 * MB, off=WS_PHIQ)
    Pq = 112; Eq = 144; Tq = 176
    for i in range(4):
        for u in range(2):
            a("%s v[%d:%d], v[%d:%d], v[%d:%d], 0" % (MF, Pq + i * 8 + u * 4, Pq + i * 8 + u * 4 + 3, WP + u * 4, WP + u * 4 + 3, 48 + i * 4, 48 + i * 4 + 3))
    a("s_lshl_b32 s41, s45, 7"); a("s_add_u32 s41, s41, s44"); a("s_lshl_b32 s42, s38, 2"); a("s_add_u32 s41, s41, s42"); a("s_lshl_b32 s41, s41, 11")
    a("v_lshlrev_b32 v14, 4, v1"); a("v_add_u32 v14, s41, v14")
    exp4(a, Pq, Eq, Tq)
    if OPT.get('k1fine'): stamp(a, 4)
    for i in range(4):
        r = 16 + i * 8
        for q in range(4):
            a("v_cvt_pk_bf16_f32 v%d, v%d, v%d" % (r + q, Eq + 8 * i + 2 * q, Eq + 8 * i + 2 * q + 1))
            a("v_cvt_pk_bf16_f32 v%d, v%d, v%d" % (r + 4 + q, Pq + 8 * i + 2 * q, Pq + 8 * i + 2 * q + 1))
        a("buffer_store_dwordx4 v[%d:%d], v14, s[48:51], 0 offen offset:%d %s" % (r, r + 3, (i & 1) * 2048, st_flags('phiq')))
        a("buffer_store_dwordx4 v[%d:%d], v14, s[48:51], 0 offen offset:%d %s" % (r + 4, r + 7, (i & 1) * 2048 + 1024, st_flags('phiq')))
        if i == 1: a("v_add_u32 v14, 4096, v14")
    a("s_barrier")
    if OPT.get('k1fine'): stamp(a, 5)
    stamp_flush(a, 1, 6 if OPT.get('k1fine') else 3)
    a("s_branch K1_end")
    a.label("K1_loader")
    Ld = loader_setup(a, c, 44, ["s45", "s46", "s47"])
    a("s_sub_u32 s49, s%d, 4" % S_WAVE)
    WP = 96
    a("s_lshr_b32 s38, s49, 1"); a("s_and_b32 s39, s49, 1")
    make_srd(a, 12, 36, 32 * 32 * 32 * 2)
    a("s_lshl_b32 s48, s18, 1"); a("s_add_u32 s48, s48, s39")
    def tail2(a):
        wphi_loads(a, WP, 48, 30)
    loader_loop(a, c, Ld, L, tail_loads=tail2, n_tail=16)
    a("s_mov_b32 s46, 0x%x" % LOG2E); a("s_mov_b32 s47, 0x%x" % LOG2E)
    make_srd(a, 52, 34, 8 * MB, off=WS_KVP)
    a("s_waitcnt vmcnt(0)")
    wphi_pack(a, WP)
    a("s_barrier")
    a("v_lshlrev_b32 v9, 4, v1"); a("s_lshl_b32 s41, s49, 13"); a("s_add_u32 s41, s41, %d" % XCH); a("v_add_u32 v9, s41, v9")
    for t in range(4): a("ds_read_b128 v[%d:%d], v9 offset:%d" % (16 + t * 4, 19 + t * 4, t * 1024))
    a("s_waitcnt lgkmcnt(0)")
    Pk = 112; Ek = 144; Tk = 176
    for i in range(4):
        for u in range(2):
            a("%s v[%d:%d], v[%d:%d], v[%d:%d], 0" % (MF, Pk + i * 8 + u * 4, Pk + i * 8 + u * 4 + 3, WP + u * 4, WP + u * 4 + 3, 16 + i * 4, 16 + i * 4 + 3))
    a("v_and_b32 v9, 15, v1"); a("v_lshlrev_b32 v10, 7, v9")
    a("v_bfe_u32 v11, v1, 1, 2"); a("v_lshlrev_b32 v11, 1, v11")
    a("v_lshrrev_b32 v12, 5, v1"); a("v_xor_b32 v11, v11, v12"); a("v_lshl_add_u32 v10, v11, 4, v10")
    a("v_bfe_u32 v11, v1, 4, 1"); a("v_lshl_add_u32 v10, v11, 3, v10")
    a("s_lshl_b32 s41, s39, 14"); a("s_lshl_b32 s42, s38, 13"); a("s_add_u32 s41, s41, s42"); a("v_add_u32 v10, s41, v10")
    for k in range(1, 4): a("v_xor_b32 v%d, %d, v10" % (10 + k, k * 32))
    exp4(a, Pk, Ek, Tk)
    norm4(a, Pk, Ek, Tk)
    for i in range(4):
        r = 16 + i * 8
        for q in range(4):
            a("v_cvt_pk_bf16_f32 v%d, v%d, v%d" % (r + q, Ek + 8 * i + 2 * q, Ek + 8 * i + 2 * q + 1))
            a("v_cvt_pk_bf16_f32 v%d, v%d, v%d" % (r + 4 + q, Pk + 8 * i + 2 * q, Pk + 8 * i + 2 * q + 1))
        a("ds_write_b64 v10, v[%d:%d] offset:%d" % (r, r + 1, i * 2048)); a("ds_write_b64 v11, v[%d:%d] offset:%d" % (r + 2, r + 3, i * 2048))
        a("ds_write_b64 v12, v[%d:%d] offset:%d" % (r + 4, r + 5, i * 2048)); a("ds_write_b64 v13, v[%d:%d] offset:%d" % (r + 6, r + 7, i * 2048))
    tr_pattern(a, 3, 14)
    a("s_lshl_b32 s41, s39, 14"); a("v_add_u32 v3, s41, v3")
    a("s_lshl_b32 s41, s38, 6"); a("v_xor_b32 v3, s41, v3"); a("v_xor_b32 v4, 32, v3")
    a("v_lshlrev_b32 v9, 4, v1"); a("s_lshl_b32 s41, s39, 13"); a("s_add_u32 s41, s41, %d" % (XCH + 4096)); a("v_add_u32 v9, s41, v9")
    for wmp in range(2):
        for t in range(4): a("ds_read_b128 v[%d:%d], v9 offset:%d" % (48 + (wmp * 4 + t) * 4, 51 + (wmp * 4 + t) * 4, wmp * 16384 + t * 1024))
    for q in range(4): a("v_mov_b32 v%d, 0x3f803f80" % (88 + q))
    a("s_waitcnt lgkmcnt(0)"); a("s_barrier")
    for ms in range(4):
        for ftl in range(2):
            r = 16 + (ms * 2 + ftl) * 4
            a("ds_read_b64_tr_b16 v[%d:%d], v%d offset:%d" % (r, r + 1, 3 + ftl, ms * 4096))
            a("ds_read_b64_tr_b16 v[%d:%d], v%d offset:%d" % (r + 2, r + 3, 3 + ftl, ms * 4096 + 2048))
    KV = 112
    for ms in range(4):
        a("s_waitcnt lgkmcnt(%d)" % (12 - 4 * ms))
        for ftl in range(2):
            for dt in range(3):
                d = KV + (ftl * 3 + dt) * 4
                B = (48 + (ms * 2 + dt) * 4) if dt < 2 else 88
                A = 16 + (ms * 2 + ftl) * 4
                cin = "0" if ms == 0 else "v[%d:%d]" % (d, d + 3)
                a("%s v[%d:%d], v[%d:%d], v[%d:%d], %s" % (MF, d, d + 3, A, A + 3, B, B + 3, cin))
    a("s_lshl_b32 s41, s48, 4"); a("s_add_u32 s41, s41, s17"); a("s_mul_i32 s41, s41, %d" % KVP_STRIDE)
    a("s_lshl_b32 s42, s38, 11"); a("s_add_u32 s42, s42, s41")
    a("v_lshlrev_b32 v9, 4, v1"); a("v_add_u32 v9, s42, v9")
    for ftl in range(2):
        for dt in range(3):
            d = KV + (ftl * 3 + dt) * 4
            o = 16 + ftl * 8 + dt * 2
            a("v_cvt_pk_bf16_f32 v%d, v%d, v%d" % (o, d, d + 1)); a("v_cvt_pk_bf16_f32 v%d, v%d, v%d" % (o + 1, d + 2, d + 3))
        a("buffer_store_dwordx4 v[%d:%d], v9, s[52:55], 0 offen offset:%d %s" % (16 + ftl * 8, 19 + ftl * 8, ftl * 1024, st_flags('kvp')))
    a("v_lshrrev_b32 v9, 4, v1"); a("v_lshlrev_b32 v9, 3, v9"); a("s_lshl_b32 s42, s38, 6"); a("s_add_u32 s41, s41, s42"); a("s_add_u32 s41, s41, 4096"); a("v_add_u32 v9, s41, v9")
    a("v_and_b32 v10, 15, v1"); a("v_cmp_eq_u32 vcc, 0, v10"); a("s_and_saveexec_b64 s[40:41], vcc")
    for ftl in range(2):
        a("buffer_store_dwordx2 v[%d:%d], v9, s[52:55], 0 offen offset:%d %s" % (20 + ftl * 8, 21 + ftl * 8, ftl * 32, st_flags('kvp')))
    a("s_mov_b64 exec, s[40:41]")
    if STAMP['on']:
        stamp(a, 0); stamp(a, 1); stamp(a, 2); stamp_flush(a, 6, 3, wave=4)
    a.label("K1_end")
    a("s_endpgm")
    return name, dict(grid=256, block=512, lds=lds_total, vgprs=256)

def gen_k1b(a):
    name = "k1b_kernel"
    kernel_header(a, name)
    a("s_cmp_ge_u32 s2, 368"); a("s_cbranch_scc1 K1B_end")
    stamp(a, 0)
    ld_ptr(a, 34, 'ws'); ld_ptr(a, 36, 'w2'); ld_ptr(a, 38, 'w1')
    wave_lane(a)
    a("s_cmp_ge_u32 s2, 256"); a("s_cbranch_scc1 K1B_cs")
    a("s_and_b32 s17, s2, 31"); a("s_lshr_b32 s18, s2, 5")
    a("v_lshlrev_b32 v2, 4, v1")
    a("s_mul_i32 s20, s17, %d" % (16 * KVP_STRIDE))
    a("s_lshl_b32 s21, s%d, 10" % S_WAVE); a("s_add_u32 s21, s21, s20"); a("v_add_u32 v3, s21, v2")
    a("v_lshrrev_b32 v4, 2, v1"); a("s_mov_b32 s21, %d" % KVP_STRIDE); a("v_mul_lo_u32 v4, v4, s21"); a("v_and_b32 v6, 3, v1"); a("v_lshl_add_u32 v4, v6, 3, v4")
    a("s_lshl_b32 s21, s%d, 5" % S_WAVE); a("s_add_u32 s21, s21, s20"); a("s_add_u32 s21, s21, 4096"); a("v_add_u32 v4, s21, v4")
    a("s_lshl_b32 s22, s17, 7"); a("s_lshl_b32 s23, s18, 4"); a("s_add_u32 s22, s22, s23"); a("s_lshl_b32 s23, s%d, 2" % S_WAVE); a("s_add_u32 s22, s22, s23")
    a("s_lshl_b32 s22, s22, 11"); a("v_add_u32 v5, s22, v2")
    a("s_lshl_b32 s25, s2, 2"); a("s_add_u32 s25, s25, s%d" % S_WAVE); a("s_lshl_b32 s25, s25, 13")
    a("v_lshlrev_b32 v8, 7, v1")
    a("s_waitcnt lgkmcnt(0)")
    make_srd(a, 4, 34, 8 * MB, off=WS_KVP)
    make_srd(a, 8, 34, 8 * MB, off=WS_PHIQ)
    make_srd(a, 12, 34, 4 * MB, off=WS_O)
    make_srd(a, 40, 36, 3584 * 1024 * 2)
    a("buffer_load_dwordx2 v[10:11], v4, s[4:7], 0 offen")
    a("s_mov_b32 s24, 0")
    for p in range(16):
        a("buffer_load_dwordx4 v[%d:%d], v3, s[4:7], s24 offen" % (32 + p * 4, 35 + p * 4))
        if p < 15: a("s_add_u32 s24, s24, %d" % KVP_STRIDE)
    for i in range(4):
        for fs in range(2):
            a("buffer_load_dwordx4 v[%d:%d], v5, s[8:11], 0 offen offset:%d" % (96 + (i * 2 + fs) * 4, 99 + (i * 2 + fs) * 4, (i & 1) * 2048 + fs * 1024))
        if i == 1: a("v_add_u32 v5, 4096, v5")
    touch(a, 9, 8, 40, "s25")
    a("s_waitcnt vmcnt(25)")
    a("v_lshlrev_b32 v12, 16, v10"); a("v_and_b32 v13, 0xffff0000, v10"); a("v_lshlrev_b32 v14, 16, v11"); a("v_and_b32 v15, 0xffff0000, v11")
    for sh in (4, 8):
        for q in range(4): a("v_add_f32_dpp v%d, v%d, v%d row_ror:%d row_mask:0xf bank_mask:0xf" % (12 + q, 12 + q, 12 + q, sh))
    allreduce4(a, "v_add_f32", [12, 13, 14, 15], None)
    a("v_cvt_pk_bf16_f32 v10, v12, v13"); a("v_cvt_pk_bf16_f32 v11, v14, v15")
    a("v_and_b32 v6, 3, v1"); a("v_lshlrev_b32 v6, 3, v6"); a("s_lshl_b32 s21, s%d, 5" % S_WAVE); a("s_add_u32 s21, s21, 4096"); a("v_add_u32 v6, s21, v6")
    a("ds_write_b64 v6, v[10:11]")
    for p in range(16):
        if p % 4 == 0: a("s_waitcnt vmcnt(%d)" % (9 + 12 - p))
        r = 32 + p * 4
        for dw in range(4):
            t = 24 + 2 * (dw & 1)
            a("v_lshlrev_b32 v%d, 16, v%d" % (t, r + dw)); a("v_and_b32 v%d, 0xffff0000, v%d" % (t + 1, r + dw))
            if p == 0: a("v_mov_b32 v%d, v%d" % (16 + 2 * dw, t)); a("v_mov_b32 v%d, v%d" % (17 + 2 * dw, t + 1))
            else: a(pk("v_pk_add_f32", 16 + 2 * dw, 16 + 2 * dw, t))
    a("v_lshlrev_b32 v6, 3, v1"); a("s_lshl_b32 s21, s%d, 9" % S_WAVE); a("v_add_u32 v7, s21, v6")
    for dt in range(2):
        a("v_cvt_pk_bf16_f32 v28, v%d, v%d" % (16 + dt * 4, 17 + dt * 4)); a("v_cvt_pk_bf16_f32 v29, v%d, v%d" % (18 + dt * 4, 19 + dt * 4))
        a("ds_write_b64 v7, v[28:29] offset:%d" % (dt * 2048))
    a("s_waitcnt lgkmcnt(0)"); a("s_barrier")
    for dt in range(2):
        for fs in range(2):
            r = 32 + (dt * 2 + fs) * 4
            a("ds_read_b64 v[%d:%d], v6 offset:%d" % (r, r + 1, dt * 2048 + (2 * fs) * 512))
            a("ds_read_b64 v[%d:%d], v6 offset:%d" % (r + 2, r + 3, dt * 2048 + (2 * fs + 1) * 512))
    a("v_lshrrev_b32 v7, 4, v1"); a("v_lshlrev_b32 v7, 3, v7")
    for fs in range(2):
        a("ds_read_b64 v[%d:%d], v7 offset:%d" % (48 + fs * 4, 49 + fs * 4, 4096 + (2 * fs) * 32))
        a("ds_read_b64 v[%d:%d], v7 offset:%d" % (50 + fs * 4, 51 + fs * 4, 4096 + (2 * fs + 1) * 32))
    for q in range(4): a("v_mov_b32 v%d, 0x3f803f80" % (56 + q))
    a("s_waitcnt vmcnt(1) lgkmcnt(0)")
    for i in range(4):
        R = 128 + i * 32
        for fs in range(2):
            B = 96 + (i * 2 + fs) * 4
            for dt in range(2):
                d = R + (fs * 2 + dt) * 4; A = 32 + (dt * 2 + fs) * 4
                a("%s v[%d:%d], v[%d:%d], v[%d:%d], 0" % (MF, d, d + 3, A, A + 3, B, B + 3))
            a("%s v[%d:%d], v[%d:%d], v[%d:%d], 0" % (MF, R + 16 + fs * 4, R + 19 + fs * 4, 48 + fs * 4, 51 + fs * 4, B, B + 3))
            a("%s v[%d:%d], v[56:59], v[%d:%d], 0" % (MF, R + 24 + fs * 4, R + 27 + fs * 4, B, B + 3))
    a("s_lshl_b32 s22, s18, 4"); a("s_lshl_b32 s23, s%d, 2" % S_WAVE); a("s_add_u32 s22, s22, s23"); a("s_lshl_b32 s22, s22, 5"); a("s_add_u32 s22, s22, s17"); a("s_lshl_b32 s22, s22, 10")
    a("v_add_u32 v5, s22, v2")
    a("s_mov_b32 s24, 0")
    for i in range(4):
        R = 128 + i * 32
        a("v_rcp_f32 v%d, v%d" % (R + 24, R + 24)); a("v_rcp_f32 v%d, v%d" % (R + 28, R + 28))
    for i in range(4):
        R = 128 + i * 32
        a("v_mul_f32 v%d, v%d, v%d" % (R + 16, R + 16, R + 24)); a("v_fma_f32 v%d, v%d, v%d, v%d" % (R + 16, R + 20, R + 28, R + 16))
        a("v_add_f32 v%d, 0x358637bd, v%d" % (R + 16, R + 16))
    for i in range(4):
        R = 128 + i * 32
        a("v_rcp_f32 v%d, v%d" % (R + 16, R + 16))
    for i in range(4):
        R = 128 + i * 32
        a("v_mul_f32 v%d, v%d, v%d" % (R + 24, R + 24, R + 16)); a("v_mul_f32 v%d, v%d, v%d" % (R + 28, R + 28, R + 16))
    for i in range(4):
        R = 128 + i * 32
        for h in range(4): a(pk("v_pk_mul_f32", R + 2 * h, R + 2 * h, R + 24, mods="op_sel_hi:[1,0]"))
        for h in range(4): a(pk("v_pk_fma_f32", R + 2 * h, R + 8 + 2 * h, R + 28, R + 2 * h, mods="op_sel_hi:[1,0,1]"))
        for h in range(4): a("v_cvt_pk_bf16_f32 v%d, v%d, v%d" % (64 + i * 4 + h, R + 2 * h, R + 2 * h + 1))
        a("buffer_store_dwordx4 v[%d:%d], v5, s[12:15], s24 offen %s" % (64 + i * 4, 67 + i * 4, st_flags('o')))
        if i < 3: a("s_add_u32 s24, s24, %d" % (32 * 1024))
    stamp(a, 1); stamp(a, 2)
    stamp_flush(a, 2, 3)
    a("s_endpgm")
    a.label("K1B_cs")
    a("s_sub_u32 s20, s2, 256"); a("s_lshr_b32 s21, s20, 1"); a("s_and_b32 s22, s20, 1")
    a("s_lshl_b32 s23, s22, 9"); a("s_lshl_b32 s24, s%d, 7" % S_WAVE); a("s_add_u32 s23, s23, s24"); a("s_mul_i32 s23, s23, 7168")
    a("s_lshl_b32 s24, s21, 7"); a("s_add_u32 s23, s23, s24")
    a("v_lshrrev_b32 v2, 3, v1"); a("s_mov_b32 s25, 7168"); a("v_mul_lo_u32 v4, v2, s25"); a("v_and_b32 v3, 7, v1"); a("v_lshl_add_u32 v4, v3, 4, v4"); a("v_add_u32 v4, s23, v4")
    a("s_waitcnt lgkmcnt(0)")
    make_srd(a, 4, 38, 1024 * 3584 * 2)
    make_srd(a, 8, 34, 2 * 3584 * 4, off=WS_CS1)
    a("s_mov_b32 s23, 0")
    for i in range(16):
        a("buffer_load_dwordx4 v[%d:%d], v4, s[4:7], s23 offen" % (16 + 4 * i, 19 + 4 * i))
        if i < 15: a("s_add_u32 s23, s23, %d" % (8 * 7168))
    for q in range(8): a("v_mov_b32 v%d, 0" % (96 + q))
    for i in range(16):
        if i % 4 == 0: a("s_waitcnt vmcnt(%d)" % (12 - i))
        for dw in range(4):
            r = 16 + 4 * i + dw
            t = 8 + 2 * (dw & 1)
            a("v_lshlrev_b32 v%d, 16, v%d" % (t, r)); a("v_and_b32 v%d, 0xffff0000, v%d" % (t + 1, r))
            a(pk("v_pk_add_f32", 96 + 2 * dw, 96 + 2 * dw, t))
    for q in range(8): a("v_add_f32_dpp v%d, v%d, v%d row_ror:8 row_mask:0xf bank_mask:0xf" % (96 + q, 96 + q, 96 + q))
    allreduce4(a, "v_add_f32", [96, 97, 98, 99], None); allreduce4(a, "v_add_f32", [100, 101, 102, 103], None)
    a("v_lshlrev_b32 v8, 5, v3"); a("s_lshl_b32 s23, s%d, 8" % S_WAVE); a("v_add_u32 v8, s23, v8")
    a("ds_write_b128 v8, v[96:99]"); a("ds_write_b128 v8, v[100:103] offset:16")
    a("s_waitcnt lgkmcnt(0)"); a("s_barrier")
    a("s_cmp_lg_u32 s%d, 0" % S_WAVE); a("s_cbranch_scc1 K1B_end")
    a("v_lshlrev_b32 v8, 2, v1")
    for i in range(4): a("ds_read_b32 v%d, v8 offset:%d" % (16 + i, i * 256))
    a("s_waitcnt lgkmcnt(0)")
    a("v_add_f32 v16, v16, v17"); a("v_add_f32 v18, v18, v19"); a("v_add_f32 v16, v16, v18")
    a("s_mul_i32 s23, s22, %d" % (3584 * 4)); a("s_lshl_b32 s24, s21, 8"); a("s_add_u32 s23, s23, s24"); a("v_add_u32 v8, s23, v8")
    a("buffer_store_dword v16, v8, s[8:11], 0 offen %s" % st_flags('o'))
    stamp(a, 1); stamp(a, 2)
    stamp_flush(a, 2, 3)
    a.label("K1B_end")
    a("s_endpgm")
    return name, dict(grid=368, block=256, lds=8192, vgprs=256)

def gen_k2(a):
    name = "k2_kernel"; L = "K2"
    c = Cfg(MT=4, NT=2, K=1024, NS=OPT.get('k2ns', 6), nblk=1, ldb=2048, acc0=112)
    kernel_header(a, name)
    a("s_cmp_ge_u32 s2, 256"); a("s_cbranch_scc1 K2_end")
    stamp(a, 0)
    ld_ptr(a, 34, 'ws'); ld_ptr(a, 32, 'wo'); ld_ptr(a, 36, 'x')
    wave_lane(a)
    tile_map(a, OPT.get('k2map', '8x4'))
    a("s_lshl_b32 s44, s17, 3")
    a("s_lshl_b32 s45, s18, 7")
    a("s_waitcnt lgkmcnt(0)")
    make_srd(a, S_SRDA, 34, 4 * MB, off=WS_O)
    make_srd(a, S_SRDB, 32, 1024 * 1024 * 2)
    a("s_cmp_ge_u32 s%d, 4" % S_WAVE); a("s_cbranch_scc1 K2_loader")
    vA = 2; vB = [3, 4]
    compute_setup(a, c, vA, vB, tmp=9)
    a("s_lshl_b32 s25, s39, 6"); a("v_xor_b32 v3, s25, v3"); a("v_xor_b32 v4, 32, v3")
    tm = [(vB[j], c.blk_off[0]) for j in range(2)]
    if OPT.get('touch_k2', OPT.get('touch', 0)):
        nA, nB = map_share(OPT.get('k2map', '8x4'))
        touch_setup(a, c, nA, nB, 66, 67, 44, 45, 128, 252, 253, 12, 68, 69, 254, OPT.get('touch_k2', OPT.get('touch', 0)))
    make_srd(a, 12, 36, 2048 * 1024 * 2)
    a("s_lshl_b32 s40, s17, 7"); a("s_lshl_b32 s41, s38, 6"); a("s_add_u32 s40, s40, s41")
    a("v_and_b32 v9, 15, v1"); a("v_add_u32 v13, s40, v9"); a("v_lshlrev_b32 v9, 11, v13")
    a("s_lshl_b32 s41, s18, 7"); a("s_lshl_b32 s42, s39, 6"); a("s_add_u32 s41, s41, s42")
    a("v_lshrrev_b32 v10, 4, v1"); a("v_lshl_add_u32 v9, v10, 3, v9"); a("v_add_u32 v9, s41, v9")
    def after_b0(a):
        stamp(a, 1)
        for i in range(4):
            a("s_mov_b32 s42, %d" % (i * 16 * 2048))
            for j in range(2):
                a("buffer_load_dwordx2 v[%d:%d], v9, s[12:15], s42 offen offset:%d" % (160 + (i * 2 + j) * 2, 161 + (i * 2 + j) * 2, j * 32))
    c.after_b0 = after_b0
    make_srd(a, 48, 34, 4 * MB, off=WS_H)
    make_srd(a, 52, 34, 1 * MB, off=WS_STATS)
    a("s_lshl_b32 s40, s38, 2"); a("s_add_u32 s40, s40, s44"); a("s_lshl_b32 s40, s40, 5"); a("s_lshl_b32 s41, s18, 1"); a("s_add_u32 s41, s41, s39"); a("s_add_u32 s40, s40, s41")
    a("s_lshl_b32 s40, s40, 10")
    a("v_lshlrev_b32 v14, 4, v1"); a("v_add_u32 v14, s40, v14")
    a("v_lshlrev_b32 v13, 8, v13"); a("s_lshl_b32 s41, s41, 3"); a("v_add_u32 v13, s41, v13")
    (compute_loop_full if OPT.get('full', 1) else compute_loop)(a, c, L, tm, vA)
    stamp(a, 2)
    a("s_waitcnt vmcnt(0)")
    def acc(i, j): return c.acc0 + (i * 2 + j) * 4
    for i in range(4):
        for j in range(2):
            xr = 160 + (i * 2 + j) * 2
            for h in range(2):
                a("v_lshlrev_b32 v%d, 16, v%d" % (16 + i * 8 + j * 4 + 2 * h, xr + h)); a("v_and_b32 v%d, 0xffff0000, v%d" % (17 + i * 8 + j * 4 + 2 * h, xr + h))
    for i in range(4):
        for q in range(4): a(pk("v_pk_add_f32", c.acc0 + i * 8 + 2 * q, c.acc0 + i * 8 + 2 * q, 16 + i * 8 + 2 * q))
    a("s_mov_b32 s42, 0")
    for i in range(4):
        for q in range(4): a("v_cvt_pk_bf16_f32 v%d, v%d, v%d" % (48 + i * 4 + q, c.acc0 + i * 8 + 2 * q, c.acc0 + i * 8 + 2 * q + 1))
        a("buffer_store_dwordx4 v[%d:%d], v14, s[48:51], s42 offen %s" % (48 + i * 4, 51 + i * 4, st_flags('h')))
        if i < 3: a("s_add_u32 s42, s42, %d" % (32 * 1024))
    S = [16, 18, 20, 22]; M = [24, 26, 28, 30]
    for i in range(4):
        b = c.acc0 + i * 8
        a(pk("v_pk_add_f32", S[i], b, b + 2)); a(pk("v_pk_add_f32", M[i], b + 4, b + 6))
    for i in range(4): a(pk("v_pk_add_f32", S[i], S[i], M[i]))
    for i in range(4): a("v_add_f32 v%d, v%d, v%d" % (S[i], S[i], S[i] + 1))
    allreduce4(a, "v_add_f32", S, None)
    for i in range(4): a("v_mul_f32 v%d, 0x3d000000, v%d" % (S[i], S[i]))
    for i in range(4):
        b = c.acc0 + i * 8
        for q in range(4): a(pk("v_pk_add_f32", b + 2 * q, b + 2 * q, S[i], mods="op_sel_hi:[1,0] neg_lo:[0,1] neg_hi:[0,1]"))
    for i in range(4):
        b = c.acc0 + i * 8
        a(pk("v_pk_mul_f32", M[i], b, b))
        for q in range(1, 4): a(pk("v_pk_fma_f32", M[i], b + 2 * q, b + 2 * q, M[i]))
    for i in range(4): a("v_add_f32 v%d, v%d, v%d" % (M[i], M[i], M[i] + 1))
    allreduce4(a, "v_add_f32", M, None)
    for i in range(4): a("v_mov_b32 v%d, v%d" % (S[i] + 1, M[i]))
    a("v_cmp_gt_u32 vcc, 16, v1"); a("s_and_saveexec_b64 s[56:57], vcc")
    a("s_mov_b32 s42, 0")
    for i in range(4):
        a("buffer_store_dwordx2 v[%d:%d], v13, s[52:55], s42 offen %s" % (S[i], S[i] + 1, st_flags('h')))
        if i < 3: a("s_add_u32 s42, s42, %d" % (16 * 256))
    a("s_mov_b64 exec, s[56:57]")
    stamp_flush(a, 3, 3)
    a("s_branch K2_end")
    a.label("K2_loader")
    Ld = loader_setup(a, c, 44, ["s45"])
    loader_loop(a, c, Ld, L)
    a.label("K2_end")
    a("s_endpgm")
    return name, dict(grid=256, block=512, lds=c.lds, vgprs=256)

def gen_k3(a):
    name = "k3_kernel"; L = "K3"
    c = Cfg(MT=4, NT=7, K=1024, NS=3, nblk=4, ldb=7168, acc0=112)
    STL = c.lds
    kernel_header(a, name)
    a("s_cmp_ge_u32 s2, 256"); a("s_cbranch_scc1 K3_end")
    stamp(a, 0)
    ld_ptr(a, 34, 'ws'); ld_ptr(a, 32, 'w1'); ld_ptr(a, 36, 'b1')
    wave_lane(a)
    tile_map(a, OPT.get('k3map', '8x4'))
    a("s_lshl_b32 s44, s17, 3")
    a("s_and_b32 s43, s18, 1")
    a("s_mul_i32 s45, s18, 448"); a("s_lshl_b32 s42, s43, 6"); a("s_sub_u32 s45, s45, s42")
    for b in range(1, 4): a("s_add_u32 s%d, s45, %d" % (45 + b, b * 128))
    a("s_waitcnt lgkmcnt(0)")
    make_srd(a, S_SRDA, 34, 4 * MB, off=WS_H)
    make_srd(a, S_SRDB, 32, 1024 * 3584 * 2)
    a("s_cmp_ge_u32 s%d, 4" % S_WAVE); a("s_cbranch_scc1 K3_loader")
    vA = 2; vB = [3, 4, 5, 6]
    compute_setup(a, c, vA, vB, tmp=9)
    if OPT.get('touch_k3', OPT.get('touch', 0)):
        nA, nB = map_share(OPT.get('k3map', '8x4'))
        touch_setup(a, c, nA, nB, 66, 67, 44, 45, 128, 252, 253, 12, 68, 69, 254, OPT.get('touch_k3', OPT.get('touch', 0)))
    a("s_mul_i32 s40, s39, 7"); a("s_lshl_b32 s41, s43, 1"); a("s_add_u32 s40, s40, s41")
    a("v_mov_b32 v9, v3")
    for j in range(4):
        a("s_add_u32 s41, s40, %d" % j); a("s_and_b32 s42, s41, 3"); a("s_lshl_b32 s42, s42, 5"); a("v_xor_b32 v%d, s42, v9" % (3 + j))
        a("s_lshr_b32 s42, s41, 2"); a("s_lshl_b32 s42, s42, 13"); a("v_add_u32 v%d, s42, v%d" % (3 + j, 3 + j))
    tm = [(vB[j & 3], c.blk_off[0] + (j >> 2) * 8192) for j in range(7)]
    make_srd(a, 48, 34, 2048 * 3584 * 2, off=WS_H1)
    make_srd(a, 52, 34, 2 * 3584 * 4, off=WS_CS1)
    make_srd(a, 56, 36, 3584 * 2)
    a("s_mul_i32 s40, s18, 224"); a("s_mul_i32 s41, s39, 112"); a("s_add_u32 s40, s40, s41")
    a("v_lshrrev_b32 v9, 4, v1"); a("v_lshlrev_b32 v9, 2, v9"); a("v_add_u32 v9, s40, v9")
    a("v_lshlrev_b32 v10, 2, v9"); a("v_lshlrev_b32 v11, 1, v9")
    def after_b0(a):
        stamp(a, 1)
        for j in range(7):
            a("buffer_load_dwordx4 v[%d:%d], v10, s[52:55], 0 offen offset:%d" % (224 + j * 4, 227 + j * 4, j * 64))
    c.after_b0 = after_b0
    a("s_lshl_b32 s40, s38, 2"); a("s_add_u32 s40, s40, s44"); a("s_mul_i32 s40, s40, 112")
    a("s_mul_i32 s41, s18, 7"); a("s_add_u32 s40, s40, s41")
    a("s_mul_i32 s41, s39, 3"); a("s_add_u32 s40, s40, s41")
    a("s_lshl_b32 s40, s40, 10")
    a("v_lshlrev_b32 v14, 4, v1"); a("v_add_u32 v14, s40, v14")
    compute_loop(a, c, L, tm, vA)
    stamp(a, 2)
    a("s_mov_b32 s42, %d" % (3584 * 4))
    for j in range(7):
        a("buffer_load_dwordx2 v[%d:%d], v11, s[56:59], 0 offen offset:%d" % (48 + j * 2, 49 + j * 2, j * 32))
        a("buffer_load_dwordx4 v[%d:%d], v10, s[52:55], s42 offen offset:%d" % (64 + j * 4, 67 + j * 4, j * 64))
    a("s_barrier")
    a("v_and_b32 v12, 15, v1"); a("v_lshlrev_b32 v12, 3, v12"); a("s_lshl_b32 s41, s38, 9"); a("s_add_u32 s41, s41, %d" % STL); a("v_add_u32 v12, s41, v12")
    for i in range(4): a("ds_read_b64 v[%d:%d], v12 offset:%d" % (16 + 2 * i, 17 + 2 * i, i * 128))
    a("s_waitcnt vmcnt(0) lgkmcnt(0)")
    for i in range(4): a("v_mov_b32 v%d, v%d" % (24 + 2 * i, 17 + 2 * i))
    for j in range(7):
        for h in range(2): a(pk("v_pk_add_f32", 224 + j * 4 + 2 * h, 224 + j * 4 + 2 * h, 64 + j * 4 + 2 * h))
    for j in range(7):
        for h in range(2):
            a("v_lshlrev_b32 v%d, 16, v%d" % (64 + j * 4 + 2 * h, 48 + j * 2 + h)); a("v_and_b32 v%d, 0xffff0000, v%d" % (65 + j * 4 + 2 * h, 48 + j * 2 + h))
    def acc(i, j): return c.acc0 + (i * 7 + j) * 4
    def tile_vals(i, j, dst, tmp):
        b = acc(i, j)
        for h in range(2):
            a(pk("v_pk_fma_f32", tmp + 2 * h, 224 + j * 4 + 2 * h, 24 + 2 * i, 64 + j * 4 + 2 * h, mods="op_sel_hi:[1,0,1] neg_lo:[0,1,0] neg_hi:[0,1,0]"))
        for h in range(2):
            a(pk("v_pk_fma_f32", b + 2 * h, b + 2 * h, 16 + 2 * i, tmp + 2 * h, mods="op_sel_hi:[1,0,1]"))
        for r in range(4): a("v_max_f32 v%d, 0, v%d" % (tmp + r, b + r))
        for h in range(2): a(pk("v_pk_mul_f32", b + 2 * h, b + 2 * h, tmp + 2 * h))
        a("v_cvt_pk_bf16_f32 v%d, v%d, v%d" % (dst, b, b + 1)); a("v_cvt_pk_bf16_f32 v%d, v%d, v%d" % (dst + 1, b + 2, b + 3))
    def pair(i, j0, dst):
        interleave(a, lambda x: tile_vals_on(x, i, j0, dst, 92), lambda x: tile_vals_on(x, i, j0 + 1, dst + 2, 96))
    def tile_vals_on(x, i, j, dst, tmp):
        nonlocal a
        sv = a; a = x
        tile_vals(i, j, dst, tmp)
        a = sv
    fl = st_flags('h1')
    a("s_mov_b32 s42, 0")
    a("s_cmp_eq_u32 s39, 0"); a("s_cbranch_scc0 K3_epi1")
    for i in range(4):
        for pr in range(3):
            d = 32 + ((i * 4 + pr) & 3) * 4
            pair(i, 2 * pr, d)
            a("buffer_store_dwordx4 v[%d:%d], v14, s[48:51], s42 offen offset:%d %s" % (d, d + 3, pr * 1024, fl))
        d = 32 + ((i * 4 + 3) & 3) * 4
        tile_vals(i, 6, d, 92)
        a("buffer_store_dwordx2 v[%d:%d], v14, s[48:51], s42 offen offset:3072 %s" % (d, d + 1, fl))
        if i < 3: a("s_add_u32 s42, s42, %d" % (112 * 1024))
    stamp_flush(a, 4, 3)
    a("s_branch K3_end")
    a.label("K3_epi1")
    for i in range(4):
        d = 32
        tile_vals(i, 0, d, 92)
        a("buffer_store_dwordx2 v[%d:%d], v14, s[48:51], s42 offen offset:8 %s" % (d, d + 1, fl))
        for pr in range(3):
            d = 32 + (pr + 1) * 4
            pair(i, 2 * pr + 1, d)
            a("buffer_store_dwordx4 v[%d:%d], v14, s[48:51], s42 offen offset:%d %s" % (d, d + 3, (pr + 1) * 1024, fl))
        if i < 3: a("s_add_u32 s42, s42, %d" % (112 * 1024))
    a("s_branch K3_end")
    a.label("K3_loader")
    Ld = loader_setup(a, c, 44, ["s45", "s46", "s47", "s48"])
    make_srd(a, 12, 34, 1 * MB, off=WS_STATS)
    a("s_sub_u32 s49, s%d, 4" % S_WAVE)
    a("s_lshl_b32 s40, s17, 7"); a("s_lshl_b32 s42, s49, 5"); a("s_add_u32 s40, s40, s42")
    a("v_and_b32 v30, 15, v1"); a("v_add_u32 v30, s40, v30"); a("v_lshlrev_b32 v30, 8, v30")
    a("v_lshrrev_b32 v31, 4, v1"); a("v_lshl_add_u32 v30, v31, 6, v30")
    def tail(a):
        for i in range(2):
            a("s_mov_b32 s42, %d" % (i * 16 * 256))
            for q in range(4):
                a("buffer_load_dwordx4 v[%d:%d], v30, s[12:15], s42 offen offset:%d" % (64 + i * 16 + q * 4, 67 + i * 16 + q * 4, q * 16))
    loader_loop(a, c, Ld, L, tail_loads=tail, n_tail=8)
    a("s_waitcnt vmcnt(0)")
    def xl2(r, t):
        a("v_mov_b32 v%d, v%d" % (t, r)); a("v_permlane32_swap_b32 v%d, v%d" % (r, t)); a("v_add_f32 v%d, v%d, v%d" % (r, r, t))
        a("v_mov_b32 v%d, v%d" % (t, r)); a("v_permlane16_swap_b32 v%d, v%d" % (r, t)); a("v_add_f32 v%d, v%d, v%d" % (r, r, t))
    for i in range(2):
        b = 64 + i * 16
        mean, var, t = 40 + i * 4, 41 + i * 4, 42 + i * 4
        a("v_add_f32 v%d, v%d, v%d" % (mean, b, b + 2))
        for q in range(2, 8): a("v_add_f32 v%d, v%d, v%d" % (mean, mean, b + 2 * q))
        xl2(mean, t)
        a("v_mul_f32 v%d, 0x3d000000, v%d" % (mean, mean))
        a("v_mov_b32 v%d, 0" % var)
        for q in range(8):
            a("v_sub_f32 v%d, v%d, v%d" % (t, b + 2 * q, mean)); a("v_mul_f32 v%d, v%d, v%d" % (t, t, t))
            a("v_fmac_f32 v%d, 0x42000000, v%d" % (var, t)); a("v_add_f32 v%d, v%d, v%d" % (var, var, b + 2 * q + 1))
        xl2(var, t)
        a("v_mul_f32 v%d, 0x3a800000, v%d" % (var, var))
        bf16_round(a, mean, mean); bf16_round(a, var, var)
        a("v_add_f32 v%d, 0x3727c5ac, v%d" % (var, var)); bf16_round(a, var, var)
        a("v_sqrt_f32 v%d, v%d" % (var, var)); bf16_round(a, var, var)
        a("v_rcp_f32 v%d, v%d" % (50 + 2 * i, var))
        a("v_mul_f32 v%d, v%d, v%d" % (51 + 2 * i, 50 + 2 * i, mean))
    a("v_and_b32 v30, 15, v1"); a("v_lshlrev_b32 v30, 3, v30"); a("s_lshl_b32 s41, s49, 8"); a("s_add_u32 s41, s41, %d" % STL); a("v_add_u32 v30, s41, v30")
    a("ds_write_b64 v30, v[50:51]"); a("ds_write_b64 v30, v[52:53] offset:128")
    a("s_waitcnt lgkmcnt(0)"); a("s_barrier")
    a.label("K3_end")
    a("s_endpgm")
    return name, dict(grid=256, block=512, lds=c.lds + 1024, vgprs=256)

def gen_k4(a):
    name = "k4_kernel"; L = "K4"
    c = Cfg(MT=4, NT=2, K=3584, NS=OPT.get('k4ns', 6), nblk=1, ldb=2048, acc0=112, aflags=OPT.get('k4a', ''), bflags=OPT.get('k4b', ''))
    kernel_header(a, name)
    a("s_cmp_ge_u32 s2, 256"); a("s_cbranch_scc1 K4_end")
    stamp(a, 0)
    ld_ptr(a, 34, 'ws'); ld_ptr(a, 32, 'w2'); ld_ptr(a, 36, 'b2'); ld_ptr(a, 62, 'out')
    wave_lane(a)
    tile_map(a, OPT.get('k4map', '4x8'))
    a("s_lshl_b32 s44, s17, 3")
    a("s_lshl_b32 s45, s18, 7")
    a("s_waitcnt lgkmcnt(0)")
    make_srd(a, S_SRDA, 34, 2048 * 3584 * 2, off=WS_H1)
    make_srd(a, S_SRDB, 32, 3584 * 1024 * 2)
    a("s_cmp_ge_u32 s%d, 4" % S_WAVE); a("s_cbranch_scc1 K4_loader")
    vA = 2; vB = [3, 4]
    compute_setup(a, c, vA, vB, tmp=9)
    a("s_lshl_b32 s25, s39, 6"); a("v_xor_b32 v3, s25, v3"); a("v_xor_b32 v4, 32, v3")
    tm = [(vB[j], c.blk_off[0]) for j in range(2)]
    if OPT.get('touch_k4', OPT.get('touch', 0)):
        nA, nB = map_share(OPT.get('k4map', '4x8'))
        touch_setup(a, c, nA, nB, 66, 67, 44, 45, 128, 252, 253, 12, 68, 69, 254, OPT.get('touch_k4', OPT.get('touch', 0)))
    make_srd(a, 52, 62, 2048 * 1024 * 2)
    make_srd(a, 56, 36, 1024 * 2)
    make_srd(a, 48, 34, 4 * MB, off=WS_H)
    a("s_lshl_b32 s40, s38, 2"); a("s_add_u32 s40, s40, s44"); a("s_lshl_b32 s40, s40, 5"); a("s_lshl_b32 s41, s18, 1"); a("s_add_u32 s41, s41, s39"); a("s_add_u32 s40, s40, s41")
    a("s_lshl_b32 s40, s40, 10")
    a("v_lshlrev_b32 v14, 4, v1"); a("v_add_u32 v14, s40, v14")
    a("s_lshl_b32 s40, s18, 6"); a("s_lshl_b32 s41, s39, 5"); a("s_add_u32 s40, s40, s41")
    a("v_lshrrev_b32 v12, 4, v1"); a("v_lshlrev_b32 v12, 2, v12"); a("v_add_u32 v12, s40, v12"); a("v_lshlrev_b32 v12, 1, v12")
    def after_b0(a):
        stamp(a, 1)
        a("s_mov_b32 s42, 0")
        for i in range(4):
            a("buffer_load_dwordx4 v[%d:%d], v14, s[48:51], s42 offen" % (160 + i * 4, 163 + i * 4))
            if i < 3: a("s_add_u32 s42, s42, %d" % (32 * 1024))
        for j in range(2): a("buffer_load_dwordx2 v[%d:%d], v12, s[56:59], 0 offen offset:%d" % (176 + j * 2, 177 + j * 2, j * 32))
    c.after_b0 = after_b0
    a("s_lshl_b32 s40, s17, 7"); a("s_lshl_b32 s42, s38, 6"); a("s_add_u32 s40, s40, s42")
    a("v_and_b32 v9, 15, v1"); a("v_add_u32 v9, s40, v9"); a("v_lshlrev_b32 v9, 11, v9")
    a("v_bfe_u32 v10, v1, 4, 1"); a("v_lshl_add_u32 v9, v10, 5, v9")
    a("v_lshrrev_b32 v10, 5, v1"); a("v_lshl_add_u32 v9, v10, 4, v9")
    a("s_lshl_b32 s41, s18, 7"); a("s_lshl_b32 s42, s39, 6"); a("s_add_u32 s41, s41, s42"); a("v_add_u32 v9, s41, v9")
    (compute_loop_full if OPT.get('full', 1) else compute_loop)(a, c, L, tm, vA)
    stamp(a, 2)
    a("s_waitcnt vmcnt(0)")
    for j in range(2):
        for h in range(2):
            a("v_lshlrev_b32 v%d, 16, v%d" % (180 + j * 4 + 2 * h, 176 + j * 2 + h)); a("v_and_b32 v%d, 0xffff0000, v%d" % (181 + j * 4 + 2 * h, 176 + j * 2 + h))
    for i in range(4):
        for q in range(4):
            a("v_lshlrev_b32 v%d, 16, v%d" % (16 + i * 8 + 2 * q, 160 + i * 4 + q)); a("v_and_b32 v%d, 0xffff0000, v%d" % (17 + i * 8 + 2 * q, 160 + i * 4 + q))
    for i in range(4):
        b = c.acc0 + i * 8
        for q in range(4): a(pk("v_pk_add_f32", b + 2 * q, b + 2 * q, 180 + 2 * q))
    for i in range(4):
        b = c.acc0 + i * 8
        for q in range(4): a(pk("v_pk_add_f32", b + 2 * q, b + 2 * q, 16 + i * 8 + 2 * q))
    a("s_mov_b32 s42, 0")
    for i in range(4):
        b = c.acc0 + i * 8; d = 48 + i * 4
        for q in range(4): a("v_cvt_pk_bf16_f32 v%d, v%d, v%d" % (d + q, b + 2 * q, b + 2 * q + 1))
    for i in range(4):
        d = 48 + i * 4
        a("v_permlane16_swap_b32 v%d, v%d" % (d, d + 2)); a("v_permlane16_swap_b32 v%d, v%d" % (d + 1, d + 3))
    for i in range(4):
        d = 48 + i * 4
        a("buffer_store_dwordx4 v[%d:%d], v9, s[52:55], s42 offen %s" % (d, d + 3, st_flags('out')))
        if i < 3: a("s_add_u32 s42, s42, %d" % (16 * 2048))
    stamp_flush(a, 5, 3)
    a("s_branch K4_end")
    a.label("K4_loader")
    Ld = loader_setup(a, c, 44, ["s45"])
    loader_loop(a, c, Ld, L)
    a.label("K4_end")
    a("s_endpgm")
    a.label("CODE_END")
    return name, dict(grid=256, block=512, lds=c.lds, vgprs=256)

def build(opt):
    OPT.clear(); OPT.update(opt)
    STAMP['on'] = opt.get('stamp', False)
    hdr = open("cdna_kernels/%s.s.ref" % NAME).read().split("; Override launch")[0]
    kernels = []
    body = []
    for g in (gen_k0, gen_k1, gen_k1b, gen_k2, gen_k3, gen_k4):
        a = Asm()
        name, info = g(a)
        lines, n = hazard.fix(a.lines)
        body.append("\n".join(lines) + "\n")
        kernels.append((name, info))
    order = opt.get('order', [k for k, _ in kernels])
    info = dict(kernels)
    txt = hdr
    for k in order:
        i = info[k]
        txt += "; @launch kernel=%s grid=(%d,1,1) block=(%d,1,1) lds=%d\n" % (k, i['grid'], i['block'], i['lds'])
    txt += '.amdgcn_target "amdgcn-amd-amdhsa--gfx950"\n.text\n' + "".join(body)
    txt += '.section .rodata,"a"\n'
    for k, i in kernels:
        txt += ".p2align 6\n" + kernel_desc(k, i['vgprs'])
    return txt

if __name__ == "__main__":
    opt = json.loads(sys.argv[2]) if len(sys.argv) > 2 else {}
    open(sys.argv[1], "w").write(build(opt))
```

```python
from asmlib import *

S_SRDA = 4; S_SRDB = 8; S_WAVE = 16; S_CNT = 19; S_STG = 20; S_KA = 21; S_KB = 22; S_T0 = 23; S_T1 = 24; S_T2 = 25; S_RD = 26; S_NEG = 27; S_POS = 28
MF = "v_mfma_f32_16x16x32_bf16"

class Cfg:
    def __init__(self, **kw):
        self.WM = 2; self.WN = 2; self.MT = 4; self.NT = 6
        self.K = 1024; self.NS = 3; self.nblk = 3; self.ldb = 6144
        self.swap_tiles = set(); self.acc0 = 112; self.frag0 = 16
        self.aflags = ""; self.bflags = ""
        self.after_b0 = None
        self.__dict__.update(kw)
        self.BM = self.WM * self.MT * 16
        self.T = self.K // 64
        self.A_bytes = self.BM * 128
        self.blk_off = [self.A_bytes + 8192 * b for b in range(self.nblk)]
        self.stage = self.A_bytes + 8192 * self.nblk
        self.lds = self.stage * self.NS

def loader_setup(a, c, s_mtbase, blk_col_sgprs, vbase=2):
    nmt = c.BM // 16
    per = nmt // 4
    va = []
    v = vbase
    a("s_sub_u32 s%d, s%d, 4" % (S_T0, S_WAVE))
    a("v_lshlrev_b32 v%d, 4, v1" % v)
    lane16 = v; v += 1
    a("s_mul_i32 s%d, s%d, %d" % (S_T1, S_T0, per))
    a("s_add_u32 s%d, s%d, s%d" % (S_T1, S_T1, s_mtbase))
    a("s_mul_i32 s%d, s%d, %d" % (S_T1, S_T1, c.K // 32 * 1024))
    for i in range(per):
        a("v_add_u32 v%d, s%d, v%d" % (v, S_T1, lane16))
        if i < per - 1: a("s_add_u32 s%d, s%d, %d" % (S_T1, S_T1, c.K // 32 * 1024))
        va.append(v); v += 1
    tmp = v; v += 1
    tmp2 = v; v += 1
    patf = v; v += 1
    a("s_mov_b32 s%d, %d" % (S_T1, c.ldb))
    a("v_lshrrev_b32 v%d, 3, v1" % tmp)
    a("v_mul_lo_u32 v%d, v%d, s%d" % (patf, tmp, S_T1))
    a("v_bfe_u32 v%d, v1, 4, 2" % tmp); a("v_lshlrev_b32 v%d, 1, v%d" % (tmp, tmp))
    a("v_and_b32 v%d, 7, v1" % tmp2)
    a("v_xor_b32 v%d, v%d, v%d" % (tmp, tmp, tmp2))
    a("v_lshl_add_u32 v%d, v%d, 4, v%d" % (patf, tmp, patf))
    a("s_mul_i32 s%d, s%d, %d" % (S_T2, S_T0, 16 * c.ldb))
    vb = []
    for bi in range(c.nblk):
        a("s_add_u32 s%d, s%d, %s" % (S_T1, S_T2, blk_col_sgprs[bi]))
        a("v_add_u32 v%d, s%d, v%d" % (v, S_T1, patf))
        a("v_add_u32 v%d, %d, v%d" % (v + 1, 8 * c.ldb - 1024, v))
        vb.append([v, v + 1]); v += 2
    a("s_mul_i32 s27, s%d, %d" % (S_T0, per * 2048))
    a("s_lshl_b32 s28, s%d, 11" % S_T0)
    ndma = per * 2 + 2 * c.nblk
    return dict(va=va, vb=vb, ndma=ndma, per=per, vnext=v)

def loader_issue(a, c, L):
    for i, v in enumerate(L['va']):
        if i == 0:
            a("s_add_u32 m0, s%d, s27" % S_STG)
        else:
            a("s_add_u32 m0, m0, 2048")
        for s in range(2):
            a("buffer_load_dwordx4 v%d, s[%d:%d], s%d offen offset:%d %s lds" % (v, S_SRDA, S_SRDA + 3, S_KA, s * 1024, c.aflags))
    a("s_add_u32 s%d, s%d, s28" % (S_T1, S_STG))
    for bi in range(c.nblk):
        a("s_add_u32 m0, s%d, %d" % (S_T1, c.blk_off[bi]))
        for e, v in enumerate(L['vb'][bi]):
            a("buffer_load_dwordx4 v%d, s[%d:%d], s%d offen offset:%d %s lds" % (v, S_SRDB, S_SRDB + 3, S_KB, e * 1024, c.bflags))

def loader_advance(a, c):
    a("s_add_u32 s%d, s%d, 2048" % (S_KA, S_KA))
    a("s_add_u32 s%d, s%d, %d" % (S_KB, S_KB, 64 * c.ldb))
    a("s_add_u32 s%d, s%d, %d" % (S_STG, S_STG, c.stage))
    a("s_cmp_eq_u32 s%d, %d" % (S_STG, c.stage * c.NS))
    a("s_cselect_b32 s%d, 0, s%d" % (S_STG, S_STG))

def loader_loop(a, c, L, lbl, tail_loads=None, n_tail=0, after_ramp=None, hooks=None):
    nd = L['ndma']; NS = c.NS; T = c.T
    pre = NS - 1
    a("s_mov_b32 s%d, 0" % S_STG); a("s_mov_b32 s%d, 0" % S_KA); a("s_mov_b32 s%d, 0" % S_KB)
    p0 = min(2, pre)
    for p in range(p0):
        loader_issue(a, c, L); loader_advance(a, c)
    a("s_waitcnt vmcnt(%d)" % (nd * (p0 - 1)))
    a("s_barrier")
    for p in range(p0, NS):
        loader_issue(a, c, L); loader_advance(a, c)
    if after_ramp: after_ramp(a)
    n_loop = T - pre - 1
    a("s_mov_b32 s%d, %d" % (S_CNT, n_loop))
    a.label(lbl + "_lloop")
    a("s_waitcnt vmcnt(%d)" % (nd * (pre - 1)))
    a("s_barrier")
    loader_issue(a, c, L); loader_advance(a, c)
    hooks = hooks or {}
    for t in sorted(hooks):
        a("s_cmp_eq_u32 s%d, %d" % (S_CNT, n_loop - (t - 1))); a("s_cbranch_scc1 %s_hook%d" % (lbl, t))
    a.label(lbl + "_hookret")
    a("s_sub_u32 s%d, s%d, 1" % (S_CNT, S_CNT))
    a("s_cmp_lg_u32 s%d, 0" % S_CNT)
    a("s_cbranch_scc1 %s_lloop" % lbl)
    if hooks:
        a("s_branch %s_lafter" % lbl)
        for t in sorted(hooks):
            a.label("%s_hook%d" % (lbl, t))
            hooks[t](a)
            a("s_branch %s_hookret" % lbl)
        a.label(lbl + "_lafter")
    if tail_loads: tail_loads(a)
    for r in range(pre):
        n = nd * (pre - 1 - r) + n_tail
        assert n <= 63
        a("s_waitcnt vmcnt(%d)" % n)
        a("s_barrier")

def compute_setup(a, c, vA, vB, tmp):
    a("s_lshr_b32 s38, s%d, 1" % S_WAVE); a("s_and_b32 s39, s%d, 1" % S_WAVE)
    a("s_mul_i32 s%d, s38, %d" % (S_T2, c.MT * 2048))
    a("v_lshlrev_b32 v%d, 4, v1" % vA)
    a("v_add_u32 v%d, s%d, v%d" % (vA, S_T2, vA))
    tr_pattern(a, vB[0], tmp)

def tr_pattern(a, dst, tmp):
    t0, t1 = tmp, tmp + 1
    a("v_bfe_u32 v%d, v1, 1, 1" % t0)
    a("v_bfe_u32 v%d, v1, 3, 2" % t1)
    a("v_lshlrev_b32 v%d, 1, v%d" % (t1, t1))
    a("v_xor_b32 v%d, v%d, v%d" % (t0, t0, t1))
    a("v_lshrrev_b32 v%d, 2, v1" % t1)
    a("v_lshlrev_b32 v%d, 7, v%d" % (dst, t1))
    a("v_lshl_add_u32 v%d, v%d, 4, v%d" % (dst, t0, dst))
    a("v_and_b32 v%d, 1, v1" % t1)
    a("v_lshl_add_u32 v%d, v%d, 3, v%d" % (dst, t1, dst))

def compute_loop(a, c, lbl, tilemap, vA):
    MT, NT = c.MT, c.NT
    fs = (MT + NT) * 4
    P = c.frag0; Q = c.frag0 + fs
    assert c.frag0 + 2 * fs <= c.acc0
    def act(setb, i): return setb + i * 4
    def wt(setb, j): return setb + MT * 4 + j * 4
    def accr(i, j): return c.acc0 + (i * NT + j) * 4
    sch = LgkmSched(a)
    addr_regs = sorted(set([vA] + [t[0] for t in tilemap]))
    def reads(setb, s):
        out = []
        order = [('a', 0), ('w', 0)] + [('a', i) for i in range(1, MT)] + [('w', j) for j in range(1, NT)]
        for kind, j in order:
            if kind == 'a':
                out.append(("ds_read_b128 %s, v%d offset:%d" % (vr(act(setb, j), 4), vA, (j * 2 + s) * 1024), (setb, 'a', j)))
            else:
                reg, imm = tilemap[j]
                for jj in range(2):
                    out.append(("ds_read_b64_tr_b16 %s, v%d offset:%d" % (vr(wt(setb, j) + jj * 2, 2), reg, imm + s * 4096 + jj * 2048), (setb, 'w', j)))
        return out
    ms = [(i, j) for j in range(NT) for i in range(MT)]
    def advance():
        a("s_add_u32 s%d, s%d, %d" % (S_RD, S_RD, c.stage))
        a("s_cmp_eq_u32 s%d, %d" % (S_RD, c.stage * c.NS))
        a("s_cselect_b32 s%d, s%d, s%d" % (S_T0, S_NEG, S_POS))
        a("s_cselect_b32 s%d, 0, s%d" % (S_RD, S_RD))
        for r in addr_regs:
            a("v_add_u32 v%d, s%d, v%d" % (r, S_T0, r))
    T_ = getattr(c, 'touch', None)
    def do_touch():
        if not T_: return
        a("buffer_load_dword v%d, v%d, s[%d:%d], s%d offen" % (T_['dst'], T_['vA'], S_SRDA, S_SRDA + 3, T_['sA']))
        a("s_add_u32 s%d, s%d, 2048" % (T_['sA'], T_['sA']))
        a("buffer_load_dword v%d, v%d, s[%d:%d], s%d offen" % (T_['dst'] + 1, T_['vB'], S_SRDB, S_SRDB + 3, T_['sB']))
        a("s_add_u32 s%d, s%d, %d" % (T_['sB'], T_['sB'], 64 * c.ldb))
    def group(setc, setn, s_next, pre_barrier=False, noreads=False, post=None, first=False, touch=False):
        rd = [] if noreads else reads(setn, s_next)
        if pre_barrier:
            sch.drain()
            a("s_barrier")
        ri = 0
        nm = len(ms)
        for k, (i, j) in enumerate(ms):
            sch.need({(setc, 'a', i), (setc, 'w', j)})
            A_, B_ = wt(setc, j), act(setc, i)
            if j in c.swap_tiles: A_, B_ = B_, A_
            cin = "0" if first else vr(accr(i, j), 4)
            a("%s %s, %s, %s, %s" % (MF, vr(accr(i, j), 4), vr(A_, 4), vr(B_, 4), cin))
            if ri < len(rd):
                sch.issue(*rd[ri]); ri += 1
                if ri == len(rd) and post: post(); post = None
            if touch and k == nm - 2: do_touch()
        while ri < len(rd):
            sch.issue(*rd[ri]); ri += 1
        if post: post()
    a("s_mov_b32 s%d, 0" % S_RD)
    a("s_mov_b32 s%d, 0x%x" % (S_NEG, -(c.stage * (c.NS - 1)) & 0xffffffff))
    a("s_mov_b32 s%d, %d" % (S_POS, c.stage))
    a("s_mov_b32 s%d, %d" % (S_CNT, c.T - 2))
    a("s_barrier")
    for t in reads(P, 0): sch.issue(*t)
    if c.after_b0: c.after_b0(a)
    q0 = list(sch.q)
    group(P, Q, 1, post=advance, first=True, touch=True)
    group(Q, P, 0, pre_barrier=True)
    assert sch.q == q0
    def cnt():
        advance()
    a.label(lbl + "_cloop")
    group(P, Q, 1, post=advance, touch=True)
    a("s_sub_u32 s%d, s%d, 1" % (S_CNT, S_CNT))
    group(Q, P, 0, pre_barrier=True)
    assert sch.q == q0
    a("s_cmp_lg_u32 s%d, 0" % S_CNT)
    a("s_cbranch_scc1 %s_cloop" % lbl)
    group(P, Q, 1)
    group(Q, P, 0, noreads=True)


def touch_setup(a, c, nA, nB, s_idxA, s_idxB, s_mtbase, s_col0, blkstride, vA, vB, tmp, sA, sB, dst, LA):
    LW = 32 // nA; RW = 16 // nB
    a("s_mul_i32 s%d, s%d, %d" % (S_T0, s_idxA, 128 // nA)); a("s_mul_i32 s%d, s%d, %d" % (S_T1, S_WAVE, LW)); a("s_add_u32 s%d, s%d, s%d" % (S_T0, S_T0, S_T1))
    a("v_add_u32 v%d, s%d, v1" % (tmp, S_T0))
    a("v_lshrrev_b32 v%d, 4, v%d" % (tmp + 1, tmp)); a("v_add_u32 v%d, s%d, v%d" % (tmp + 1, s_mtbase, tmp + 1))
    a("s_mov_b32 s%d, %d" % (S_T1, c.K // 32 * 1024)); a("v_mul_lo_u32 v%d, v%d, s%d" % (vA, tmp + 1, S_T1))
    a("v_and_b32 v%d, 15, v%d" % (tmp, tmp)); a("v_lshl_add_u32 v%d, v%d, 7, v%d" % (vA, tmp, vA))
    a("v_mov_b32 v%d, 0x7ff00000" % (tmp + 1))
    a("v_cmp_gt_u32 vcc, %d, v1" % LW); a("v_cndmask_b32 v%d, v%d, v%d, vcc" % (vA, tmp + 1, vA))
    sh = RW.bit_length() - 1
    a("s_mul_i32 s%d, s%d, %d" % (S_T0, s_idxB, 64 // nB)); a("s_mul_i32 s%d, s%d, %d" % (S_T1, S_WAVE, RW)); a("s_add_u32 s%d, s%d, s%d" % (S_T0, S_T0, S_T1))
    a("v_and_b32 v%d, %d, v1" % (tmp, RW - 1)); a("v_add_u32 v%d, s%d, v%d" % (tmp, S_T0, tmp))
    a("s_mov_b32 s%d, %d" % (S_T1, c.ldb)); a("v_mul_lo_u32 v%d, v%d, s%d" % (vB, tmp, S_T1))
    a("v_lshrrev_b32 v%d, %d, v1" % (tmp, sh)); a("s_mov_b32 s%d, %d" % (S_T1, blkstride)); a("v_mul_lo_u32 v%d, v%d, s%d" % (tmp, tmp, S_T1))
    a("v_add_u32 v%d, v%d, v%d" % (vB, vB, tmp)); a("v_add_u32 v%d, s%d, v%d" % (vB, s_col0, vB))
    a("v_cmp_gt_u32 vcc, %d, v1" % (RW * c.nblk)); a("v_cndmask_b32 v%d, v%d, v%d, vcc" % (vB, tmp + 1, vB))
    a("s_mov_b32 s%d, %d" % (sA, c.NS * 2048)); a("s_mov_b32 s%d, %d" % (sB, c.NS * 64 * c.ldb))
    for t in range(c.NS, LA):
        a("buffer_load_dword v%d, v%d, s[%d:%d], s%d offen" % (dst, vA, S_SRDA, S_SRDA + 3, sA))
        a("s_add_u32 s%d, s%d, 2048" % (sA, sA))
        a("buffer_load_dword v%d, v%d, s[%d:%d], s%d offen" % (dst + 1, vB, S_SRDB, S_SRDB + 3, sB))
        a("s_add_u32 s%d, s%d, %d" % (sB, sB, 64 * c.ldb))
    c.touch = dict(vA=vA, vB=vB, sA=sA, sB=sB, dst=dst)


def compute_loop_full(a, c, lbl, tilemap, vA):
    MT, NT = c.MT, c.NT
    fs1 = (MT + NT) * 4
    fs = 2 * fs1
    P = c.frag0; Q = c.frag0 + fs
    assert c.frag0 + 2 * fs <= c.acc0
    def act(setb, s, i): return setb + s * fs1 + i * 4
    def wt(setb, s, j): return setb + s * fs1 + MT * 4 + j * 4
    def accr(i, j): return c.acc0 + (i * NT + j) * 4
    sch = LgkmSched(a)
    addr_regs = sorted(set([vA] + [t[0] for t in tilemap]))
    def reads(setb):
        out = []
        for s in range(2):
            order = [('a', 0), ('w', 0)] + [('a', i) for i in range(1, MT)] + [('w', j) for j in range(1, NT)]
            for kind, j in order:
                if kind == 'a':
                    out.append(("ds_read_b128 %s, v%d offset:%d" % (vr(act(setb, s, j), 4), vA, (j * 2 + s) * 1024), (setb, s, 'a', j)))
                else:
                    reg, imm = tilemap[j]
                    for jj in range(2):
                        out.append(("ds_read_b64_tr_b16 %s, v%d offset:%d" % (vr(wt(setb, s, j) + jj * 2, 2), reg, imm + s * 4096 + jj * 2048), (setb, s, 'w', j)))
        return out
    ms = [(s, i, j) for s in range(2) for j in range(NT) for i in range(MT)]
    def advance():
        a("s_add_u32 s%d, s%d, %d" % (S_RD, S_RD, c.stage))
        a("s_cmp_eq_u32 s%d, %d" % (S_RD, c.stage * c.NS))
        a("s_cselect_b32 s%d, s%d, s%d" % (S_T0, S_NEG, S_POS))
        a("s_cselect_b32 s%d, 0, s%d" % (S_RD, S_RD))
        for r in addr_regs:
            a("v_add_u32 v%d, s%d, v%d" % (r, S_T0, r))
    def step(setc, setn, barrier=True, noreads=False, first=False):
        rd = [] if noreads else reads(setn)
        if barrier:
            sch.drain()
            a("s_barrier")
        ri = 0
        for k, (s, i, j) in enumerate(ms):
            sch.need({(setc, s, 'a', i), (setc, s, 'w', j)})
            A_, B_ = wt(setc, s, j), act(setc, s, i)
            if j in c.swap_tiles: A_, B_ = B_, A_
            cin = "0" if (first and s == 0) else vr(accr(i, j), 4)
            a("%s %s, %s, %s, %s" % (MF, vr(accr(i, j), 4), vr(A_, 4), vr(B_, 4), cin))
            if ri < len(rd):
                sch.issue(*rd[ri]); ri += 1
        while ri < len(rd):
            sch.issue(*rd[ri]); ri += 1
        if not noreads: advance()
    a("s_mov_b32 s%d, 0" % S_RD)
    a("s_mov_b32 s%d, 0x%x" % (S_NEG, -(c.stage * (c.NS - 1)) & 0xffffffff))
    a("s_mov_b32 s%d, %d" % (S_POS, c.stage))
    assert c.T % 2 == 0
    a("s_mov_b32 s%d, %d" % (S_CNT, (c.T - 2) // 2))
    a("s_barrier")
    for t in reads(P): sch.issue(*t)
    advance()
    if c.after_b0: c.after_b0(a)
    step(P, Q, first=True)
    a.label(lbl + "_cloop")
    step(Q, P)
    a("s_sub_u32 s%d, s%d, 1" % (S_CNT, S_CNT))
    step(P, Q)
    a("s_cmp_lg_u32 s%d, 0" % S_CNT)
    a("s_cbranch_scc1 %s_cloop" % lbl)
    step(Q, P, barrier=False, noreads=True)
```

```python
import sys, json
from asmlib import *
from core2 import *
import hazard

NAME = "sequential_preLN__linear_kernel_hedgehog__dense_activation_squared_relu__prompt"
MB = 1 << 20
WS_XN = 0
WS_PHIQ = 4 * MB
WS_KVP = 12 * MB
KVP_STRIDE = 4352
WS_O = 20 * MB
WS_H = 24 * MB
WS_STATS = 28 * MB
WS_CS1 = 29 * MB
WS_CNT = 30 * MB
WS_CSP = 31 * MB
WS_H1 = 32 * MB
WS_STAMP = 200 * MB
LOG2E = 0x3fb8aa3b
OPT = {}
STAMP = {'on': False}

def ld_ptr(a, s, key):
    a("s_load_dwordx2 s[%d:%d], s[0:1], %d" % (s, s + 1, KERNARG[key]))

def wave_lane(a):
    a("v_and_b32 v1, 63, v0")
    a("v_lshrrev_b32 v2, 6, v0")
    a("s_nop 0")
    a("v_readfirstlane_b32 s%d, v2" % S_WAVE)

def bf16_round(a, dst, src):
    a("v_cvt_pk_bf16_f32 v%d, v%d, v%d" % (dst, src, src))
    a("v_lshlrev_b32 v%d, 16, v%d" % (dst, dst))

def stamp(a, idx):
    if STAMP['on']:
        a("s_memrealtime s[%d:%d]" % (80 + 2 * idx, 81 + 2 * idx)); a("s_waitcnt lgkmcnt(0)")
def stamp_flush(a, kid, n, wave=0):
    if not STAMP['on']: return
    lbl = "ST_skip_%d_%d" % (kid, len(a.lines))
    stamp(a, n)
    a("s_waitcnt vmcnt(0)")
    n += 1
    stamp(a, n)
    a("s_cmp_lg_u32 s%d, %d" % (S_WAVE, wave)); a("s_cbranch_scc1 %s" % lbl)
    a("s_load_dwordx2 s[70:71], s[0:1], %d" % KERNARG['ws']); a("s_waitcnt lgkmcnt(0)")
    make_srd(a, 72, 70, 1 * MB, off=WS_STAMP)
    a("s_add_u32 s76, s2, %d" % (kid * 512)); a("s_lshl_b32 s76, s76, 5")
    a("s_mov_b64 exec, 1")
    a("v_mov_b32 v5, s76")
    for i in range(n + 1):
        a("v_mov_b32 v4, s%d" % (80 + 2 * i))
        a("buffer_store_dword v4, v5, s[72:75], 0 offen offset:%d" % (i * 4))
        a("s_nop 1")
    a.label(lbl)

def pk(op, d, s0, s1, s2=None, mods=""):
    ops = [d, s0, s1] + ([s2] if s2 is not None else [])
    def f(x): return x if isinstance(x, str) else "v[%d:%d]" % (x, x + 1)
    return "%s %s %s" % (op, ", ".join(f(x) for x in ops), mods)

def touch(a, vdst, vaddr, srd, soff="0"):
    a("buffer_load_dword v%d, v%d, s[%d:%d], %s offen" % (vdst, vaddr, srd, srd + 3, soff))

def st_flags(key):
    return OPT.get('st_' + key, OPT.get('st', ''))

def allreduce4(a, op, r, t):
    a("v_permlane32_swap_b32 v%d, v%d" % (r[0], r[1])); a("v_permlane32_swap_b32 v%d, v%d" % (r[2], r[3]))
    a("%s v%d, v%d, v%d" % (op, r[0], r[0], r[1])); a("%s v%d, v%d, v%d" % (op, r[2], r[2], r[3]))
    a("v_permlane16_swap_b32 v%d, v%d" % (r[0], r[2]))
    a("%s v%d, v%d, v%d" % (op, r[0], r[0], r[2]))
    a("v_mov_b32 v%d, v%d" % (r[2], r[0]))
    a("v_permlane16_swap_b32 v%d, v%d" % (r[0], r[2]))
    a("v_mov_b32 v%d, v%d" % (r[1], r[0])); a("v_mov_b32 v%d, v%d" % (r[3], r[2]))
    a("v_permlane32_swap_b32 v%d, v%d" % (r[0], r[1])); a("v_permlane32_swap_b32 v%d, v%d" % (r[2], r[3]))

def gen_k0(a):
    name = "k0_kernel"
    kernel_header(a, name)
    a.label("CODE_BEGIN")
    a("s_cmp_ge_u32 s2, 256"); a("s_cbranch_scc1 K0_end")
    stamp(a, 0)
    ld_ptr(a, 30, 'x'); ld_ptr(a, 34, 'ws'); ld_ptr(a, 32, 'wqkv'); ld_ptr(a, 36, 'wo'); ld_ptr(a, 38, 'w1')
    wave_lane(a)
    a("v_and_b32 v2, 7, v0"); a("v_lshrrev_b32 v3, 3, v0")
    a("s_lshl_b32 s20, s2, 3"); a("v_add_u32 v4, s20, v2"); a("v_lshlrev_b32 v4, 11, v4"); a("v_lshl_add_u32 v4, v3, 6, v4")
    a("s_waitcnt lgkmcnt(0)")
    make_srd(a, 4, 30, 2048 * 1024 * 2)
    for i in range(4):
        a("buffer_load_dwordx4 v[%d:%d], v4, s[4:7], 0 offen offset:%d" % (16 + 4 * i, 19 + 4 * i, i * 16))
    a("s_lshl_b32 s21, s2, 2"); a("s_add_u32 s21, s21, s%d" % S_WAVE); a("s_lshl_b32 s21, s21, 13")
    a("v_lshlrev_b32 v5, 7, v1")
    make_srd(a, 12, 32, 1024 * 3072 * 2)
    touch(a, 10, 5, 12, "s21")
    make_srd(a, 12, 36, 1024 * 1024 * 2)
    touch(a, 32, 5, 12, "s21")
    make_srd(a, 12, 38, 1024 * 3584 * 2)
    touch(a, 33, 5, 12, "s21")
    a("s_getpc_b64 s[24:25]")
    a.label("K0_pc")
    a("s_sub_u32 s24, s24, K0_pc-CODE_BEGIN"); a("s_subb_u32 s25, s25, 0")
    a("s_mov_b32 s26, CODE_END-CODE_BEGIN"); a("s_mov_b32 s27, 0x20000")
    a("s_lshr_b32 s21, s2, 3"); a("s_and_b32 s21, s21, 15"); a("s_lshl_b32 s21, s21, 13")
    touch(a, 11, 5, 24, "s21")
    make_srd(a, 8, 34, 4 * MB, off=WS_XN)
    a("s_waitcnt vmcnt(4)")
    for i in range(16):
        a("v_lshlrev_b32 v%d, 16, v%d" % (64 + 2 * i, 16 + i))
        a("v_and_b32 v%d, 0xffff0000, v%d" % (65 + 2 * i, 16 + i))
    def rowsum(src_pairs, dst):
        pass
    for i in range(8): a(pk("v_pk_add_f32", 40 + 2 * i, 64 + 2 * i, 80 + 2 * i))
    for i in range(4): a(pk("v_pk_add_f32", 40 + 2 * i, 40 + 2 * i, 48 + 2 * i))
    for i in range(2): a(pk("v_pk_add_f32", 40 + 2 * i, 40 + 2 * i, 44 + 2 * i))
    a(pk("v_pk_add_f32", 40, 40, 42)); a("v_add_f32 v6, v40, v41")
    def xl(r, t):
        a("v_add_f32_dpp v%d, v%d, v%d row_ror:8 row_mask:0xf bank_mask:0xf" % (r, r, r))
        a("v_mov_b32 v%d, v%d" % (t, r)); a("v_permlane16_swap_b32 v%d, v%d" % (r, t)); a("v_add_f32 v%d, v%d, v%d" % (r, r, t))
        a("v_mov_b32 v%d, v%d" % (t, r)); a("v_permlane32_swap_b32 v%d, v%d" % (r, t)); a("v_add_f32 v%d, v%d, v%d" % (r, r, t))
    xl(6, 7)
    a("v_lshlrev_b32 v8, 2, v2"); a("s_lshl_b32 s21, s%d, 5" % S_WAVE); a("v_add_u32 v9, s21, v8")
    a("ds_write_b32 v9, v6")
    a("s_waitcnt lgkmcnt(0)"); a("s_barrier")
    a("ds_read_b32 v12, v8"); a("ds_read_b32 v13, v8 offset:32"); a("ds_read_b32 v14, v8 offset:64"); a("ds_read_b32 v15, v8 offset:96")
    a("s_waitcnt lgkmcnt(0)")
    a("v_add_f32 v12, v12, v13"); a("v_add_f32 v14, v14, v15"); a("v_add_f32 v12, v12, v14")
    a("v_mul_f32 v12, 0x3a800000, v12")
    for i in range(16): a(pk("v_pk_add_f32", 96 + 2 * i, 64 + 2 * i, 12, mods="op_sel_hi:[1,0] neg_lo:[0,1] neg_hi:[0,1]"))
    for i in range(4): a(pk("v_pk_mul_f32", 40 + 2 * i, 96 + 2 * i, 96 + 2 * i))
    for i in range(4, 16): a(pk("v_pk_fma_f32", 40 + 2 * (i & 3), 96 + 2 * i, 96 + 2 * i, 40 + 2 * (i & 3)))
    a(pk("v_pk_add_f32", 40, 40, 42)); a(pk("v_pk_add_f32", 44, 44, 46)); a(pk("v_pk_add_f32", 40, 40, 44)); a("v_add_f32 v6, v40, v41")
    xl(6, 7)
    a("ds_write_b32 v9, v6 offset:128")
    a("s_waitcnt lgkmcnt(0)"); a("s_barrier")
    a("ds_read_b32 v13, v8 offset:128"); a("ds_read_b32 v14, v8 offset:160"); a("ds_read_b32 v15, v8 offset:192"); a("ds_read_b32 v6, v8 offset:224")
    a("s_waitcnt lgkmcnt(0)")
    a("v_add_f32 v13, v13, v14"); a("v_add_f32 v15, v15, v6"); a("v_add_f32 v13, v13, v15")
    a("v_mul_f32 v14, 0x3a800000, v13")
    bf16_round(a, 12, 12); bf16_round(a, 14, 14)
    a("v_add_f32 v14, 0x3727c5ac, v14"); bf16_round(a, 14, 14)
    a("v_sqrt_f32 v14, v14"); bf16_round(a, 14, 14)
    a("v_rcp_f32 v14, v14")
    for i in range(16):
        p = 64 + 2 * i
        a(pk("v_pk_add_f32", p, p, 12, mods="op_sel_hi:[1,0] neg_lo:[0,1] neg_hi:[0,1]"))
    for i in range(16):
        p = 64 + 2 * i
        a("v_cvt_pk_bf16_f32 v%d, v%d, v%d" % (96 + i, p, p + 1))
    for i in range(16):
        p = 64 + 2 * i
        a("v_lshlrev_b32 v%d, 16, v%d" % (p, 96 + i)); a("v_and_b32 v%d, 0xffff0000, v%d" % (p + 1, 96 + i))
    for i in range(16):
        p = 64 + 2 * i
        a(pk("v_pk_mul_f32", p, p, 14, mods="op_sel_hi:[1,0]"))
    for g in range(4):
        for q, dw in enumerate((2 * g, 2 * g + 1, 8 + 2 * g, 9 + 2 * g)):
            a("v_cvt_pk_bf16_f32 v%d, v%d, v%d" % (16 + 4 * g + q, 64 + 2 * dw, 65 + 2 * dw))
    a("s_lshr_b32 s20, s2, 1"); a("s_lshl_b32 s20, s20, 15"); a("s_and_b32 s21, s2, 1"); a("s_lshl_b32 s21, s21, 7"); a("s_add_u32 s20, s20, s21")
    a("v_lshlrev_b32 v4, 10, v3"); a("v_lshl_add_u32 v4, v2, 4, v4"); a("v_add_u32 v4, s20, v4")
    for g in range(4):
        a("buffer_store_dwordx4 v[%d:%d], v4, s[8:11], 0 offen offset:%d %s" % (16 + 4 * g, 19 + 4 * g, g * 256, st_flags('k0')))
    make_srd(a, 12, 34, 65536, off=WS_CNT)
    a("s_lshl_b32 s21, s2, 8"); a("v_mov_b32 v34, s21"); a("v_mov_b32 v35, 0")
    a("v_cmp_eq_u32 vcc, 0, v0"); a("s_and_saveexec_b64 s[40:41], vcc"); a("s_cbranch_execz K0_nz")
    a("buffer_store_dword v35, v34, s[12:15], 0 offen sc1")
    a.label("K0_nz")
    a("s_mov_b64 exec, s[40:41]")
    stamp(a, 1); stamp(a, 2)
    stamp_flush(a, 0, 3)
    a.label("K0_end")
    a("s_endpgm")
    return name, dict(grid=256, block=256, lds=1024, vgprs=128)

def map_share(mode):
    return {'8x4': (4, 8), '4x8': (8, 4), '2x16': (16, 2)}[mode]
def tile_map(a, mode):
    a("s_and_b32 s40, s2, 7"); a("s_lshr_b32 s41, s2, 3")
    sh = {'8x4': 3, '4x8': 2, '2x16': 1}[mode]
    a("s_lshr_b32 s66, s41, %d" % sh); a("s_and_b32 s67, s41, %d" % ((1 << sh) - 1))
    if mode == '8x4':
        a("s_and_b32 s42, s40, 1"); a("s_lshl_b32 s42, s42, 3"); a("s_and_b32 s43, s41, 7"); a("s_add_u32 s17, s42, s43")
        a("s_lshr_b32 s42, s40, 1"); a("s_lshl_b32 s42, s42, 2"); a("s_lshr_b32 s43, s41, 3"); a("s_add_u32 s18, s42, s43")
    elif mode == '4x8':
        a("s_and_b32 s42, s40, 3"); a("s_lshl_b32 s42, s42, 2"); a("s_and_b32 s43, s41, 3"); a("s_add_u32 s17, s42, s43")
        a("s_lshr_b32 s42, s40, 2"); a("s_lshl_b32 s42, s42, 3"); a("s_lshr_b32 s43, s41, 2"); a("s_add_u32 s18, s42, s43")
    elif mode == '2x16':
        a("s_lshl_b32 s42, s40, 1"); a("s_and_b32 s43, s41, 1"); a("s_add_u32 s17, s42, s43")
        a("s_lshr_b32 s18, s41, 1")

def exp4(a, P, E, T):
    MX = [T + 0, T + 2, T + 4, T + 6]; MN = [T + 8, T + 10, T + 12, T + 14]
    for i in range(4):
        p = P + 8 * i
        a("v_max3_f32 v%d, v%d, v%d, v%d" % (MX[i], p, p + 1, p + 2)); a("v_min3_f32 v%d, v%d, v%d, v%d" % (MN[i], p, p + 1, p + 2))
    for i in range(4):
        p = P + 8 * i
        a("v_max3_f32 v%d, v%d, v%d, v%d" % (MX[i], MX[i], p + 3, p + 4)); a("v_min3_f32 v%d, v%d, v%d, v%d" % (MN[i], MN[i], p + 3, p + 4))
    for i in range(4):
        p = P + 8 * i
        a("v_max3_f32 v%d, v%d, v%d, v%d" % (MX[i], MX[i], p + 5, p + 6)); a("v_min3_f32 v%d, v%d, v%d, v%d" % (MN[i], MN[i], p + 5, p + 6))
    for i in range(4):
        p = P + 8 * i
        a("v_max_f32 v%d, v%d, v%d" % (MX[i], MX[i], p + 7)); a("v_min_f32 v%d, v%d, v%d" % (MN[i], MN[i], p + 7))
    interleave(a, lambda b: allreduce4(b, "v_max_f32", MX, None), lambda b: allreduce4(b, "v_min_f32", MN, None))
    for i in range(4):
        a("v_mul_f32 v%d, s46, v%d" % (MX[i], MX[i])); a("v_mul_f32 v%d, s46, v%d" % (MN[i], MN[i]))
    for i in range(4):
        for h in range(4):
            p = P + 8 * i + 2 * h; e = E + 8 * i + 2 * h
            a(pk("v_pk_fma_f32", e, p, "s[46:47]", MX[i], mods="op_sel_hi:[1,1,0] neg_lo:[0,0,1] neg_hi:[0,0,1]"))
            a(pk("v_pk_fma_f32", p, p, "s[46:47]", MN[i], mods="op_sel_hi:[1,1,0] neg_lo:[1,0,0] neg_hi:[1,0,0]"))
    for i in range(4):
        for q in range(8):
            a("v_exp_f32 v%d, v%d" % (E + 8 * i + q, E + 8 * i + q)); a("v_exp_f32 v%d, v%d" % (P + 8 * i + q, P + 8 * i + q))

def norm4(a, P, E, T):
    MX = [T + 0, T + 2, T + 4, T + 6]; MN = [T + 8, T + 10, T + 12, T + 14]
    for i in range(4):
        e = E + 8 * i; p = P + 8 * i
        a(pk("v_pk_add_f32", MX[i], e, e + 2)); a(pk("v_pk_add_f32", MN[i], p, p + 2))
    for i in range(4):
        e = E + 8 * i; p = P + 8 * i
        a(pk("v_pk_add_f32", MX[i], MX[i], e + 4)); a(pk("v_pk_add_f32", MN[i], MN[i], p + 4))
    for i in range(4):
        e = E + 8 * i; p = P + 8 * i
        a(pk("v_pk_add_f32", MX[i], MX[i], e + 6)); a(pk("v_pk_add_f32", MN[i], MN[i], p + 6))
    for i in range(4):
        a("v_add_f32 v%d, v%d, v%d" % (MX[i], MX[i], MX[i] + 1)); a("v_add_f32 v%d, v%d, v%d" % (MN[i], MN[i], MN[i] + 1))
    interleave(a, lambda b: allreduce4(b, "v_add_f32", MX, None), lambda b: allreduce4(b, "v_add_f32", MN, None))
    for i in range(4):
        a("v_rcp_f32 v%d, v%d" % (MX[i], MX[i])); a("v_rcp_f32 v%d, v%d" % (MN[i], MN[i]))
    for i in range(4):
        for h in range(4):
            p = P + 8 * i + 2 * h; e = E + 8 * i + 2 * h
            a(pk("v_pk_mul_f32", e, e, MX[i], mods="op_sel_hi:[1,0]")); a(pk("v_pk_mul_f32", p, p, MN[i], mods="op_sel_hi:[1,0]"))

def interleave(a, f, g):
    x = Asm(); y = Asm(); f(x); g(y)
    for i in range(max(len(x.lines), len(y.lines))):
        if i < len(x.lines): a.lines.append(x.lines[i])
        if i < len(y.lines): a.lines.append(y.lines[i])

def wphi_loads(a, WP, s_head, vtmp):
    a("s_lshl_b32 s41, s%d, 11" % s_head)
    a("v_lshrrev_b32 v%d, 4, v1" % vtmp); a("v_lshlrev_b32 v%d, 8, v%d" % (vtmp, vtmp))
    a("v_and_b32 v%d, 15, v1" % (vtmp + 1)); a("v_lshl_add_u32 v%d, v%d, 1, v%d" % (vtmp, vtmp + 1, vtmp)); a("v_add_u32 v%d, s41, v%d" % (vtmp, vtmp))
    for u in range(2):
        for j in range(8):
            d_off = (16 * (j >> 2) + (j & 3)) * 64 + u * 32
            a("buffer_load_ushort v%d, v%d, s[12:15], 0 offen offset:%d" % (WP + u * 8 + j, vtmp, d_off))
def wphi_pack(a, WP):
    for u in range(2):
        for p in range(4):
            a("v_lshl_or_b32 v%d, v%d, 16, v%d" % (WP + u * 4 + p, WP + u * 8 + 2 * p + 1, WP + u * 8 + 2 * p))

def spin_wait(a, lbl, srd, s_off, target, vtmp):
    a("s_mov_b32 s77, 0x40000")
    a("v_mov_b32 v%d, 0" % (vtmp + 1))
    a.label(lbl)
    a("buffer_load_dword v%d, v%d, s[%d:%d], s%d offen sc1" % (vtmp, vtmp + 1, srd, srd + 3, s_off))
    a("s_waitcnt vmcnt(0)")
    a("v_readfirstlane_b32 s78, v%d" % vtmp)
    a("s_cmp_ge_u32 s78, %d" % target); a("s_cbranch_scc1 %s_done" % lbl)
    a("s_sleep 1")
    a("s_sub_u32 s77, s77, 1"); a("s_cmp_lg_u32 s77, 0"); a("s_cbranch_scc1 %s" % lbl)
    a.label(lbl + "_done")

def signal(a, lbl, srd, s_off, vtmp):
    a("v_mov_b32 v%d, 1" % vtmp); a("v_mov_b32 v%d, 0" % (vtmp + 1))
    a("s_mov_b64 s[78:79], exec"); a("s_mov_b64 exec, 1")
    a("buffer_atomic_add v%d, v%d, s[%d:%d], s%d offen" % (vtmp, vtmp + 1, srd, srd + 3, s_off))
    a("s_mov_b64 exec, s[78:79]")

def allreduce2(a, op, r0, r1, t):
    a("v_permlane32_swap_b32 v%d, v%d" % (r0, r1)); a("%s v%d, v%d, v%d" % (op, r0, r0, r1))
    a("v_mov_b32 v%d, v%d" % (t, r0)); a("v_permlane16_swap_b32 v%d, v%d" % (r0, t)); a("%s v%d, v%d, v%d" % (op, r0, r0, t))
    a("v_mov_b32 v%d, v%d" % (r1, r0)); a("v_permlane32_swap_b32 v%d, v%d" % (r0, r1))

def gen_k1(a):
    name = "ka_kernel"; L = "K1"
    c = Cfg(MT=4, NT=6, K=1024, NS=3, nblk=3, ldb=6144, acc0=112, swap_tiles={4, 5})
    XCH = c.lds
    KVF = XCH + 16384
    FLG = c.lds + 32768
    lds_total = c.lds + 32768 + 256
    SW = 'sc1'
    LDF = OPT.get('ldf', '')
    kernel_header(a, name)
    a("s_cmp_ge_u32 s2, 256"); a("s_cbranch_scc1 K1_end")
    stamp(a, 0)
    ld_ptr(a, 34, 'ws'); ld_ptr(a, 32, 'wqkv'); ld_ptr(a, 36, 'wphi'); ld_ptr(a, 60, 'wo'); ld_ptr(a, 62, 'w2'); ld_ptr(a, 64, 'x')
    wave_lane(a)
    tile_map(a, '8x4')
    a("s_lshl_b32 s44, s17, 3")
    for b in range(3):
        a("s_lshl_b32 s%d, s18, 7" % (45 + b)); a("s_add_u32 s%d, s%d, %d" % (45 + b, 45 + b, b * 2048))
    a("s_waitcnt lgkmcnt(0)")
    make_srd(a, S_SRDA, 34, 4 * MB, off=WS_XN)
    make_srd(a, S_SRDB, 32, 1024 * 3072 * 2)
    a("s_cmp_ge_u32 s%d, 4" % S_WAVE); a("s_cbranch_scc1 K1_loader")
    vA = 2; vB = [3, 4]
    compute_setup(a, c, vA, vB, tmp=9)
    a("s_lshl_b32 s25, s39, 6"); a("v_xor_b32 v3, s25, v3"); a("v_xor_b32 v4, 32, v3")
    tm = [(vB[j & 1], c.blk_off[j >> 1]) for j in range(6)]
    make_srd(a, 12, 36, 32 * 32 * 32 * 2)
    a("s_lshl_b32 s45, s18, 1"); a("s_add_u32 s45, s45, s39")
    WP = 96
    wphi_loads(a, WP, 45, 9)
    c.after_b0 = lambda a: stamp(a, 1)
    compute_loop(a, c, L, tm, vA)
    stamp(a, 2)
    def acc(i, j): return c.acc0 + (i * 6 + j) * 4
    F = 16
    for i in range(4):
        for jj in range(2):
            b = acc(i, 2 + jj)
            a("v_cvt_pk_bf16_f32 v%d, v%d, v%d" % (F + i * 4 + jj * 2, b, b + 1)); a("v_cvt_pk_bf16_f32 v%d, v%d, v%d" % (F + i * 4 + jj * 2 + 1, b + 2, b + 3))
    for ms in range(2):
        for dt in range(2):
            r = 32 + (ms * 2 + dt) * 4
            for h in range(2):
                b = acc(2 * ms + h, 4 + dt)
                a("v_cvt_pk_bf16_f32 v%d, v%d, v%d" % (r + 2 * h, b, b + 1)); a("v_cvt_pk_bf16_f32 v%d, v%d, v%d" % (r + 2 * h + 1, b + 2, b + 3))
    a("v_lshlrev_b32 v9, 4, v1"); a("s_lshl_b32 s41, s%d, 13" % S_WAVE); a("s_add_u32 s41, s41, %d" % XCH); a("v_add_u32 v9, s41, v9")
    for t in range(8): a("ds_write_b128 v9, v[%d:%d] offset:%d" % (F + t * 4, F + t * 4 + 3, t * 1024))
    for i in range(4):
        for jj in range(2):
            b = acc(i, jj)
            a("v_cvt_pk_bf16_f32 v%d, v%d, v%d" % (48 + i * 4 + jj * 2, b, b + 1)); a("v_cvt_pk_bf16_f32 v%d, v%d, v%d" % (48 + i * 4 + jj * 2 + 1, b + 2, b + 3))
    a("s_waitcnt lgkmcnt(0)"); a("s_barrier")
    a("s_waitcnt vmcnt(0)")
    wphi_pack(a, WP)
    a("s_mov_b32 s46, 0x%x" % LOG2E); a("s_mov_b32 s47, 0x%x" % LOG2E)
    Pq = 112; Eq = 144; Tq = 176; PQ = 208
    for i in range(4):
        for u in range(2):
            a("%s v[%d:%d], v[%d:%d], v[%d:%d], 0" % (MF, Pq + i * 8 + u * 4, Pq + i * 8 + u * 4 + 3, WP + u * 4, WP + u * 4 + 3, 48 + i * 4, 48 + i * 4 + 3))
    exp4(a, Pq, Eq, Tq)
    for i in range(4):
        for q in range(4):
            a("v_cvt_pk_bf16_f32 v%d, v%d, v%d" % (PQ + i * 8 + q, Eq + 8 * i + 2 * q, Eq + 8 * i + 2 * q + 1))
            a("v_cvt_pk_bf16_f32 v%d, v%d, v%d" % (PQ + i * 8 + 4 + q, Pq + 8 * i + 2 * q, Pq + 8 * i + 2 * q + 1))
    make_srd(a, 48, 62, 3584 * 1024 * 2)
    a("s_lshl_b32 s40, s2, 2"); a("s_add_u32 s40, s40, s%d" % S_WAVE); a("s_lshl_b32 s40, s40, 13")
    a("v_lshlrev_b32 v9, 7, v1")
    touch(a, 240, 9, 48, "s40")
    a("s_branch KA_common")
    a.label("K1_loader")
    Ld = loader_setup(a, c, 44, ["s45", "s46", "s47"])
    a("s_sub_u32 s49, s%d, 4" % S_WAVE)
    WP = 96
    a("s_lshr_b32 s38, s49, 1"); a("s_and_b32 s39, s49, 1")
    make_srd(a, 12, 36, 32 * 32 * 32 * 2)
    a("s_lshl_b32 s48, s18, 1"); a("s_add_u32 s48, s48, s39")
    a("v_lshlrev_b32 v28, 2, v1"); a("v_add_u32 v28, %d, v28" % FLG); a("v_mov_b32 v29, 0")
    a("ds_write_b32 v28, v29"); a("s_waitcnt lgkmcnt(0)")
    def tail2(a):
        wphi_loads(a, WP, 48, 30)
    loader_loop(a, c, Ld, L, tail_loads=tail2, n_tail=16)
    a("s_mov_b32 s46, 0x%x" % LOG2E); a("s_mov_b32 s47, 0x%x" % LOG2E)
    make_srd(a, 52, 34, 8 * MB, off=WS_KVP)
    a("s_waitcnt vmcnt(0)")
    wphi_pack(a, WP)
    a("s_barrier")
    if OPT.get('kprio', 1): a("s_setprio 3")
    stamp(a, 0)
    a("v_lshlrev_b32 v9, 4, v1"); a("s_lshl_b32 s41, s49, 13"); a("s_add_u32 s41, s41, %d" % XCH); a("v_add_u32 v9, s41, v9")
    for t in range(4): a("ds_read_b128 v[%d:%d], v9 offset:%d" % (16 + t * 4, 19 + t * 4, t * 1024))
    a("s_waitcnt lgkmcnt(0)")
    Pk = 112; Ek = 144; Tk = 176
    for i in range(4):
        for u in range(2):
            a("%s v[%d:%d], v[%d:%d], v[%d:%d], 0" % (MF, Pk + i * 8 + u * 4, Pk + i * 8 + u * 4 + 3, WP + u * 4, WP + u * 4 + 3, 16 + i * 4, 16 + i * 4 + 3))
    a("v_and_b32 v9, 15, v1"); a("v_lshlrev_b32 v10, 7, v9")
    a("v_bfe_u32 v11, v1, 1, 2"); a("v_lshlrev_b32 v11, 1, v11")
    a("v_lshrrev_b32 v12, 5, v1"); a("v_xor_b32 v11, v11, v12"); a("v_lshl_add_u32 v10, v11, 4, v10")
    a("v_bfe_u32 v11, v1, 4, 1"); a("v_lshl_add_u32 v10, v11, 3, v10")
    a("s_lshl_b32 s41, s39, 14"); a("s_lshl_b32 s42, s38, 13"); a("s_add_u32 s41, s41, s42"); a("v_add_u32 v10, s41, v10")
    for k in range(1, 4): a("v_xor_b32 v%d, %d, v10" % (10 + k, k * 32))
    exp4(a, Pk, Ek, Tk)
    norm4(a, Pk, Ek, Tk)
    for i in range(4):
        r = 16 + i * 8
        for q in range(4):
            a("v_cvt_pk_bf16_f32 v%d, v%d, v%d" % (r + q, Ek + 8 * i + 2 * q, Ek + 8 * i + 2 * q + 1))
            a("v_cvt_pk_bf16_f32 v%d, v%d, v%d" % (r + 4 + q, Pk + 8 * i + 2 * q, Pk + 8 * i + 2 * q + 1))
        a("ds_write_b64 v10, v[%d:%d] offset:%d" % (r, r + 1, i * 2048)); a("ds_write_b64 v11, v[%d:%d] offset:%d" % (r + 2, r + 3, i * 2048))
        a("ds_write_b64 v12, v[%d:%d] offset:%d" % (r + 4, r + 5, i * 2048)); a("ds_write_b64 v13, v[%d:%d] offset:%d" % (r + 6, r + 7, i * 2048))
    tr_pattern(a, 3, 14)
    a("s_lshl_b32 s41, s39, 14"); a("v_add_u32 v3, s41, v3")
    a("s_lshl_b32 s41, s38, 6"); a("v_xor_b32 v3, s41, v3"); a("v_xor_b32 v4, 32, v3")
    a("v_lshlrev_b32 v9, 4, v1"); a("s_lshl_b32 s41, s39, 13"); a("s_add_u32 s41, s41, %d" % (XCH + 4096)); a("v_add_u32 v9, s41, v9")
    for wmp in range(2):
        for t in range(4): a("ds_read_b128 v[%d:%d], v9 offset:%d" % (48 + (wmp * 4 + t) * 4, 51 + (wmp * 4 + t) * 4, wmp * 16384 + t * 1024))
    for q in range(4): a("v_mov_b32 v%d, 0x3f803f80" % (88 + q))
    stamp(a, 1)
    a("s_waitcnt lgkmcnt(0)")
    a("s_lshl_b32 s41, s49, 2"); a("s_add_u32 s41, s41, %d" % FLG); a("v_mov_b32 v14, s41"); a("v_mov_b32 v15, 1")
    a("ds_write_b32 v14, v15")
    a("v_xor_b32 v14, 8, v14")
    a("s_mov_b32 s77, 0x100000")
    a.label("KA_pair")
    a("ds_read_b32 v15, v14"); a("s_waitcnt lgkmcnt(0)"); a("v_readfirstlane_b32 s78, v15")
    a("s_cmp_eq_u32 s78, 1"); a("s_cbranch_scc1 KA_pair_done")
    a("s_sub_u32 s77, s77, 1"); a("s_cmp_lg_u32 s77, 0"); a("s_cbranch_scc1 KA_pair")
    a.label("KA_pair_done")
    stamp(a, 2)
    for ms in range(4):
        for ftl in range(2):
            r = 16 + (ms * 2 + ftl) * 4
            a("ds_read_b64_tr_b16 v[%d:%d], v%d offset:%d" % (r, r + 1, 3 + ftl, ms * 4096))
            a("ds_read_b64_tr_b16 v[%d:%d], v%d offset:%d" % (r + 2, r + 3, 3 + ftl, ms * 4096 + 2048))
    KV = 112
    for ms in range(4):
        a("s_waitcnt lgkmcnt(%d)" % (12 - 4 * ms))
        for ftl in range(2):
            for dt in range(3):
                d = KV + (ftl * 3 + dt) * 4
                B = (48 + (ms * 2 + dt) * 4) if dt < 2 else 88
                A = 16 + (ms * 2 + ftl) * 4
                cin = "0" if ms == 0 else "v[%d:%d]" % (d, d + 3)
                a("%s v[%d:%d], v[%d:%d], v[%d:%d], %s" % (MF, d, d + 3, A, A + 3, B, B + 3, cin))
    a("s_lshl_b32 s41, s48, 4"); a("s_add_u32 s41, s41, s17"); a("s_mul_i32 s41, s41, %d" % KVP_STRIDE)
    a("s_lshl_b32 s42, s38, 11"); a("s_add_u32 s42, s42, s41")
    a("v_lshlrev_b32 v9, 4, v1"); a("v_add_u32 v9, s42, v9")
    for ftl in range(2):
        for dt in range(3):
            d = KV + (ftl * 3 + dt) * 4
            o = 16 + ftl * 8 + dt * 2
            a("v_cvt_pk_bf16_f32 v%d, v%d, v%d" % (o, d, d + 1)); a("v_cvt_pk_bf16_f32 v%d, v%d, v%d" % (o + 1, d + 2, d + 3))
        a("buffer_store_dwordx4 v[%d:%d], v9, s[52:55], 0 offen offset:%d %s" % (16 + ftl * 8, 19 + ftl * 8, ftl * 1024, SW))
    a("v_lshrrev_b32 v9, 4, v1"); a("v_lshlrev_b32 v9, 3, v9"); a("s_lshl_b32 s42, s38, 6"); a("s_add_u32 s41, s41, s42"); a("s_add_u32 s41, s41, 4096"); a("v_add_u32 v9, s41, v9")
    a("v_and_b32 v10, 15, v1"); a("v_cmp_eq_u32 vcc, 0, v10"); a("s_and_saveexec_b64 s[40:41], vcc")
    for ftl in range(2):
        a("buffer_store_dwordx2 v[%d:%d], v9, s[52:55], 0 offen offset:%d %s" % (20 + ftl * 8, 21 + ftl * 8, ftl * 32, SW))
    a("s_mov_b64 exec, s[40:41]")
    if STAMP['on']:
        a("s_memrealtime s[98:99]"); a("s_waitcnt lgkmcnt(0)")
    a("s_waitcnt vmcnt(0)")
    if STAMP['on']:
        a("s_memrealtime s[100:101]"); a("s_waitcnt lgkmcnt(0)")
    a("v_mov_b32 v14, %d" % (FLG + 16)); a("v_mov_b32 v15, 1")
    a("s_mov_b64 s[78:79], exec"); a("s_mov_b64 exec, 1"); a("ds_add_u32 v14, v15"); a("s_mov_b64 exec, s[78:79]")
    a("s_waitcnt lgkmcnt(0)")
    if OPT.get('kprio', 1): a("s_setprio 0")
    a.label("KA_common")
    stamp(a, 3)
    if OPT.get('gmap', 1):
        a("s_and_b32 s30, s2, 7"); a("s_lshl_b32 s30, s30, 1"); a("s_bfe_u32 s31, s2, 0x10003"); a("s_add_u32 s30, s30, s31"); a("s_lshr_b32 s31, s2, 4")
    else:
        a("s_mov_b32 s30, s17"); a("s_mov_b32 s31, s18")
    make_srd(a, 52, 34, 8 * MB, off=WS_KVP)
    make_srd(a, 56, 34, 65536, off=WS_CNT)
    a("s_lshl_b32 s50, s18, 8")
    a("s_lshl_b32 s51, s17, 8"); a("s_add_u32 s51, s51, 4096")
    a("s_lshl_b32 s29, s30, 8"); a("s_add_u32 s29, s29, 4096")
    a("s_cmp_lg_u32 s%d, 4" % S_WAVE); a("s_cbranch_scc1 KA_nopoll1")
    a("v_mov_b32 v14, %d" % (FLG + 16)); a("s_mov_b32 s77, 0x100000")
    a.label("KA_dr")
    a("ds_read_b32 v15, v14"); a("s_waitcnt lgkmcnt(0)"); a("v_readfirstlane_b32 s78, v15")
    a("s_cmp_eq_u32 s78, 4"); a("s_cbranch_scc1 KA_dr_done")
    a("s_sub_u32 s77, s77, 1"); a("s_cmp_lg_u32 s77, 0"); a("s_cbranch_scc1 KA_dr")
    a.label("KA_dr_done")
    signal(a, "KA_s1", 56, 50, 40)
    spin_wait(a, "KA_p1", 56, 50, 16, 40)
    a.label("KA_nopoll1")
    a("s_barrier")
    stamp(a, 4)
    a("s_and_b32 s40, s%d, 1" % S_WAVE); a("s_lshr_b32 s41, s%d, 1" % S_WAVE)
    a("s_lshl_b32 s42, s18, 1"); a("s_add_u32 s42, s42, s40"); a("s_mul_i32 s42, s42, %d" % (16 * KVP_STRIDE))
    a("v_lshlrev_b32 v2, 4, v1"); a("s_lshl_b32 s43, s41, 10"); a("s_add_u32 s43, s43, s42"); a("v_add_u32 v3, s43, v2")
    a("v_lshrrev_b32 v4, 2, v1"); a("s_mov_b32 s43, %d" % KVP_STRIDE); a("v_mul_lo_u32 v4, v4, s43"); a("v_and_b32 v6, 3, v1"); a("v_lshl_add_u32 v4, v6, 3, v4")
    a("s_lshl_b32 s43, s41, 5"); a("s_add_u32 s43, s43, s42"); a("s_add_u32 s43, s43, 4096"); a("v_add_u32 v4, s43, v4")
    a("buffer_load_dwordx2 v[10:11], v4, s[52:55], 0 offen %s" % LDF)
    a("s_mov_b32 s43, 0")
    for p in range(16):
        a("buffer_load_dwordx4 v[%d:%d], v3, s[52:55], s43 offen %s" % (32 + p * 4, 35 + p * 4, LDF))
        if p < 15: a("s_add_u32 s43, s43, %d" % KVP_STRIDE)
    def reduce_code(extra):
        a("s_waitcnt vmcnt(%d)" % min(63, 16 + extra))
        a("v_lshlrev_b32 v12, 16, v10"); a("v_and_b32 v13, 0xffff0000, v10"); a("v_lshlrev_b32 v14, 16, v11"); a("v_and_b32 v15, 0xffff0000, v11")
        for sh in (4, 8):
            for q in range(4): a("v_add_f32_dpp v%d, v%d, v%d row_ror:%d row_mask:0xf bank_mask:0xf" % (12 + q, 12 + q, 12 + q, sh))
        allreduce4(a, "v_add_f32", [12, 13, 14, 15], None)
        a("v_cvt_pk_bf16_f32 v10, v12, v13"); a("v_cvt_pk_bf16_f32 v11, v14, v15")
        a("v_and_b32 v6, 3, v1"); a("v_lshlrev_b32 v6, 3, v6"); a("s_lshl_b32 s43, s41, 5"); a("s_lshl_b32 s45, s40, 13"); a("s_add_u32 s43, s43, s45"); a("s_add_u32 s43, s43, %d" % (KVF + 4096)); a("v_add_u32 v6, s43, v6")
        a("ds_write_b64 v6, v[10:11]")
        for p in range(16):
            if p % 4 == 0: a("s_waitcnt vmcnt(%d)" % (12 - p + extra))
            r = 32 + p * 4
            for dw in range(4):
                t = 24 + 2 * (dw & 1)
                a("v_lshlrev_b32 v%d, 16, v%d" % (t, r + dw)); a("v_and_b32 v%d, 0xffff0000, v%d" % (t + 1, r + dw))
                if p == 0: a("v_mov_b32 v%d, v%d" % (16 + 2 * dw, t)); a("v_mov_b32 v%d, v%d" % (17 + 2 * dw, t + 1))
                else: a(pk("v_pk_add_f32", 16 + 2 * dw, 16 + 2 * dw, t))
        a("v_lshlrev_b32 v6, 3, v1"); a("s_lshl_b32 s43, s41, 9"); a("s_add_u32 s43, s43, s45"); a("s_add_u32 s43, s43, %d" % KVF); a("v_add_u32 v7, s43, v6")
        for dt in range(2):
            a("v_cvt_pk_bf16_f32 v28, v%d, v%d" % (16 + dt * 4, 17 + dt * 4)); a("v_cvt_pk_bf16_f32 v29, v%d, v%d" % (18 + dt * 4, 19 + dt * 4))
            a("ds_write_b64 v7, v[28:29] offset:%d" % (dt * 2048))
        a("s_waitcnt lgkmcnt(0)"); a("s_barrier")
    a("s_cmp_lt_u32 s%d, 4" % S_WAVE); a("s_cbranch_scc1 KA_redc")
    reduce_code(0)
    make_srd(a, 8, 60, 1024 * 1024 * 2)
    a("v_lshrrev_b32 v7, 3, v1"); a("v_lshlrev_b32 v7, 11, v7")
    a("v_bfe_u32 v8, v1, 4, 2"); a("v_lshlrev_b32 v8, 1, v8"); a("v_and_b32 v9, 7, v1"); a("v_xor_b32 v8, v8, v9"); a("v_lshl_add_u32 v7, v8, 4, v7")
    a("s_lshl_b32 s43, s49, 15"); a("s_lshl_b32 s45, s31, 7"); a("s_add_u32 s43, s43, s45"); a("v_add_u32 v7, s43, v7")
    a("v_add_u32 v8, %d, v7" % (8 * 2048 - 1024))
    a("s_lshl_b32 s45, s49, 11"); a("s_mov_b32 s43, 0")
    for t in range(16):
        a("s_add_u32 m0, s45, %d" % (t * 8192))
        a("buffer_load_dwordx4 v7, s[8:11], s43 offen lds")
        a("buffer_load_dwordx4 v8, s[8:11], s43 offen offset:1024 lds")
        if t < 15: a("s_add_u32 s43, s43, %d" % (64 * 2048))
    a("s_waitcnt vmcnt(0)")
    stamp(a, 6)
    make_srd(a, 12, 34, 4 * MB, off=WS_O)
    a("v_lshlrev_b32 v2, 4, v1")
    a("s_barrier")
    a("s_branch KA_pre7")
    a.label("KA_redc")
    reduce_code(0)
    stamp(a, 5)
    a("v_lshlrev_b32 v6, 3, v1"); a("s_lshl_b32 s43, s39, 13"); a("s_add_u32 s43, s43, %d" % KVF); a("v_add_u32 v6, s43, v6")
    for dt in range(2):
        for fs in range(2):
            r = 32 + (dt * 2 + fs) * 4
            a("ds_read_b64 v[%d:%d], v6 offset:%d" % (r, r + 1, dt * 2048 + (2 * fs) * 512))
            a("ds_read_b64 v[%d:%d], v6 offset:%d" % (r + 2, r + 3, dt * 2048 + (2 * fs + 1) * 512))
    a("v_lshrrev_b32 v7, 4, v1"); a("v_lshlrev_b32 v7, 3, v7"); a("v_add_u32 v7, s43, v7")
    for fs in range(2):
        a("ds_read_b64 v[%d:%d], v7 offset:%d" % (48 + fs * 4, 49 + fs * 4, 4096 + (2 * fs) * 32))
        a("ds_read_b64 v[%d:%d], v7 offset:%d" % (50 + fs * 4, 51 + fs * 4, 4096 + (2 * fs + 1) * 32))
    for q in range(4): a("v_mov_b32 v%d, 0x3f803f80" % (56 + q))
    a("s_waitcnt lgkmcnt(0)")
    RB = 64
    for i in range(4):
        R = RB + i * 32
        for fs in range(2):
            B = PQ + (i * 2 + fs) * 4
            for dt in range(2):
                d = R + (fs * 2 + dt) * 4; A = 32 + (dt * 2 + fs) * 4
                a("%s v[%d:%d], v[%d:%d], v[%d:%d], 0" % (MF, d, d + 3, A, A + 3, B, B + 3))
            a("%s v[%d:%d], v[%d:%d], v[%d:%d], 0" % (MF, R + 16 + fs * 4, R + 19 + fs * 4, 48 + fs * 4, 51 + fs * 4, B, B + 3))
            a("%s v[%d:%d], v[56:59], v[%d:%d], 0" % (MF, R + 24 + fs * 4, R + 27 + fs * 4, B, B + 3))
    make_srd(a, 12, 34, 4 * MB, off=WS_O)
    a("s_lshl_b32 s40, s38, 2"); a("s_add_u32 s40, s40, s44"); a("s_lshl_b32 s40, s40, 5"); a("s_lshl_b32 s41, s18, 1"); a("s_add_u32 s41, s41, s39"); a("s_add_u32 s40, s40, s41"); a("s_lshl_b32 s40, s40, 10")
    a("v_add_u32 v5, s40, v2"); a("v_xor_b32 v8, 1024, v5")
    for i in range(4):
        R = RB + i * 32
        a("v_rcp_f32 v%d, v%d" % (R + 24, R + 24)); a("v_rcp_f32 v%d, v%d" % (R + 28, R + 28))
    for i in range(4):
        R = RB + i * 32
        a("v_mul_f32 v%d, v%d, v%d" % (R + 16, R + 16, R + 24)); a("v_fma_f32 v%d, v%d, v%d, v%d" % (R + 16, R + 20, R + 28, R + 16))
        a("v_add_f32 v%d, 0x358637bd, v%d" % (R + 16, R + 16))
    for i in range(4):
        R = RB + i * 32
        a("v_rcp_f32 v%d, v%d" % (R + 16, R + 16))
    for i in range(4):
        R = RB + i * 32
        a("v_mul_f32 v%d, v%d, v%d" % (R + 24, R + 24, R + 16)); a("v_mul_f32 v%d, v%d, v%d" % (R + 28, R + 28, R + 16))
    a("s_mov_b32 s43, 0")
    for i in range(4):
        R = RB + i * 32
        for h in range(4): a(pk("v_pk_mul_f32", R + 2 * h, R + 2 * h, R + 24, mods="op_sel_hi:[1,0]"))
        for h in range(4): a(pk("v_pk_fma_f32", R + 2 * h, R + 8 + 2 * h, R + 28, R + 2 * h, mods="op_sel_hi:[1,0,1]"))
        for h in range(4): a("v_cvt_pk_bf16_f32 v%d, v%d, v%d" % (16 + i * 4 + h, R + 2 * h, R + 2 * h + 1))
        a("buffer_store_dwordx4 v[%d:%d], v%d, s[12:15], s43 offen %s" % (16 + i * 4, 19 + i * 4, 5 if i % 2 == 0 else 8, SW))
        if i < 3: a("s_add_u32 s43, s43, %d" % (32 * 1024))
    if STAMP['on']:
        a("s_memrealtime s[98:99]"); a("s_waitcnt lgkmcnt(0)")
    a("s_waitcnt vmcnt(0)")
    a("s_barrier")
    if STAMP['on']:
        a("s_memrealtime s[100:101]"); a("s_waitcnt lgkmcnt(0)")
    a.label("KA_pre7")
    a("s_mov_b32 s17, s30"); a("s_mov_b32 s18, s31"); a("s_lshl_b32 s44, s30, 3")
    make_srd(a, 8, 64, 2048 * 1024 * 2)
    a("s_lshl_b32 s40, s17, 7"); a("s_lshl_b32 s41, s%d, 4" % S_WAVE); a("s_add_u32 s40, s40, s41")
    a("v_and_b32 v9, 15, v1"); a("v_add_u32 v241, s40, v9"); a("v_lshlrev_b32 v9, 11, v241")
    a("s_lshl_b32 s41, s18, 7"); a("v_lshrrev_b32 v10, 4, v1"); a("v_lshl_add_u32 v9, v10, 3, v9"); a("v_add_u32 v9, s41, v9")
    a("s_cmp_lg_u32 s%d, 0" % S_WAVE); a("s_cbranch_scc1 KA_nopoll2")
    signal(a, "KA_s2", 56, 51, 40)
    spin_wait(a, "KA_p2", 56, 29, 16, 40)
    a.label("KA_nopoll2")
    a("s_barrier")
    stamp(a, 6)
    D = 8; AR = 16; BR = 80; AC = 176
    a("s_add_u32 s40, s%d, s44" % S_WAVE); a("s_lshl_b32 s40, s40, 15")
    a("v_add_u32 v3, s40, v2")
    tr_pattern(a, 5, 14)
    for t in range(1, 4): a("v_xor_b32 v%d, %d, v5" % (5 + t, t * 32))
    def aload1(k):
        a("buffer_load_dwordx4 v[%d:%d], v3, s[12:15], s42 offen %s" % (AR + k * 4, AR + k * 4 + 3, LDF))
        a("s_add_u32 s43, s43, 1024"); a("s_and_b32 s43, s43, 0x7fff"); a("s_xor_b32 s42, s43, s45")
    for j in range(4):
        a("buffer_load_dwordx2 v[%d:%d], v9, s[8:11], 0 offen offset:%d" % (208 + j * 2, 209 + j * 2, j * 32))
    a("s_and_b32 s43, s18, 3"); a("s_lshl_b32 s43, s43, 13")
    a("s_lshl_b32 s41, s43, 2")
    for t in range(4): a("v_add_u32 v%d, s41, v%d" % (5 + t, 5 + t))
    a("s_and_b32 s45, s%d, 1" % S_WAVE); a("s_lshl_b32 s45, s45, 10")
    a("s_xor_b32 s42, s43, s45")
    for k in range(D): aload1(k)
    for q in range(16): a("v_mov_b32 v%d, 0" % (AC + q))
    sch = LgkmSched(a)
    def bread_list(setb, k):
        return [("ds_read_b64_tr_b16 v[%d:%d], v%d offset:%d" % (setb + j * 4 + jj * 2, setb + j * 4 + jj * 2 + 1, 5 + j, k * 4096 + jj * 2048), (setb, j)) for j in range(4) for jj in range(2)]
    def body(last):
        for k in range(D):
            cur = BR + (k & 1) * 16; nxt = BR + ((k + 1) & 1) * 16
            if k < D - 1: rd = bread_list(nxt, k + 1)
            elif not last:
                for t in range(4): a("v_add_u32 v%d, %d, v%d" % (5 + t, D * 4096, 5 + t)); a("v_and_b32 v%d, 0x1ffff, v%d" % (5 + t, 5 + t))
                rd = bread_list(nxt, 0)
            else: rd = []
            a("s_waitcnt vmcnt(%d)" % ((D - 1) if not last else (D - 1 - k)))
            for j in range(4):
                sch.need({(cur, j)})
                d = AC + j * 4
                a("%s v[%d:%d], v[%d:%d], v[%d:%d], v[%d:%d]" % (MF, d, d + 3, cur + j * 4, cur + j * 4 + 3, AR + k * 4, AR + k * 4 + 3, d, d + 3))
                for m in (2 * j, 2 * j + 1):
                    if m < len(rd): sch.issue(*rd[m])
            if not last: aload1(k)
    for t_ in bread_list(BR, 0): sch.issue(*t_)
    q0 = list(sch.q)
    a("s_mov_b32 s46, 3")
    a.label("KA_gloop")
    body(False)
    assert sch.q == q0, (sch.q, q0)
    a("s_sub_u32 s46, s46, 1"); a("s_cmp_lg_u32 s46, 0"); a("s_cbranch_scc1 KA_gloop")
    body(True)
    stamp(a, 7)
    make_srd(a, 48, 34, 4 * MB, off=WS_H)
    make_srd(a, 52, 34, 1 * MB, off=WS_STATS)
    for j in range(4):
        for h in range(2):
            a("v_lshlrev_b32 v%d, 16, v%d" % (16 + j * 4 + 2 * h, 208 + j * 2 + h)); a("v_and_b32 v%d, 0xffff0000, v%d" % (17 + j * 4 + 2 * h, 208 + j * 2 + h))
    for q in range(8): a(pk("v_pk_add_f32", AC + 2 * q, AC + 2 * q, 16 + 2 * q))
    a("s_lshl_b32 s41, s18, 11"); a("s_add_u32 s40, s40, s41"); a("v_add_u32 v14, s40, v2")
    for jp in range(2):
        d = 48 + jp * 4
        for q in range(4): a("v_cvt_pk_bf16_f32 v%d, v%d, v%d" % (d + q, AC + jp * 8 + 2 * q, AC + jp * 8 + 2 * q + 1))
        a("buffer_store_dwordx4 v[%d:%d], v14, s[48:51], 0 offen offset:%d %s" % (d, d + 3, jp * 1024, st_flags('h')))
    a(pk("v_pk_add_f32", 16, AC, AC + 2)); a(pk("v_pk_add_f32", 18, AC + 4, AC + 6)); a(pk("v_pk_add_f32", 20, AC + 8, AC + 10)); a(pk("v_pk_add_f32", 22, AC + 12, AC + 14))
    a(pk("v_pk_add_f32", 16, 16, 18)); a(pk("v_pk_add_f32", 20, 20, 22)); a(pk("v_pk_add_f32", 16, 16, 20)); a("v_add_f32 v16, v16, v17")
    def xl(r, t):
        a("v_mov_b32 v%d, v%d" % (t, r)); a("v_permlane32_swap_b32 v%d, v%d" % (r, t)); a("v_add_f32 v%d, v%d, v%d" % (r, r, t))
        a("v_mov_b32 v%d, v%d" % (t, r)); a("v_permlane16_swap_b32 v%d, v%d" % (r, t)); a("v_add_f32 v%d, v%d, v%d" % (r, r, t))
    xl(16, 24)
    a("v_mul_f32 v16, 0x3c800000, v16")
    for q in range(8): a(pk("v_pk_add_f32", AC + 2 * q, AC + 2 * q, 16, mods="op_sel_hi:[1,0] neg_lo:[0,1] neg_hi:[0,1]"))
    a(pk("v_pk_mul_f32", 20, AC, AC)); a(pk("v_pk_mul_f32", 22, AC + 2, AC + 2))
    for q in range(2, 8): a(pk("v_pk_fma_f32", 20 + 2 * (q & 1), AC + 2 * q, AC + 2 * q, 20 + 2 * (q & 1)))
    a(pk("v_pk_add_f32", 20, 20, 22)); a("v_add_f32 v17, v20, v21")
    xl(17, 24)
    a("v_lshlrev_b32 v13, 7, v241"); a("s_lshl_b32 s41, s18, 3"); a("v_add_u32 v13, s41, v13")
    a("v_cmp_gt_u32 vcc, 16, v1"); a("s_and_saveexec_b64 s[56:57], vcc")
    a("buffer_store_dwordx2 v[16:17], v13, s[52:55], 0 offen %s" % st_flags('h'))
    a("s_mov_b64 exec, s[56:57]")
    if STAMP['on']:
        lbl = "ST_skip_ka"
        a("s_waitcnt vmcnt(0)")
        a("s_memrealtime s[96:97]"); a("s_waitcnt lgkmcnt(0)")
        a("s_cmp_lg_u32 s%d, 0" % S_WAVE); a("s_cbranch_scc1 %s" % lbl)
        a("s_load_dwordx2 s[70:71], s[0:1], %d" % KERNARG['ws']); a("s_waitcnt lgkmcnt(0)")
        make_srd(a, 72, 70, 1 * MB, off=WS_STAMP + 512 * 1024)
        a("s_lshl_b32 s76, s2, 6"); a("s_mov_b64 exec, 1"); a("v_mov_b32 v5, s76")
        for i in range(11):
            a("v_mov_b32 v4, s%d" % (80 + 2 * i)); a("buffer_store_dword v4, v5, s[72:75], 0 offen offset:%d" % (i * 4)); a("s_nop 1")
        a.label(lbl)
    a.label("K1_end")
    a("s_endpgm")
    return name, dict(grid=256, block=512, lds=lds_total, vgprs=256)

def gen_k3(a):
    name = "k3_kernel"; L = "K3"
    c = Cfg(MT=4, NT=7, K=1024, NS=3, nblk=4, ldb=7168, acc0=112)
    STL = c.lds
    CSL = c.lds + 1024
    B1F = 36
    kernel_header(a, name)
    a("s_cmp_ge_u32 s2, 256"); a("s_cbranch_scc1 K3_end")
    stamp(a, 0)
    ld_ptr(a, 34, 'ws'); ld_ptr(a, 32, 'w1'); ld_ptr(a, 36, 'b1')
    wave_lane(a)
    tile_map(a, OPT.get('k3map', '8x4'))
    a("s_lshl_b32 s44, s17, 3")
    a("s_and_b32 s43, s18, 1")
    a("s_mul_i32 s45, s18, 448"); a("s_lshl_b32 s42, s43, 6"); a("s_sub_u32 s45, s45, s42")
    for b in range(1, 4): a("s_add_u32 s%d, s45, %d" % (45 + b, b * 128))
    a("s_waitcnt lgkmcnt(0)")
    make_srd(a, S_SRDA, 34, 4 * MB, off=WS_H)
    make_srd(a, S_SRDB, 32, 1024 * 3584 * 2)
    a("s_cmp_ge_u32 s%d, 4" % S_WAVE); a("s_cbranch_scc1 K3_loader")
    vA = 2; vB = [3, 4, 5, 6]
    compute_setup(a, c, vA, vB, tmp=9)
    if OPT.get('touch_k3', OPT.get('touch', 0)):
        nA, nB = map_share(OPT.get('k3map', '8x4'))
        touch_setup(a, c, nA, nB, 66, 67, 44, 45, 128, 252, 253, 12, 68, 69, 254, OPT.get('touch_k3', OPT.get('touch', 0)))
    a("s_mul_i32 s40, s39, 7"); a("s_lshl_b32 s41, s43, 1"); a("s_add_u32 s40, s40, s41")
    a("v_mov_b32 v9, v3")
    for j in range(4):
        a("s_add_u32 s41, s40, %d" % j); a("s_and_b32 s42, s41, 3"); a("s_lshl_b32 s42, s42, 5"); a("v_xor_b32 v%d, s42, v9" % (3 + j))
        a("s_lshr_b32 s42, s41, 2"); a("s_lshl_b32 s42, s42, 13"); a("v_add_u32 v%d, s42, v%d" % (3 + j, 3 + j))
    tm = [(vB[j & 3], c.blk_off[0] + (j >> 2) * 8192) for j in range(7)]
    make_srd(a, 48, 34, 2048 * 3584 * 2, off=WS_H1)
    make_srd(a, 56, 36, 3584 * 2)
    a("s_mul_i32 s40, s18, 224"); a("s_mul_i32 s41, s39, 112"); a("s_add_u32 s40, s40, s41")
    a("v_lshrrev_b32 v9, 4, v1"); a("v_lshlrev_b32 v9, 2, v9"); a("v_add_u32 v9, s40, v9")
    a("v_lshlrev_b32 v10, 2, v9"); a("v_lshlrev_b32 v11, 1, v9")
    def after_b0(a):
        stamp(a, 1)
        for j in range(7):
            a("buffer_load_dwordx2 v[%d:%d], v11, s[56:59], 0 offen offset:%d" % (224 + j * 2, 225 + j * 2, j * 32))
    c.after_b0 = after_b0
    a("s_lshl_b32 s40, s38, 2"); a("s_add_u32 s40, s40, s44"); a("s_mul_i32 s40, s40, 112")
    a("s_mul_i32 s41, s18, 7"); a("s_add_u32 s40, s40, s41")
    a("s_mul_i32 s41, s39, 3"); a("s_add_u32 s40, s40, s41")
    a("s_lshl_b32 s40, s40, 10")
    a("v_lshlrev_b32 v14, 4, v1"); a("v_add_u32 v14, s40, v14")
    compute_loop(a, c, L, tm, vA)
    stamp(a, 2)
    a("s_barrier")
    a("v_and_b32 v12, 15, v1"); a("v_lshlrev_b32 v12, 3, v12"); a("s_lshl_b32 s41, s38, 9"); a("s_add_u32 s41, s41, %d" % STL); a("v_add_u32 v12, s41, v12")
    for i in range(4): a("ds_read_b64 v[%d:%d], v12 offset:%d" % (16 + 2 * i, 17 + 2 * i, i * 128))
    a("s_mul_i32 s40, s39, 7"); a("s_lshl_b32 s41, s43, 1"); a("s_add_u32 s40, s40, s41"); a("s_lshl_b32 s40, s40, 6"); a("s_add_u32 s40, s40, %d" % CSL)
    a("v_lshrrev_b32 v12, 4, v1"); a("v_lshlrev_b32 v12, 4, v12"); a("v_add_u32 v12, s40, v12")
    for j in range(7): a("ds_read_b128 v[%d:%d], v12 offset:%d" % (100 - 0 + 0 if False else 64 + j * 4, 67 + j * 4, j * 64))
    a("s_waitcnt vmcnt(0) lgkmcnt(0)")
    for i in range(4): a("v_mov_b32 v%d, v%d" % (24 + 2 * i, 17 + 2 * i))
    for j in range(7):
        for h in range(2):
            a("v_lshlrev_b32 v%d, 16, v%d" % (B1F + j * 4 + 2 * h, 224 + j * 2 + h)); a("v_and_b32 v%d, 0xffff0000, v%d" % (B1F + j * 4 + 2 * h + 1, 224 + j * 2 + h))
    def acc(i, j): return c.acc0 + (i * 7 + j) * 4
    def tile_vals(i, j, dst, tmp):
        b = acc(i, j)
        for h in range(2):
            a(pk("v_pk_fma_f32", tmp + 2 * h, 64 + j * 4 + 2 * h, 24 + 2 * i, B1F + j * 4 + 2 * h, mods="op_sel_hi:[1,0,1] neg_lo:[0,1,0] neg_hi:[0,1,0]"))
        for h in range(2):
            a(pk("v_pk_fma_f32", b + 2 * h, b + 2 * h, 16 + 2 * i, tmp + 2 * h, mods="op_sel_hi:[1,0,1]"))
        for r in range(4): a("v_max_f32 v%d, 0, v%d" % (tmp + r, b + r))
        for h in range(2): a(pk("v_pk_mul_f32", b + 2 * h, b + 2 * h, tmp + 2 * h))
        a("v_cvt_pk_bf16_f32 v%d, v%d, v%d" % (dst, b, b + 1)); a("v_cvt_pk_bf16_f32 v%d, v%d, v%d" % (dst + 1, b + 2, b + 3))
    def pair(i, j0, dst):
        interleave(a, lambda x: tile_vals_on(x, i, j0, dst, 92), lambda x: tile_vals_on(x, i, j0 + 1, dst + 2, 96))
    def tile_vals_on(x, i, j, dst, tmp):
        nonlocal a
        sv = a; a = x
        tile_vals(i, j, dst, tmp)
        a = sv
    fl = st_flags('h1')
    a("s_mov_b32 s42, 0")
    a("s_cmp_eq_u32 s39, 0"); a("s_cbranch_scc0 K3_epi1")
    for i in range(4):
        for pr in range(3):
            d = 100 + ((i * 4 + pr) % 3) * 4
            pair(i, 2 * pr, d)
            a("buffer_store_dwordx4 v[%d:%d], v14, s[48:51], s42 offen offset:%d %s" % (d, d + 3, pr * 1024, fl))
        d = 100 + ((i * 4 + 3) % 3) * 4
        tile_vals(i, 6, d, 92)
        a("buffer_store_dwordx2 v[%d:%d], v14, s[48:51], s42 offen offset:3072 %s" % (d, d + 1, fl))
        if i < 3: a("s_add_u32 s42, s42, %d" % (112 * 1024))
    stamp_flush(a, 4, 3)
    a("s_branch K3_end")
    a.label("K3_epi1")
    for i in range(4):
        d = 100
        tile_vals(i, 0, d, 92)
        a("buffer_store_dwordx2 v[%d:%d], v14, s[48:51], s42 offen offset:8 %s" % (d, d + 1, fl))
        for pr in range(3):
            d = 100 + ((pr + 1) % 3) * 4
            pair(i, 2 * pr + 1, d)
            a("buffer_store_dwordx4 v[%d:%d], v14, s[48:51], s42 offen offset:%d %s" % (d, d + 3, (pr + 1) * 1024, fl))
        if i < 3: a("s_add_u32 s42, s42, %d" % (112 * 1024))
    a("s_branch K3_end")
    a.label("K3_loader")
    Ld = loader_setup(a, c, 44, ["s45", "s46", "s47", "s48"])
    make_srd(a, 12, 34, 1 * MB, off=WS_STATS)
    make_srd(a, 52, 34, 16 * 16 * 1024, off=WS_CSP)
    make_srd(a, 56, 34, 65536, off=WS_CNT)
    a("s_sub_u32 s49, s%d, 4" % S_WAVE)
    a("s_lshl_b32 s40, s17, 7"); a("s_lshl_b32 s42, s49, 5"); a("s_add_u32 s40, s40, s42")
    a("v_and_b32 v30, 15, v1"); a("v_add_u32 v30, s40, v30"); a("v_lshlrev_b32 v30, 7, v30")
    a("v_lshrrev_b32 v31, 4, v1"); a("v_lshl_add_u32 v30, v31, 5, v30")
    a("s_add_u32 s50, s18, 64"); a("s_lshl_b32 s50, s50, 8")
    a("v_lshrrev_b32 v26, 3, v1"); a("s_mov_b32 s42, 7168"); a("v_mul_lo_u32 v26, v26, s42"); a("v_and_b32 v27, 7, v1"); a("v_lshl_add_u32 v26, v27, 4, v26")
    a("s_mul_i32 s40, s17, %d" % (64 * 7168)); a("s_lshl_b32 s42, s49, 7"); a("s_add_u32 s40, s40, s42"); a("s_add_u32 s40, s40, s45"); a("v_add_u32 v26, s40, v26")
    a("s_lshl_b32 s40, s18, 4"); a("s_add_u32 s40, s40, s17"); a("s_lshl_b32 s40, s40, 10"); a("s_lshl_b32 s42, s49, 8"); a("s_add_u32 s40, s40, s42")
    a("v_lshlrev_b32 v25, 5, v27"); a("v_add_u32 v25, s40, v25")
    a("s_lshl_b32 s40, s18, 14"); a("s_lshl_b32 s42, s49, 8"); a("s_add_u32 s40, s40, s42")
    a("v_lshlrev_b32 v29, 12, v31"); a("v_and_b32 v28, 15, v1"); a("v_lshl_add_u32 v29, v28, 4, v29"); a("v_add_u32 v29, s40, v29")
    def after_ramp(a):
        a("s_mov_b32 s42, 0")
        for i in range(8):
            a("buffer_load_dwordx4 v[%d:%d], v26, s[%d:%d], s42 offen" % (160 + i * 4, 163 + i * 4, S_SRDB, S_SRDB + 3))
            if i < 7: a("s_add_u32 s42, s42, %d" % (8 * 7168))
    def hook_sum(a):
        for q in range(8): a("v_mov_b32 v%d, 0" % (192 + q))
        for i in range(8):
            for dw in range(4):
                r = 160 + 4 * i + dw; t = 200 + 2 * (dw & 1)
                a("v_lshlrev_b32 v%d, 16, v%d" % (t, r)); a("v_and_b32 v%d, 0xffff0000, v%d" % (t + 1, r))
                a(pk("v_pk_add_f32", 192 + 2 * dw, 192 + 2 * dw, t))
        for q in range(8): a("v_add_f32_dpp v%d, v%d, v%d row_ror:8 row_mask:0xf bank_mask:0xf" % (192 + q, 192 + q, 192 + q))
        allreduce4(a, "v_add_f32", [192, 193, 194, 195], None); allreduce4(a, "v_add_f32", [196, 197, 198, 199], None)
        a("s_mov_b64 s[78:79], exec"); a("s_mov_b64 exec, 0xff")
        a("buffer_store_dwordx4 v[192:195], v25, s[52:55], 0 offen sc1"); a("buffer_store_dwordx4 v[196:199], v25, s[52:55], 0 offen offset:16 sc1")
        a("s_mov_b64 exec, s[78:79]")
    def hook_signal(a):
        a("s_cmp_lg_u32 s%d, 4" % S_WAVE); a("s_cbranch_scc1 K3_hookret")
        signal(a, "K3_s", 56, 50, 204)
    def hook_pollissue(a):
        a("v_mov_b32 v207, 0")
        a("buffer_load_dword v206, v207, s[56:59], s50 offen sc1")
    def hook_pollcheck(a):
        a("v_readfirstlane_b32 s78, v206")
        a("s_cmp_ge_u32 s78, 16"); a("s_cbranch_scc1 K3_hookret")
        spin_wait(a, "K3_sp", 56, 50, 16, 206)
    def tail(a):
        for i in range(2):
            for q in range(2):
                a("buffer_load_dwordx4 v[%d:%d], v30, s[12:15], 0 offen offset:%d" % (64 + i * 8 + q * 4, 67 + i * 8 + q * 4, i * 16 * 128 + q * 16))
        for i in range(4):
            a("buffer_load_dwordx4 v[%d:%d], v29, s[52:55], 0 offen offset:%d" % (96 + i * 4, 99 + i * 4, i * 1024))
    loader_loop(a, c, Ld, L, tail_loads=tail, n_tail=8, after_ramp=after_ramp, hooks={2: hook_sum, 5: hook_signal, 10: hook_pollissue, 12: hook_pollcheck})
    a("s_waitcnt vmcnt(0)")
    def xl2(r, t):
        a("v_mov_b32 v%d, v%d" % (t, r)); a("v_permlane32_swap_b32 v%d, v%d" % (r, t)); a("v_add_f32 v%d, v%d, v%d" % (r, r, t))
        a("v_mov_b32 v%d, v%d" % (t, r)); a("v_permlane16_swap_b32 v%d, v%d" % (r, t)); a("v_add_f32 v%d, v%d, v%d" % (r, r, t))
    for i in range(2):
        b = 64 + i * 8
        mean, var, t = 40 + i * 4, 41 + i * 4, 42 + i * 4
        a("v_add_f32 v%d, v%d, v%d" % (mean, b, b + 2))
        for q in range(2, 4): a("v_add_f32 v%d, v%d, v%d" % (mean, mean, b + 2 * q))
        xl2(mean, t)
        a("v_mul_f32 v%d, 0x3d800000, v%d" % (mean, mean))
        a("v_mov_b32 v%d, 0" % var)
        for q in range(4):
            a("v_sub_f32 v%d, v%d, v%d" % (t, b + 2 * q, mean)); a("v_mul_f32 v%d, v%d, v%d" % (t, t, t))
            a("v_fmac_f32 v%d, 0x42800000, v%d" % (var, t)); a("v_add_f32 v%d, v%d, v%d" % (var, var, b + 2 * q + 1))
        xl2(var, t)
        a("v_mul_f32 v%d, 0x3a800000, v%d" % (var, var))
        bf16_round(a, mean, mean); bf16_round(a, var, var)
        a("v_add_f32 v%d, 0x3727c5ac, v%d" % (var, var)); bf16_round(a, var, var)
        a("v_sqrt_f32 v%d, v%d" % (var, var)); bf16_round(a, var, var)
        a("v_rcp_f32 v%d, v%d" % (50 + 2 * i, var))
        a("v_mul_f32 v%d, v%d, v%d" % (51 + 2 * i, 50 + 2 * i, mean))
    for lv in (2, 1):
        for i in range(lv):
            for h in range(2): a(pk("v_pk_add_f32", 96 + i * 4 + 2 * h, 96 + i * 4 + 2 * h, 96 + (i + lv) * 4 + 2 * h))
    allreduce4(a, "v_add_f32", [96, 97, 98, 99], None)
    a("v_and_b32 v28, 15, v1"); a("v_lshlrev_b32 v28, 4, v28"); a("s_lshl_b32 s41, s49, 8"); a("s_add_u32 s41, s41, %d" % CSL); a("v_add_u32 v28, s41, v28")
    a("ds_write_b128 v28, v[96:99]")
    a("v_and_b32 v30, 15, v1"); a("v_lshlrev_b32 v30, 3, v30"); a("s_lshl_b32 s41, s49, 8"); a("s_add_u32 s41, s41, %d" % STL); a("v_add_u32 v30, s41, v30")
    a("ds_write_b64 v30, v[50:51]"); a("ds_write_b64 v30, v[52:53] offset:128")
    a("s_waitcnt lgkmcnt(0)"); a("s_barrier")
    a.label("K3_end")
    a("s_endpgm")
    return name, dict(grid=256, block=512, lds=c.lds + 2048, vgprs=256)

def gen_k4(a):
    name = "k4_kernel"; L = "K4"
    c = Cfg(MT=4, NT=2, K=3584, NS=OPT.get('k4ns', 6), nblk=1, ldb=2048, acc0=112, aflags=OPT.get('k4a', ''), bflags=OPT.get('k4b', ''))
    kernel_header(a, name)
    a("s_cmp_ge_u32 s2, 256"); a("s_cbranch_scc1 K4_end")
    stamp(a, 0)
    ld_ptr(a, 34, 'ws'); ld_ptr(a, 32, 'w2'); ld_ptr(a, 36, 'b2'); ld_ptr(a, 62, 'out')
    wave_lane(a)
    tile_map(a, OPT.get('k4map', '4x8'))
    a("s_lshl_b32 s44, s17, 3")
    a("s_lshl_b32 s45, s18, 7")
    a("s_waitcnt lgkmcnt(0)")
    make_srd(a, S_SRDA, 34, 2048 * 3584 * 2, off=WS_H1)
    make_srd(a, S_SRDB, 32, 3584 * 1024 * 2)
    a("s_cmp_ge_u32 s%d, 4" % S_WAVE); a("s_cbranch_scc1 K4_loader")
    vA = 2; vB = [3, 4]
    compute_setup(a, c, vA, vB, tmp=9)
    a("s_lshl_b32 s25, s39, 6"); a("v_xor_b32 v3, s25, v3"); a("v_xor_b32 v4, 32, v3")
    tm = [(vB[j], c.blk_off[0]) for j in range(2)]
    if OPT.get('touch_k4', OPT.get('touch', 0)):
        nA, nB = map_share(OPT.get('k4map', '4x8'))
        touch_setup(a, c, nA, nB, 66, 67, 44, 45, 128, 252, 253, 12, 68, 69, 254, OPT.get('touch_k4', OPT.get('touch', 0)))
    make_srd(a, 52, 62, 2048 * 1024 * 2)
    make_srd(a, 56, 36, 1024 * 2)
    make_srd(a, 48, 34, 4 * MB, off=WS_H)
    a("s_lshl_b32 s40, s38, 2"); a("s_add_u32 s40, s40, s44"); a("s_lshl_b32 s40, s40, 5"); a("s_lshl_b32 s41, s18, 1"); a("s_add_u32 s41, s41, s39"); a("s_add_u32 s40, s40, s41")
    a("s_lshl_b32 s40, s40, 10")
    a("v_lshlrev_b32 v14, 4, v1"); a("v_add_u32 v14, s40, v14")
    a("s_lshl_b32 s40, s18, 6"); a("s_lshl_b32 s41, s39, 5"); a("s_add_u32 s40, s40, s41")
    a("v_lshrrev_b32 v12, 4, v1"); a("v_lshlrev_b32 v12, 2, v12"); a("v_add_u32 v12, s40, v12"); a("v_lshlrev_b32 v12, 1, v12")
    def after_b0(a):
        stamp(a, 1)
        a("s_mov_b32 s42, 0")
        for i in range(4):
            a("buffer_load_dwordx4 v[%d:%d], v14, s[48:51], s42 offen" % (160 + i * 4, 163 + i * 4))
            if i < 3: a("s_add_u32 s42, s42, %d" % (32 * 1024))
        for j in range(2): a("buffer_load_dwordx2 v[%d:%d], v12, s[56:59], 0 offen offset:%d" % (176 + j * 2, 177 + j * 2, j * 32))
    c.after_b0 = after_b0
    a("s_lshl_b32 s40, s17, 7"); a("s_lshl_b32 s42, s38, 6"); a("s_add_u32 s40, s40, s42")
    a("v_and_b32 v9, 15, v1"); a("v_add_u32 v9, s40, v9"); a("v_lshlrev_b32 v9, 11, v9")
    a("v_bfe_u32 v10, v1, 4, 1"); a("v_lshl_add_u32 v9, v10, 5, v9")
    a("v_lshrrev_b32 v10, 5, v1"); a("v_lshl_add_u32 v9, v10, 4, v9")
    a("s_lshl_b32 s41, s18, 7"); a("s_lshl_b32 s42, s39, 6"); a("s_add_u32 s41, s41, s42"); a("v_add_u32 v9, s41, v9")
    (compute_loop_full if OPT.get('full', 1) else compute_loop)(a, c, L, tm, vA)
    stamp(a, 2)
    a("s_waitcnt vmcnt(0)")
    for j in range(2):
        for h in range(2):
            a("v_lshlrev_b32 v%d, 16, v%d" % (180 + j * 4 + 2 * h, 176 + j * 2 + h)); a("v_and_b32 v%d, 0xffff0000, v%d" % (181 + j * 4 + 2 * h, 176 + j * 2 + h))
    for i in range(4):
        for q in range(4):
            a("v_lshlrev_b32 v%d, 16, v%d" % (16 + i * 8 + 2 * q, 160 + i * 4 + q)); a("v_and_b32 v%d, 0xffff0000, v%d" % (17 + i * 8 + 2 * q, 160 + i * 4 + q))
    for i in range(4):
        b = c.acc0 + i * 8
        for q in range(4): a(pk("v_pk_add_f32", b + 2 * q, b + 2 * q, 180 + 2 * q))
    for i in range(4):
        b = c.acc0 + i * 8
        for q in range(4): a(pk("v_pk_add_f32", b + 2 * q, b + 2 * q, 16 + i * 8 + 2 * q))
    a("s_mov_b32 s42, 0")
    for i in range(4):
        b = c.acc0 + i * 8; d = 48 + i * 4
        for q in range(4): a("v_cvt_pk_bf16_f32 v%d, v%d, v%d" % (d + q, b + 2 * q, b + 2 * q + 1))
    for i in range(4):
        d = 48 + i * 4
        a("v_permlane16_swap_b32 v%d, v%d" % (d, d + 2)); a("v_permlane16_swap_b32 v%d, v%d" % (d + 1, d + 3))
    for i in range(4):
        d = 48 + i * 4
        a("buffer_store_dwordx4 v[%d:%d], v9, s[52:55], s42 offen %s" % (d, d + 3, st_flags('out')))
        if i < 3: a("s_add_u32 s42, s42, %d" % (16 * 2048))
    stamp_flush(a, 5, 3)
    a("s_branch K4_end")
    a.label("K4_loader")
    Ld = loader_setup(a, c, 44, ["s45"])
    loader_loop(a, c, Ld, L)
    a.label("K4_end")
    a("s_endpgm")
    a.label("CODE_END")
    return name, dict(grid=256, block=512, lds=c.lds, vgprs=256)

def build(opt):
    OPT.clear(); OPT.update(opt)
    STAMP['on'] = opt.get('stamp', False)
    hdr = open("cdna_kernels/%s.s.ref" % NAME).read().split("; Override launch")[0]
    kernels = []
    body = []
    for g in (gen_k0, gen_k1, gen_k3, gen_k4):
        a = Asm()
        name, info = g(a)
        lines, n = hazard.fix(a.lines)
        body.append("\n".join(lines) + "\n")
        kernels.append((name, info))
    order = opt.get('order', [k for k, _ in kernels])
    info = dict(kernels)
    txt = hdr
    for k in order:
        i = info[k]
        txt += "; @launch kernel=%s grid=(%d,1,1) block=(%d,1,1) lds=%d\n" % (k, i['grid'], i['block'], i['lds'])
    txt += '.amdgcn_target "amdgcn-amd-amdhsa--gfx950"\n.text\n' + "".join(body)
    txt += '.section .rodata,"a"\n'
    for k, i in kernels:
        txt += ".p2align 6\n" + kernel_desc(k, i['vgprs'])
    return txt

if __name__ == "__main__":
    opt = json.loads(sys.argv[2]) if len(sys.argv) > 2 else {}
    open(sys.argv[1], "w").write(build(opt))
```

```python
import sys, json
from asmlib import *
from core2 import *
import hazard

NAME = "sequential_preLN__linear_kernel_hedgehog__dense_activation_squared_relu__prompt"
MB = 1 << 20
WS_XN = 0
WS_PHIQ = 4 * MB
WS_KVP = 12 * MB
KVP_STRIDE = 4352
WS_O = 20 * MB
WS_H = 24 * MB
WS_STATS = 28 * MB
WS_CS1 = 29 * MB
WS_CNT = 30 * MB
WS_CSP = 31 * MB
WS_H1 = 32 * MB
WS_STAMP = 200 * MB
LOG2E = 0x3fb8aa3b
OPT = {}
STAMP = {'on': False}

def ld_ptr(a, s, key):
    a("s_load_dwordx2 s[%d:%d], s[0:1], %d" % (s, s + 1, KERNARG[key]))

def wave_lane(a):
    a("v_and_b32 v1, 63, v0")
    a("v_lshrrev_b32 v2, 6, v0")
    a("s_nop 0")
    a("v_readfirstlane_b32 s%d, v2" % S_WAVE)

def bf16_round(a, dst, src):
    a("v_cvt_pk_bf16_f32 v%d, v%d, v%d" % (dst, src, src))
    a("v_lshlrev_b32 v%d, 16, v%d" % (dst, dst))

def stamp(a, idx):
    if STAMP['on']:
        a("s_memrealtime s[%d:%d]" % (80 + 2 * idx, 81 + 2 * idx)); a("s_waitcnt lgkmcnt(0)")
def stamp_flush(a, kid, n, wave=0):
    if not STAMP['on']: return
    lbl = "ST_skip_%d_%d" % (kid, len(a.lines))
    stamp(a, n)
    a("s_waitcnt vmcnt(0)")
    n += 1
    stamp(a, n)
    a("s_cmp_lg_u32 s%d, %d" % (S_WAVE, wave)); a("s_cbranch_scc1 %s" % lbl)
    a("s_load_dwordx2 s[70:71], s[0:1], %d" % KERNARG['ws']); a("s_waitcnt lgkmcnt(0)")
    make_srd(a, 72, 70, 1 * MB, off=WS_STAMP)
    a("s_add_u32 s76, s2, %d" % (kid * 512)); a("s_lshl_b32 s76, s76, 5")
    a("s_mov_b64 exec, 1")
    a("v_mov_b32 v5, s76")
    for i in range(n + 1):
        a("v_mov_b32 v4, s%d" % (80 + 2 * i))
        a("buffer_store_dword v4, v5, s[72:75], 0 offen offset:%d" % (i * 4))
        a("s_nop 1")
    a.label(lbl)

def pk(op, d, s0, s1, s2=None, mods=""):
    ops = [d, s0, s1] + ([s2] if s2 is not None else [])
    def f(x): return x if isinstance(x, str) else "v[%d:%d]" % (x, x + 1)
    return "%s %s %s" % (op, ", ".join(f(x) for x in ops), mods)

def touch(a, vdst, vaddr, srd, soff="0"):
    a("buffer_load_dword v%d, v%d, s[%d:%d], %s offen" % (vdst, vaddr, srd, srd + 3, soff))

def st_flags(key):
    return OPT.get('st_' + key, OPT.get('st', ''))

def allreduce4(a, op, r, t):
    a("v_permlane32_swap_b32 v%d, v%d" % (r[0], r[1])); a("v_permlane32_swap_b32 v%d, v%d" % (r[2], r[3]))
    a("%s v%d, v%d, v%d" % (op, r[0], r[0], r[1])); a("%s v%d, v%d, v%d" % (op, r[2], r[2], r[3]))
    a("v_permlane16_swap_b32 v%d, v%d" % (r[0], r[2]))
    a("%s v%d, v%d, v%d" % (op, r[0], r[0], r[2]))
    a("v_mov_b32 v%d, v%d" % (r[2], r[0]))
    a("v_permlane16_swap_b32 v%d, v%d" % (r[0], r[2]))
    a("v_mov_b32 v%d, v%d" % (r[1], r[0])); a("v_mov_b32 v%d, v%d" % (r[3], r[2]))
    a("v_permlane32_swap_b32 v%d, v%d" % (r[0], r[1])); a("v_permlane32_swap_b32 v%d, v%d" % (r[2], r[3]))

def gen_k0(a):
    name = "k0_kernel"
    kernel_header(a, name)
    a.label("CODE_BEGIN")
    a("s_cmp_ge_u32 s2, 256"); a("s_cbranch_scc1 K0_end")
    stamp(a, 0)
    ld_ptr(a, 30, 'x'); ld_ptr(a, 34, 'ws'); ld_ptr(a, 32, 'wqkv'); ld_ptr(a, 36, 'wo'); ld_ptr(a, 38, 'w1')
    wave_lane(a)
    a("v_and_b32 v2, 7, v0"); a("v_lshrrev_b32 v3, 3, v0")
    a("s_lshl_b32 s20, s2, 3"); a("v_add_u32 v4, s20, v2"); a("v_lshlrev_b32 v4, 11, v4"); a("v_lshl_add_u32 v4, v3, 6, v4")
    a("s_waitcnt lgkmcnt(0)")
    make_srd(a, 4, 30, 2048 * 1024 * 2)
    for i in range(4):
        a("buffer_load_dwordx4 v[%d:%d], v4, s[4:7], 0 offen offset:%d" % (16 + 4 * i, 19 + 4 * i, i * 16))
    a("s_lshl_b32 s21, s2, 2"); a("s_add_u32 s21, s21, s%d" % S_WAVE); a("s_lshl_b32 s21, s21, 13")
    a("v_lshlrev_b32 v5, 7, v1")
    make_srd(a, 12, 32, 1024 * 3072 * 2)
    touch(a, 10, 5, 12, "s21")
    make_srd(a, 12, 36, 1024 * 1024 * 2)
    touch(a, 32, 5, 12, "s21")
    make_srd(a, 12, 38, 1024 * 3584 * 2)
    touch(a, 33, 5, 12, "s21")
    a("s_getpc_b64 s[24:25]")
    a.label("K0_pc")
    a("s_sub_u32 s24, s24, K0_pc-CODE_BEGIN"); a("s_subb_u32 s25, s25, 0")
    a("s_mov_b32 s26, CODE_END-CODE_BEGIN"); a("s_mov_b32 s27, 0x20000")
    a("s_lshr_b32 s21, s2, 3"); a("s_and_b32 s21, s21, 15"); a("s_lshl_b32 s21, s21, 13")
    touch(a, 11, 5, 24, "s21")
    make_srd(a, 8, 34, 4 * MB, off=WS_XN)
    a("s_waitcnt vmcnt(4)")
    for i in range(16):
        a("v_lshlrev_b32 v%d, 16, v%d" % (64 + 2 * i, 16 + i))
        a("v_and_b32 v%d, 0xffff0000, v%d" % (65 + 2 * i, 16 + i))
    def rowsum(src_pairs, dst):
        pass
    for i in range(8): a(pk("v_pk_add_f32", 40 + 2 * i, 64 + 2 * i, 80 + 2 * i))
    for i in range(4): a(pk("v_pk_add_f32", 40 + 2 * i, 40 + 2 * i, 48 + 2 * i))
    for i in range(2): a(pk("v_pk_add_f32", 40 + 2 * i, 40 + 2 * i, 44 + 2 * i))
    a(pk("v_pk_add_f32", 40, 40, 42)); a("v_add_f32 v6, v40, v41")
    def xl(r, t):
        a("v_add_f32_dpp v%d, v%d, v%d row_ror:8 row_mask:0xf bank_mask:0xf" % (r, r, r))
        a("v_mov_b32 v%d, v%d" % (t, r)); a("v_permlane16_swap_b32 v%d, v%d" % (r, t)); a("v_add_f32 v%d, v%d, v%d" % (r, r, t))
        a("v_mov_b32 v%d, v%d" % (t, r)); a("v_permlane32_swap_b32 v%d, v%d" % (r, t)); a("v_add_f32 v%d, v%d, v%d" % (r, r, t))
    xl(6, 7)
    a("v_lshlrev_b32 v8, 2, v2"); a("s_lshl_b32 s21, s%d, 5" % S_WAVE); a("v_add_u32 v9, s21, v8")
    a("ds_write_b32 v9, v6")
    a("s_waitcnt lgkmcnt(0)"); a("s_barrier")
    a("ds_read_b32 v12, v8"); a("ds_read_b32 v13, v8 offset:32"); a("ds_read_b32 v14, v8 offset:64"); a("ds_read_b32 v15, v8 offset:96")
    a("s_waitcnt lgkmcnt(0)")
    a("v_add_f32 v12, v12, v13"); a("v_add_f32 v14, v14, v15"); a("v_add_f32 v12, v12, v14")
    a("v_mul_f32 v12, 0x3a800000, v12")
    for i in range(16): a(pk("v_pk_add_f32", 96 + 2 * i, 64 + 2 * i, 12, mods="op_sel_hi:[1,0] neg_lo:[0,1] neg_hi:[0,1]"))
    for i in range(4): a(pk("v_pk_mul_f32", 40 + 2 * i, 96 + 2 * i, 96 + 2 * i))
    for i in range(4, 16): a(pk("v_pk_fma_f32", 40 + 2 * (i & 3), 96 + 2 * i, 96 + 2 * i, 40 + 2 * (i & 3)))
    a(pk("v_pk_add_f32", 40, 40, 42)); a(pk("v_pk_add_f32", 44, 44, 46)); a(pk("v_pk_add_f32", 40, 40, 44)); a("v_add_f32 v6, v40, v41")
    xl(6, 7)
    a("ds_write_b32 v9, v6 offset:128")
    a("s_waitcnt lgkmcnt(0)"); a("s_barrier")
    a("ds_read_b32 v13, v8 offset:128"); a("ds_read_b32 v14, v8 offset:160"); a("ds_read_b32 v15, v8 offset:192"); a("ds_read_b32 v6, v8 offset:224")
    a("s_waitcnt lgkmcnt(0)")
    a("v_add_f32 v13, v13, v14"); a("v_add_f32 v15, v15, v6"); a("v_add_f32 v13, v13, v15")
    a("v_mul_f32 v14, 0x3a800000, v13")
    bf16_round(a, 12, 12); bf16_round(a, 14, 14)
    a("v_add_f32 v14, 0x3727c5ac, v14"); bf16_round(a, 14, 14)
    a("v_sqrt_f32 v14, v14"); bf16_round(a, 14, 14)
    a("v_rcp_f32 v14, v14")
    for i in range(16):
        p = 64 + 2 * i
        a(pk("v_pk_add_f32", p, p, 12, mods="op_sel_hi:[1,0] neg_lo:[0,1] neg_hi:[0,1]"))
    for i in range(16):
        p = 64 + 2 * i
        a("v_cvt_pk_bf16_f32 v%d, v%d, v%d" % (96 + i, p, p + 1))
    for i in range(16):
        p = 64 + 2 * i
        a("v_lshlrev_b32 v%d, 16, v%d" % (p, 96 + i)); a("v_and_b32 v%d, 0xffff0000, v%d" % (p + 1, 96 + i))
    for i in range(16):
        p = 64 + 2 * i
        a(pk("v_pk_mul_f32", p, p, 14, mods="op_sel_hi:[1,0]"))
    for g in range(4):
        for q, dw in enumerate((2 * g, 2 * g + 1, 8 + 2 * g, 9 + 2 * g)):
            a("v_cvt_pk_bf16_f32 v%d, v%d, v%d" % (16 + 4 * g + q, 64 + 2 * dw, 65 + 2 * dw))
    a("s_lshr_b32 s20, s2, 1"); a("s_lshl_b32 s20, s20, 15"); a("s_and_b32 s21, s2, 1"); a("s_lshl_b32 s21, s21, 7"); a("s_add_u32 s20, s20, s21")
    a("v_lshlrev_b32 v4, 10, v3"); a("v_lshl_add_u32 v4, v2, 4, v4"); a("v_add_u32 v4, s20, v4")
    for g in range(4):
        a("buffer_store_dwordx4 v[%d:%d], v4, s[8:11], 0 offen offset:%d %s" % (16 + 4 * g, 19 + 4 * g, g * 256, st_flags('k0')))
    make_srd(a, 12, 34, 65536, off=WS_CNT)
    a("s_lshl_b32 s21, s2, 8"); a("v_mov_b32 v34, s21"); a("v_mov_b32 v35, 0")
    a("v_cmp_eq_u32 vcc, 0, v0"); a("s_and_saveexec_b64 s[40:41], vcc"); a("s_cbranch_execz K0_nz")
    a("buffer_store_dword v35, v34, s[12:15], 0 offen sc1")
    a.label("K0_nz")
    a("s_mov_b64 exec, s[40:41]")
    stamp(a, 1); stamp(a, 2)
    stamp_flush(a, 0, 3)
    a.label("K0_end")
    a("s_endpgm")
    return name, dict(grid=256, block=256, lds=1024, vgprs=128)

def map_share(mode):
    return {'8x4': (4, 8), '4x8': (8, 4), '2x16': (16, 2)}[mode]
def tile_map(a, mode):
    a("s_and_b32 s40, s2, 7"); a("s_lshr_b32 s41, s2, 3")
    sh = {'8x4': 3, '4x8': 2, '2x16': 1}[mode]
    a("s_lshr_b32 s66, s41, %d" % sh); a("s_and_b32 s67, s41, %d" % ((1 << sh) - 1))
    if mode == '8x4':
        a("s_and_b32 s42, s40, 1"); a("s_lshl_b32 s42, s42, 3"); a("s_and_b32 s43, s41, 7"); a("s_add_u32 s17, s42, s43")
        a("s_lshr_b32 s42, s40, 1"); a("s_lshl_b32 s42, s42, 2"); a("s_lshr_b32 s43, s41, 3"); a("s_add_u32 s18, s42, s43")
    elif mode == '4x8':
        a("s_and_b32 s42, s40, 3"); a("s_lshl_b32 s42, s42, 2"); a("s_and_b32 s43, s41, 3"); a("s_add_u32 s17, s42, s43")
        a("s_lshr_b32 s42, s40, 2"); a("s_lshl_b32 s42, s42, 3"); a("s_lshr_b32 s43, s41, 2"); a("s_add_u32 s18, s42, s43")
    elif mode == '2x16':
        a("s_lshl_b32 s42, s40, 1"); a("s_and_b32 s43, s41, 1"); a("s_add_u32 s17, s42, s43")
        a("s_lshr_b32 s18, s41, 1")

def exp4(a, P, E, T):
    MX = [T + 0, T + 2, T + 4, T + 6]; MN = [T + 8, T + 10, T + 12, T + 14]
    for i in range(4):
        p = P + 8 * i
        a("v_max3_f32 v%d, v%d, v%d, v%d" % (MX[i], p, p + 1, p + 2)); a("v_min3_f32 v%d, v%d, v%d, v%d" % (MN[i], p, p + 1, p + 2))
    for i in range(4):
        p = P + 8 * i
        a("v_max3_f32 v%d, v%d, v%d, v%d" % (MX[i], MX[i], p + 3, p + 4)); a("v_min3_f32 v%d, v%d, v%d, v%d" % (MN[i], MN[i], p + 3, p + 4))
    for i in range(4):
        p = P + 8 * i
        a("v_max3_f32 v%d, v%d, v%d, v%d" % (MX[i], MX[i], p + 5, p + 6)); a("v_min3_f32 v%d, v%d, v%d, v%d" % (MN[i], MN[i], p + 5, p + 6))
    for i in range(4):
        p = P + 8 * i
        a("v_max_f32 v%d, v%d, v%d" % (MX[i], MX[i], p + 7)); a("v_min_f32 v%d, v%d, v%d" % (MN[i], MN[i], p + 7))
    interleave(a, lambda b: allreduce4(b, "v_max_f32", MX, None), lambda b: allreduce4(b, "v_min_f32", MN, None))
    for i in range(4):
        a("v_mul_f32 v%d, s46, v%d" % (MX[i], MX[i])); a("v_mul_f32 v%d, s46, v%d" % (MN[i], MN[i]))
    for i in range(4):
        for h in range(4):
            p = P + 8 * i + 2 * h; e = E + 8 * i + 2 * h
            a(pk("v_pk_fma_f32", e, p, "s[46:47]", MX[i], mods="op_sel_hi:[1,1,0] neg_lo:[0,0,1] neg_hi:[0,0,1]"))
            a(pk("v_pk_fma_f32", p, p, "s[46:47]", MN[i], mods="op_sel_hi:[1,1,0] neg_lo:[1,0,0] neg_hi:[1,0,0]"))
    for i in range(4):
        for q in range(8):
            a("v_exp_f32 v%d, v%d" % (E + 8 * i + q, E + 8 * i + q)); a("v_exp_f32 v%d, v%d" % (P + 8 * i + q, P + 8 * i + q))

def norm4(a, P, E, T):
    MX = [T + 0, T + 2, T + 4, T + 6]; MN = [T + 8, T + 10, T + 12, T + 14]
    for i in range(4):
        e = E + 8 * i; p = P + 8 * i
        a(pk("v_pk_add_f32", MX[i], e, e + 2)); a(pk("v_pk_add_f32", MN[i], p, p + 2))
    for i in range(4):
        e = E + 8 * i; p = P + 8 * i
        a(pk("v_pk_add_f32", MX[i], MX[i], e + 4)); a(pk("v_pk_add_f32", MN[i], MN[i], p + 4))
    for i in range(4):
        e = E + 8 * i; p = P + 8 * i
        a(pk("v_pk_add_f32", MX[i], MX[i], e + 6)); a(pk("v_pk_add_f32", MN[i], MN[i], p + 6))
    for i in range(4):
        a("v_add_f32 v%d, v%d, v%d" % (MX[i], MX[i], MX[i] + 1)); a("v_add_f32 v%d, v%d, v%d" % (MN[i], MN[i], MN[i] + 1))
    interleave(a, lambda b: allreduce4(b, "v_add_f32", MX, None), lambda b: allreduce4(b, "v_add_f32", MN, None))
    for i in range(4):
        a("v_rcp_f32 v%d, v%d" % (MX[i], MX[i])); a("v_rcp_f32 v%d, v%d" % (MN[i], MN[i]))
    for i in range(4):
        for h in range(4):
            p = P + 8 * i + 2 * h; e = E + 8 * i + 2 * h
            a(pk("v_pk_mul_f32", e, e, MX[i], mods="op_sel_hi:[1,0]")); a(pk("v_pk_mul_f32", p, p, MN[i], mods="op_sel_hi:[1,0]"))

def interleave(a, f, g):
    x = Asm(); y = Asm(); f(x); g(y)
    for i in range(max(len(x.lines), len(y.lines))):
        if i < len(x.lines): a.lines.append(x.lines[i])
        if i < len(y.lines): a.lines.append(y.lines[i])

def wphi_loads(a, WP, s_head, vtmp):
    a("s_lshl_b32 s41, s%d, 11" % s_head)
    a("v_lshrrev_b32 v%d, 4, v1" % vtmp); a("v_lshlrev_b32 v%d, 8, v%d" % (vtmp, vtmp))
    a("v_and_b32 v%d, 15, v1" % (vtmp + 1)); a("v_lshl_add_u32 v%d, v%d, 1, v%d" % (vtmp, vtmp + 1, vtmp)); a("v_add_u32 v%d, s41, v%d" % (vtmp, vtmp))
    for u in range(2):
        for j in range(8):
            d_off = (16 * (j >> 2) + (j & 3)) * 64 + u * 32
            a("buffer_load_ushort v%d, v%d, s[12:15], 0 offen offset:%d" % (WP + u * 8 + j, vtmp, d_off))
def wphi_pack(a, WP):
    for u in range(2):
        for p in range(4):
            a("v_lshl_or_b32 v%d, v%d, 16, v%d" % (WP + u * 4 + p, WP + u * 8 + 2 * p + 1, WP + u * 8 + 2 * p))

def spin_wait(a, lbl, srd, s_off, target, vtmp):
    a("s_mov_b32 s77, 0x40000")
    a("v_mov_b32 v%d, 0" % (vtmp + 1))
    a.label(lbl)
    a("buffer_load_dword v%d, v%d, s[%d:%d], s%d offen sc1" % (vtmp, vtmp + 1, srd, srd + 3, s_off))
    a("s_waitcnt vmcnt(0)")
    a("v_readfirstlane_b32 s78, v%d" % vtmp)
    a("s_cmp_ge_u32 s78, %d" % target); a("s_cbranch_scc1 %s_done" % lbl)
    a("s_sleep 1")
    a("s_sub_u32 s77, s77, 1"); a("s_cmp_lg_u32 s77, 0"); a("s_cbranch_scc1 %s" % lbl)
    a.label(lbl + "_done")

def signal(a, lbl, srd, s_off, vtmp):
    a("v_mov_b32 v%d, 1" % vtmp); a("v_mov_b32 v%d, 0" % (vtmp + 1))
    a("s_mov_b64 s[78:79], exec"); a("s_mov_b64 exec, 1")
    a("buffer_atomic_add v%d, v%d, s[%d:%d], s%d offen" % (vtmp, vtmp + 1, srd, srd + 3, s_off))
    a("s_mov_b64 exec, s[78:79]")

def allreduce2(a, op, r0, r1, t):
    a("v_permlane32_swap_b32 v%d, v%d" % (r0, r1)); a("%s v%d, v%d, v%d" % (op, r0, r0, r1))
    a("v_mov_b32 v%d, v%d" % (t, r0)); a("v_permlane16_swap_b32 v%d, v%d" % (r0, t)); a("%s v%d, v%d, v%d" % (op, r0, r0, t))
    a("v_mov_b32 v%d, v%d" % (r1, r0)); a("v_permlane32_swap_b32 v%d, v%d" % (r0, r1))

def gen_k1(a):
    name = "ka_kernel"; L = "K1"
    c = Cfg(MT=4, NT=6, K=1024, NS=3, nblk=3, ldb=6144, acc0=112, swap_tiles={4, 5})
    XCH = c.lds
    KVF = XCH + 16384
    FLG = c.lds + 32768
    lds_total = c.lds + 32768 + 256
    SW = 'sc1'
    LDF = OPT.get('ldf', '')
    kernel_header(a, name)
    a("s_cmp_ge_u32 s2, 256"); a("s_cbranch_scc1 K1_end")
    stamp(a, 0)
    ld_ptr(a, 34, 'ws'); ld_ptr(a, 32, 'wqkv'); ld_ptr(a, 36, 'wphi'); ld_ptr(a, 60, 'wo'); ld_ptr(a, 62, 'w2'); ld_ptr(a, 64, 'x')
    wave_lane(a)
    tile_map(a, '8x4')
    a("s_lshl_b32 s44, s17, 3")
    for b in range(3):
        a("s_lshl_b32 s%d, s18, 7" % (45 + b)); a("s_add_u32 s%d, s%d, %d" % (45 + b, 45 + b, b * 2048))
    a("s_waitcnt lgkmcnt(0)")
    make_srd(a, S_SRDA, 34, 4 * MB, off=WS_XN)
    make_srd(a, S_SRDB, 32, 1024 * 3072 * 2)
    a("s_cmp_ge_u32 s%d, 4" % S_WAVE); a("s_cbranch_scc1 K1_loader")
    vA = 2; vB = [3, 4]
    compute_setup(a, c, vA, vB, tmp=9)
    a("s_lshl_b32 s25, s39, 6"); a("v_xor_b32 v3, s25, v3"); a("v_xor_b32 v4, 32, v3")
    tm = [(vB[j & 1], c.blk_off[j >> 1]) for j in range(6)]
    make_srd(a, 12, 36, 32 * 32 * 32 * 2)
    a("s_lshl_b32 s45, s18, 1"); a("s_add_u32 s45, s45, s39")
    WP = 96
    wphi_loads(a, WP, 45, 9)
    c.after_b0 = lambda a: stamp(a, 1)
    compute_loop(a, c, L, tm, vA)
    stamp(a, 2)
    def acc(i, j): return c.acc0 + (i * 6 + j) * 4
    F = 16
    for i in range(4):
        for jj in range(2):
            b = acc(i, 2 + jj)
            a("v_cvt_pk_bf16_f32 v%d, v%d, v%d" % (F + i * 4 + jj * 2, b, b + 1)); a("v_cvt_pk_bf16_f32 v%d, v%d, v%d" % (F + i * 4 + jj * 2 + 1, b + 2, b + 3))
    for ms in range(2):
        for dt in range(2):
            r = 32 + (ms * 2 + dt) * 4
            for h in range(2):
                b = acc(2 * ms + h, 4 + dt)
                a("v_cvt_pk_bf16_f32 v%d, v%d, v%d" % (r + 2 * h, b, b + 1)); a("v_cvt_pk_bf16_f32 v%d, v%d, v%d" % (r + 2 * h + 1, b + 2, b + 3))
    a("v_lshlrev_b32 v9, 4, v1"); a("s_lshl_b32 s41, s%d, 13" % S_WAVE); a("s_add_u32 s41, s41, %d" % XCH); a("v_add_u32 v9, s41, v9")
    for t in range(8): a("ds_write_b128 v9, v[%d:%d] offset:%d" % (F + t * 4, F + t * 4 + 3, t * 1024))
    for i in range(4):
        for jj in range(2):
            b = acc(i, jj)
            a("v_cvt_pk_bf16_f32 v%d, v%d, v%d" % (48 + i * 4 + jj * 2, b, b + 1)); a("v_cvt_pk_bf16_f32 v%d, v%d, v%d" % (48 + i * 4 + jj * 2 + 1, b + 2, b + 3))
    a("s_waitcnt lgkmcnt(0)"); a("s_barrier")
    a("s_waitcnt vmcnt(0)")
    wphi_pack(a, WP)
    a("s_mov_b32 s46, 0x%x" % LOG2E); a("s_mov_b32 s47, 0x%x" % LOG2E)
    Pq = 112; Eq = 144; Tq = 176; PQ = 208
    for i in range(4):
        for u in range(2):
            a("%s v[%d:%d], v[%d:%d], v[%d:%d], 0" % (MF, Pq + i * 8 + u * 4, Pq + i * 8 + u * 4 + 3, WP + u * 4, WP + u * 4 + 3, 48 + i * 4, 48 + i * 4 + 3))
    exp4(a, Pq, Eq, Tq)
    for i in range(4):
        for q in range(4):
            a("v_cvt_pk_bf16_f32 v%d, v%d, v%d" % (PQ + i * 8 + q, Eq + 8 * i + 2 * q, Eq + 8 * i + 2 * q + 1))
            a("v_cvt_pk_bf16_f32 v%d, v%d, v%d" % (PQ + i * 8 + 4 + q, Pq + 8 * i + 2 * q, Pq + 8 * i + 2 * q + 1))
    make_srd(a, 48, 62, 3584 * 1024 * 2)
    a("s_lshl_b32 s40, s2, 2"); a("s_add_u32 s40, s40, s%d" % S_WAVE); a("s_lshl_b32 s40, s40, 13")
    a("v_lshlrev_b32 v9, 7, v1")
    touch(a, 240, 9, 48, "s40")
    a("s_branch KA_common")
    a.label("K1_loader")
    Ld = loader_setup(a, c, 44, ["s45", "s46", "s47"])
    a("s_sub_u32 s49, s%d, 4" % S_WAVE)
    WP = 96
    a("s_lshr_b32 s38, s49, 1"); a("s_and_b32 s39, s49, 1")
    make_srd(a, 12, 36, 32 * 32 * 32 * 2)
    a("s_lshl_b32 s48, s18, 1"); a("s_add_u32 s48, s48, s39")
    a("v_lshlrev_b32 v28, 2, v1"); a("v_add_u32 v28, %d, v28" % FLG); a("v_mov_b32 v29, 0")
    a("ds_write_b32 v28, v29"); a("s_waitcnt lgkmcnt(0)")
    def tail2(a):
        wphi_loads(a, WP, 48, 30)
    loader_loop(a, c, Ld, L, tail_loads=tail2, n_tail=16)
    a("s_mov_b32 s46, 0x%x" % LOG2E); a("s_mov_b32 s47, 0x%x" % LOG2E)
    make_srd(a, 52, 34, 8 * MB, off=WS_KVP)
    a("s_waitcnt vmcnt(0)")
    wphi_pack(a, WP)
    a("s_barrier")
    if OPT.get('kprio', 1): a("s_setprio 3")
    stamp(a, 0)
    a("v_lshlrev_b32 v9, 4, v1"); a("s_lshl_b32 s41, s49, 13"); a("s_add_u32 s41, s41, %d" % XCH); a("v_add_u32 v9, s41, v9")
    for t in range(4): a("ds_read_b128 v[%d:%d], v9 offset:%d" % (16 + t * 4, 19 + t * 4, t * 1024))
    a("s_waitcnt lgkmcnt(0)")
    Pk = 112; Ek = 144; Tk = 176
    for i in range(4):
        for u in range(2):
            a("%s v[%d:%d], v[%d:%d], v[%d:%d], 0" % (MF, Pk + i * 8 + u * 4, Pk + i * 8 + u * 4 + 3, WP + u * 4, WP + u * 4 + 3, 16 + i * 4, 16 + i * 4 + 3))
    a("v_and_b32 v9, 15, v1"); a("v_lshlrev_b32 v10, 7, v9")
    a("v_bfe_u32 v11, v1, 1, 2"); a("v_lshlrev_b32 v11, 1, v11")
    a("v_lshrrev_b32 v12, 5, v1"); a("v_xor_b32 v11, v11, v12"); a("v_lshl_add_u32 v10, v11, 4, v10")
    a("v_bfe_u32 v11, v1, 4, 1"); a("v_lshl_add_u32 v10, v11, 3, v10")
    a("s_lshl_b32 s41, s39, 14"); a("s_lshl_b32 s42, s38, 13"); a("s_add_u32 s41, s41, s42"); a("v_add_u32 v10, s41, v10")
    for k in range(1, 4): a("v_xor_b32 v%d, %d, v10" % (10 + k, k * 32))
    exp4(a, Pk, Ek, Tk)
    norm4(a, Pk, Ek, Tk)
    for i in range(4):
        r = 16 + i * 8
        for q in range(4):
            a("v_cvt_pk_bf16_f32 v%d, v%d, v%d" % (r + q, Ek + 8 * i + 2 * q, Ek + 8 * i + 2 * q + 1))
            a("v_cvt_pk_bf16_f32 v%d, v%d, v%d" % (r + 4 + q, Pk + 8 * i + 2 * q, Pk + 8 * i + 2 * q + 1))
        a("ds_write_b64 v10, v[%d:%d] offset:%d" % (r, r + 1, i * 2048)); a("ds_write_b64 v11, v[%d:%d] offset:%d" % (r + 2, r + 3, i * 2048))
        a("ds_write_b64 v12, v[%d:%d] offset:%d" % (r + 4, r + 5, i * 2048)); a("ds_write_b64 v13, v[%d:%d] offset:%d" % (r + 6, r + 7, i * 2048))
    tr_pattern(a, 3, 14)
    a("s_lshl_b32 s41, s39, 14"); a("v_add_u32 v3, s41, v3")
    a("s_lshl_b32 s41, s38, 6"); a("v_xor_b32 v3, s41, v3"); a("v_xor_b32 v4, 32, v3")
    a("v_lshlrev_b32 v9, 4, v1"); a("s_lshl_b32 s41, s39, 13"); a("s_add_u32 s41, s41, %d" % (XCH + 4096)); a("v_add_u32 v9, s41, v9")
    for wmp in range(2):
        for t in range(4): a("ds_read_b128 v[%d:%d], v9 offset:%d" % (48 + (wmp * 4 + t) * 4, 51 + (wmp * 4 + t) * 4, wmp * 16384 + t * 1024))
    for q in range(4): a("v_mov_b32 v%d, 0x3f803f80" % (88 + q))
    stamp(a, 1)
    a("s_waitcnt lgkmcnt(0)")
    a("s_lshl_b32 s41, s49, 2"); a("s_add_u32 s41, s41, %d" % FLG); a("v_mov_b32 v14, s41"); a("v_mov_b32 v15, 1")
    a("ds_write_b32 v14, v15")
    a("v_xor_b32 v14, 8, v14")
    a("s_mov_b32 s77, 0x100000")
    a.label("KA_pair")
    a("ds_read_b32 v15, v14"); a("s_waitcnt lgkmcnt(0)"); a("v_readfirstlane_b32 s78, v15")
    a("s_cmp_eq_u32 s78, 1"); a("s_cbranch_scc1 KA_pair_done")
    a("s_sub_u32 s77, s77, 1"); a("s_cmp_lg_u32 s77, 0"); a("s_cbranch_scc1 KA_pair")
    a.label("KA_pair_done")
    stamp(a, 2)
    for ms in range(4):
        for ftl in range(2):
            r = 16 + (ms * 2 + ftl) * 4
            a("ds_read_b64_tr_b16 v[%d:%d], v%d offset:%d" % (r, r + 1, 3 + ftl, ms * 4096))
            a("ds_read_b64_tr_b16 v[%d:%d], v%d offset:%d" % (r + 2, r + 3, 3 + ftl, ms * 4096 + 2048))
    KV = 112
    for ms in range(4):
        a("s_waitcnt lgkmcnt(%d)" % (12 - 4 * ms))
        for ftl in range(2):
            for dt in range(3):
                d = KV + (ftl * 3 + dt) * 4
                B = (48 + (ms * 2 + dt) * 4) if dt < 2 else 88
                A = 16 + (ms * 2 + ftl) * 4
                cin = "0" if ms == 0 else "v[%d:%d]" % (d, d + 3)
                a("%s v[%d:%d], v[%d:%d], v[%d:%d], %s" % (MF, d, d + 3, A, A + 3, B, B + 3, cin))
    a("s_lshl_b32 s41, s48, 4"); a("s_add_u32 s41, s41, s17"); a("s_mul_i32 s41, s41, %d" % KVP_STRIDE)
    a("s_lshl_b32 s42, s38, 11"); a("s_add_u32 s42, s42, s41")
    a("v_lshlrev_b32 v9, 4, v1"); a("v_add_u32 v9, s42, v9")
    for ftl in range(2):
        for dt in range(3):
            d = KV + (ftl * 3 + dt) * 4
            o = 16 + ftl * 8 + dt * 2
            a("v_cvt_pk_bf16_f32 v%d, v%d, v%d" % (o, d, d + 1)); a("v_cvt_pk_bf16_f32 v%d, v%d, v%d" % (o + 1, d + 2, d + 3))
        a("buffer_store_dwordx4 v[%d:%d], v9, s[52:55], 0 offen offset:%d %s" % (16 + ftl * 8, 19 + ftl * 8, ftl * 1024, SW))
    a("v_lshrrev_b32 v9, 4, v1"); a("v_lshlrev_b32 v9, 3, v9"); a("s_lshl_b32 s42, s38, 6"); a("s_add_u32 s41, s41, s42"); a("s_add_u32 s41, s41, 4096"); a("v_add_u32 v9, s41, v9")
    a("v_and_b32 v10, 15, v1"); a("v_cmp_eq_u32 vcc, 0, v10"); a("s_and_saveexec_b64 s[40:41], vcc")
    for ftl in range(2):
        a("buffer_store_dwordx2 v[%d:%d], v9, s[52:55], 0 offen offset:%d %s" % (20 + ftl * 8, 21 + ftl * 8, ftl * 32, SW))
    a("s_mov_b64 exec, s[40:41]")
    if STAMP['on']:
        a("s_memrealtime s[98:99]"); a("s_waitcnt lgkmcnt(0)")
    a("s_waitcnt vmcnt(0)")
    if STAMP['on']:
        a("s_memrealtime s[100:101]"); a("s_waitcnt lgkmcnt(0)")
    a("v_mov_b32 v14, %d" % (FLG + 16)); a("v_mov_b32 v15, 1")
    a("s_mov_b64 s[78:79], exec"); a("s_mov_b64 exec, 1"); a("ds_add_u32 v14, v15"); a("s_mov_b64 exec, s[78:79]")
    a("s_waitcnt lgkmcnt(0)")
    if OPT.get('kprio', 1): a("s_setprio 0")
    a.label("KA_common")
    stamp(a, 3)
    if OPT.get('gmap', 1):
        a("s_and_b32 s30, s2, 7"); a("s_lshl_b32 s30, s30, 1"); a("s_bfe_u32 s31, s2, 0x10003"); a("s_add_u32 s30, s30, s31"); a("s_lshr_b32 s31, s2, 4")
    else:
        a("s_mov_b32 s30, s17"); a("s_mov_b32 s31, s18")
    make_srd(a, 52, 34, 8 * MB, off=WS_KVP)
    make_srd(a, 56, 34, 65536, off=WS_CNT)
    a("s_lshl_b32 s50, s18, 8")
    a("s_lshl_b32 s51, s17, 8"); a("s_add_u32 s51, s51, 4096")
    a("s_lshl_b32 s29, s30, 8"); a("s_add_u32 s29, s29, 4096")
    a("s_cmp_lg_u32 s%d, 4" % S_WAVE); a("s_cbranch_scc1 KA_nopoll1")
    a("v_mov_b32 v14, %d" % (FLG + 16)); a("s_mov_b32 s77, 0x100000")
    a.label("KA_dr")
    a("ds_read_b32 v15, v14"); a("s_waitcnt lgkmcnt(0)"); a("v_readfirstlane_b32 s78, v15")
    a("s_cmp_eq_u32 s78, 4"); a("s_cbranch_scc1 KA_dr_done")
    a("s_sub_u32 s77, s77, 1"); a("s_cmp_lg_u32 s77, 0"); a("s_cbranch_scc1 KA_dr")
    a.label("KA_dr_done")
    signal(a, "KA_s1", 56, 50, 40)
    spin_wait(a, "KA_p1", 56, 50, 16, 40)
    a.label("KA_nopoll1")
    a("s_barrier")
    stamp(a, 4)
    a("s_and_b32 s40, s%d, 1" % S_WAVE); a("s_lshr_b32 s41, s%d, 1" % S_WAVE)
    a("s_lshl_b32 s42, s18, 1"); a("s_add_u32 s42, s42, s40"); a("s_mul_i32 s42, s42, %d" % (16 * KVP_STRIDE))
    a("v_lshlrev_b32 v2, 4, v1"); a("s_lshl_b32 s43, s41, 10"); a("s_add_u32 s43, s43, s42"); a("v_add_u32 v3, s43, v2")
    a("v_lshrrev_b32 v4, 2, v1"); a("s_mov_b32 s43, %d" % KVP_STRIDE); a("v_mul_lo_u32 v4, v4, s43"); a("v_and_b32 v6, 3, v1"); a("v_lshl_add_u32 v4, v6, 3, v4")
    a("s_lshl_b32 s43, s41, 5"); a("s_add_u32 s43, s43, s42"); a("s_add_u32 s43, s43, 4096"); a("v_add_u32 v4, s43, v4")
    a("buffer_load_dwordx2 v[10:11], v4, s[52:55], 0 offen %s" % LDF)
    a("s_mov_b32 s43, 0")
    for p in range(16):
        a("buffer_load_dwordx4 v[%d:%d], v3, s[52:55], s43 offen %s" % (32 + p * 4, 35 + p * 4, LDF))
        if p < 15: a("s_add_u32 s43, s43, %d" % KVP_STRIDE)
    def reduce_code(extra):
        a("s_waitcnt vmcnt(%d)" % min(63, 16 + extra))
        a("v_lshlrev_b32 v12, 16, v10"); a("v_and_b32 v13, 0xffff0000, v10"); a("v_lshlrev_b32 v14, 16, v11"); a("v_and_b32 v15, 0xffff0000, v11")
        for sh in (4, 8):
            for q in range(4): a("v_add_f32_dpp v%d, v%d, v%d row_ror:%d row_mask:0xf bank_mask:0xf" % (12 + q, 12 + q, 12 + q, sh))
        allreduce4(a, "v_add_f32", [12, 13, 14, 15], None)
        a("v_cvt_pk_bf16_f32 v10, v12, v13"); a("v_cvt_pk_bf16_f32 v11, v14, v15")
        a("v_and_b32 v6, 3, v1"); a("v_lshlrev_b32 v6, 3, v6"); a("s_lshl_b32 s43, s41, 5"); a("s_lshl_b32 s45, s40, 13"); a("s_add_u32 s43, s43, s45"); a("s_add_u32 s43, s43, %d" % (KVF + 4096)); a("v_add_u32 v6, s43, v6")
        a("ds_write_b64 v6, v[10:11]")
        for p in range(16):
            if p % 4 == 0: a("s_waitcnt vmcnt(%d)" % (12 - p + extra))
            r = 32 + p * 4
            for dw in range(4):
                t = 24 + 2 * (dw & 1)
                a("v_lshlrev_b32 v%d, 16, v%d" % (t, r + dw)); a("v_and_b32 v%d, 0xffff0000, v%d" % (t + 1, r + dw))
                if p == 0: a("v_mov_b32 v%d, v%d" % (16 + 2 * dw, t)); a("v_mov_b32 v%d, v%d" % (17 + 2 * dw, t + 1))
                else: a(pk("v_pk_add_f32", 16 + 2 * dw, 16 + 2 * dw, t))
        a("v_lshlrev_b32 v6, 3, v1"); a("s_lshl_b32 s43, s41, 9"); a("s_add_u32 s43, s43, s45"); a("s_add_u32 s43, s43, %d" % KVF); a("v_add_u32 v7, s43, v6")
        for dt in range(2):
            a("v_cvt_pk_bf16_f32 v28, v%d, v%d" % (16 + dt * 4, 17 + dt * 4)); a("v_cvt_pk_bf16_f32 v29, v%d, v%d" % (18 + dt * 4, 19 + dt * 4))
            a("ds_write_b64 v7, v[28:29] offset:%d" % (dt * 2048))
        a("s_waitcnt lgkmcnt(0)"); a("s_barrier")
    a("s_cmp_lt_u32 s%d, 4" % S_WAVE); a("s_cbranch_scc1 KA_redc")
    reduce_code(0)
    make_srd(a, 8, 60, 1024 * 1024 * 2)
    a("v_lshrrev_b32 v7, 3, v1"); a("v_lshlrev_b32 v7, 11, v7")
    a("v_bfe_u32 v8, v1, 4, 2"); a("v_lshlrev_b32 v8, 1, v8"); a("v_and_b32 v9, 7, v1"); a("v_xor_b32 v8, v8, v9"); a("v_lshl_add_u32 v7, v8, 4, v7")
    a("s_lshl_b32 s43, s49, 15"); a("s_lshl_b32 s45, s31, 7"); a("s_add_u32 s43, s43, s45"); a("v_add_u32 v7, s43, v7")
    a("v_add_u32 v8, %d, v7" % (8 * 2048 - 1024))
    a("s_lshl_b32 s45, s49, 11"); a("s_mov_b32 s43, 0")
    for t in range(16):
        a("s_add_u32 m0, s45, %d" % (t * 8192))
        a("buffer_load_dwordx4 v7, s[8:11], s43 offen lds")
        a("buffer_load_dwordx4 v8, s[8:11], s43 offen offset:1024 lds")
        if t < 15: a("s_add_u32 s43, s43, %d" % (64 * 2048))
    a("s_waitcnt vmcnt(0)")
    stamp(a, 6)
    make_srd(a, 12, 34, 4 * MB, off=WS_O)
    a("v_lshlrev_b32 v2, 4, v1")
    a("s_barrier")
    a("s_branch KA_pre7")
    a.label("KA_redc")
    reduce_code(0)
    stamp(a, 5)
    a("v_lshlrev_b32 v6, 3, v1"); a("s_lshl_b32 s43, s39, 13"); a("s_add_u32 s43, s43, %d" % KVF); a("v_add_u32 v6, s43, v6")
    for dt in range(2):
        for fs in range(2):
            r = 32 + (dt * 2 + fs) * 4
            a("ds_read_b64 v[%d:%d], v6 offset:%d" % (r, r + 1, dt * 2048 + (2 * fs) * 512))
            a("ds_read_b64 v[%d:%d], v6 offset:%d" % (r + 2, r + 3, dt * 2048 + (2 * fs + 1) * 512))
    a("v_lshrrev_b32 v7, 4, v1"); a("v_lshlrev_b32 v7, 3, v7"); a("v_add_u32 v7, s43, v7")
    for fs in range(2):
        a("ds_read_b64 v[%d:%d], v7 offset:%d" % (48 + fs * 4, 49 + fs * 4, 4096 + (2 * fs) * 32))
        a("ds_read_b64 v[%d:%d], v7 offset:%d" % (50 + fs * 4, 51 + fs * 4, 4096 + (2 * fs + 1) * 32))
    for q in range(4): a("v_mov_b32 v%d, 0x3f803f80" % (56 + q))
    a("s_waitcnt lgkmcnt(0)")
    RB = 64
    for i in range(4):
        R = RB + i * 32
        for fs in range(2):
            B = PQ + (i * 2 + fs) * 4
            for dt in range(2):
                d = R + (fs * 2 + dt) * 4; A = 32 + (dt * 2 + fs) * 4
                a("%s v[%d:%d], v[%d:%d], v[%d:%d], 0" % (MF, d, d + 3, A, A + 3, B, B + 3))
            a("%s v[%d:%d], v[%d:%d], v[%d:%d], 0" % (MF, R + 16 + fs * 4, R + 19 + fs * 4, 48 + fs * 4, 51 + fs * 4, B, B + 3))
            a("%s v[%d:%d], v[56:59], v[%d:%d], 0" % (MF, R + 24 + fs * 4, R + 27 + fs * 4, B, B + 3))
    make_srd(a, 12, 34, 4 * MB, off=WS_O)
    a("s_lshl_b32 s40, s38, 2"); a("s_add_u32 s40, s40, s44"); a("s_lshl_b32 s40, s40, 5"); a("s_lshl_b32 s41, s18, 1"); a("s_add_u32 s41, s41, s39"); a("s_add_u32 s40, s40, s41"); a("s_lshl_b32 s40, s40, 10")
    a("v_add_u32 v5, s40, v2"); a("v_xor_b32 v8, 1024, v5")
    for i in range(4):
        R = RB + i * 32
        a("v_rcp_f32 v%d, v%d" % (R + 24, R + 24)); a("v_rcp_f32 v%d, v%d" % (R + 28, R + 28))
    for i in range(4):
        R = RB + i * 32
        a("v_mul_f32 v%d, v%d, v%d" % (R + 16, R + 16, R + 24)); a("v_fma_f32 v%d, v%d, v%d, v%d" % (R + 16, R + 20, R + 28, R + 16))
        a("v_add_f32 v%d, 0x358637bd, v%d" % (R + 16, R + 16))
    for i in range(4):
        R = RB + i * 32
        a("v_rcp_f32 v%d, v%d" % (R + 16, R + 16))
    for i in range(4):
        R = RB + i * 32
        a("v_mul_f32 v%d, v%d, v%d" % (R + 24, R + 24, R + 16)); a("v_mul_f32 v%d, v%d, v%d" % (R + 28, R + 28, R + 16))
    a("s_mov_b32 s43, 0")
    for i in range(4):
        R = RB + i * 32
        for h in range(4): a(pk("v_pk_mul_f32", R + 2 * h, R + 2 * h, R + 24, mods="op_sel_hi:[1,0]"))
        for h in range(4): a(pk("v_pk_fma_f32", R + 2 * h, R + 8 + 2 * h, R + 28, R + 2 * h, mods="op_sel_hi:[1,0,1]"))
        for h in range(4): a("v_cvt_pk_bf16_f32 v%d, v%d, v%d" % (16 + i * 4 + h, R + 2 * h, R + 2 * h + 1))
        a("buffer_store_dwordx4 v[%d:%d], v%d, s[12:15], s43 offen %s" % (16 + i * 4, 19 + i * 4, 5 if i % 2 == 0 else 8, SW))
        if i < 3: a("s_add_u32 s43, s43, %d" % (32 * 1024))
    if STAMP['on']:
        a("s_memrealtime s[98:99]"); a("s_waitcnt lgkmcnt(0)")
    a("s_waitcnt vmcnt(0)")
    a("s_barrier")
    if STAMP['on']:
        a("s_memrealtime s[100:101]"); a("s_waitcnt lgkmcnt(0)")
    a.label("KA_pre7")
    a("s_mov_b32 s17, s30"); a("s_mov_b32 s18, s31"); a("s_lshl_b32 s44, s30, 3")
    make_srd(a, 8, 64, 2048 * 1024 * 2)
    a("s_lshl_b32 s40, s17, 7"); a("s_lshl_b32 s41, s%d, 4" % S_WAVE); a("s_add_u32 s40, s40, s41")
    a("v_and_b32 v9, 15, v1"); a("v_add_u32 v241, s40, v9"); a("v_lshlrev_b32 v9, 11, v241")
    a("s_lshl_b32 s41, s18, 7"); a("v_lshrrev_b32 v10, 4, v1"); a("v_lshl_add_u32 v9, v10, 3, v9"); a("v_add_u32 v9, s41, v9")
    a("s_cmp_lg_u32 s%d, 0" % S_WAVE); a("s_cbranch_scc1 KA_nopoll2")
    signal(a, "KA_s2", 56, 51, 40)
    spin_wait(a, "KA_p2", 56, 29, 16, 40)
    a.label("KA_nopoll2")
    a("s_barrier")
    stamp(a, 6)
    D = 8; AR = 16; BR = 80; AC = 176
    a("s_add_u32 s40, s%d, s44" % S_WAVE); a("s_lshl_b32 s40, s40, 15")
    a("v_add_u32 v3, s40, v2")
    tr_pattern(a, 5, 14)
    for t in range(1, 4): a("v_xor_b32 v%d, %d, v5" % (5 + t, t * 32))
    def aload1(k):
        a("buffer_load_dwordx4 v[%d:%d], v3, s[12:15], s42 offen %s" % (AR + k * 4, AR + k * 4 + 3, LDF))
        a("s_add_u32 s43, s43, 1024"); a("s_and_b32 s43, s43, 0x7fff"); a("s_xor_b32 s42, s43, s45")
    for j in range(4):
        a("buffer_load_dwordx2 v[%d:%d], v9, s[8:11], 0 offen offset:%d" % (208 + j * 2, 209 + j * 2, j * 32))
    a("s_and_b32 s43, s18, 3"); a("s_lshl_b32 s43, s43, 13")
    a("s_lshl_b32 s41, s43, 2")
    for t in range(4): a("v_add_u32 v%d, s41, v%d" % (5 + t, 5 + t))
    a("s_and_b32 s45, s%d, 1" % S_WAVE); a("s_lshl_b32 s45, s45, 10")
    a("s_xor_b32 s42, s43, s45")
    for k in range(D): aload1(k)
    for q in range(16): a("v_mov_b32 v%d, 0" % (AC + q))
    sch = LgkmSched(a)
    def bread_list(setb, k):
        return [("ds_read_b64_tr_b16 v[%d:%d], v%d offset:%d" % (setb + j * 4 + jj * 2, setb + j * 4 + jj * 2 + 1, 5 + j, k * 4096 + jj * 2048), (setb, j)) for j in range(4) for jj in range(2)]
    def body(last):
        for k in range(D):
            cur = BR + (k & 1) * 16; nxt = BR + ((k + 1) & 1) * 16
            if k < D - 1: rd = bread_list(nxt, k + 1)
            elif not last:
                for t in range(4): a("v_add_u32 v%d, %d, v%d" % (5 + t, D * 4096, 5 + t)); a("v_and_b32 v%d, 0x1ffff, v%d" % (5 + t, 5 + t))
                rd = bread_list(nxt, 0)
            else: rd = []
            a("s_waitcnt vmcnt(%d)" % ((D - 1) if not last else (D - 1 - k)))
            for j in range(4):
                sch.need({(cur, j)})
                d = AC + j * 4
                a("%s v[%d:%d], v[%d:%d], v[%d:%d], v[%d:%d]" % (MF, d, d + 3, cur + j * 4, cur + j * 4 + 3, AR + k * 4, AR + k * 4 + 3, d, d + 3))
                for m in (2 * j, 2 * j + 1):
                    if m < len(rd): sch.issue(*rd[m])
            if not last: aload1(k)
    for t_ in bread_list(BR, 0): sch.issue(*t_)
    q0 = list(sch.q)
    a("s_mov_b32 s46, 3")
    a.label("KA_gloop")
    body(False)
    assert sch.q == q0, (sch.q, q0)
    a("s_sub_u32 s46, s46, 1"); a("s_cmp_lg_u32 s46, 0"); a("s_cbranch_scc1 KA_gloop")
    body(True)
    stamp(a, 7)
    make_srd(a, 48, 34, 4 * MB, off=WS_H)
    make_srd(a, 52, 34, 1 * MB, off=WS_STATS)
    for j in range(4):
        for h in range(2):
            a("v_lshlrev_b32 v%d, 16, v%d" % (16 + j * 4 + 2 * h, 208 + j * 2 + h)); a("v_and_b32 v%d, 0xffff0000, v%d" % (17 + j * 4 + 2 * h, 208 + j * 2 + h))
    for q in range(8): a(pk("v_pk_add_f32", AC + 2 * q, AC + 2 * q, 16 + 2 * q))
    a("s_lshl_b32 s41, s18, 11"); a("s_add_u32 s40, s40, s41"); a("v_add_u32 v14, s40, v2")
    for jp in range(2):
        d = 48 + jp * 4
        for q in range(4): a("v_cvt_pk_bf16_f32 v%d, v%d, v%d" % (d + q, AC + jp * 8 + 2 * q, AC + jp * 8 + 2 * q + 1))
        a("buffer_store_dwordx4 v[%d:%d], v14, s[48:51], 0 offen offset:%d %s" % (d, d + 3, jp * 1024, st_flags('h')))
    a(pk("v_pk_add_f32", 16, AC, AC + 2)); a(pk("v_pk_add_f32", 18, AC + 4, AC + 6)); a(pk("v_pk_add_f32", 20, AC + 8, AC + 10)); a(pk("v_pk_add_f32", 22, AC + 12, AC + 14))
    a(pk("v_pk_add_f32", 16, 16, 18)); a(pk("v_pk_add_f32", 20, 20, 22)); a(pk("v_pk_add_f32", 16, 16, 20)); a("v_add_f32 v16, v16, v17")
    def xl(r, t):
        a("v_mov_b32 v%d, v%d" % (t, r)); a("v_permlane32_swap_b32 v%d, v%d" % (r, t)); a("v_add_f32 v%d, v%d, v%d" % (r, r, t))
        a("v_mov_b32 v%d, v%d" % (t, r)); a("v_permlane16_swap_b32 v%d, v%d" % (r, t)); a("v_add_f32 v%d, v%d, v%d" % (r, r, t))
    xl(16, 24)
    a("v_mul_f32 v16, 0x3c800000, v16")
    for q in range(8): a(pk("v_pk_add_f32", AC + 2 * q, AC + 2 * q, 16, mods="op_sel_hi:[1,0] neg_lo:[0,1] neg_hi:[0,1]"))
    a(pk("v_pk_mul_f32", 20, AC, AC)); a(pk("v_pk_mul_f32", 22, AC + 2, AC + 2))
    for q in range(2, 8): a(pk("v_pk_fma_f32", 20 + 2 * (q & 1), AC + 2 * q, AC + 2 * q, 20 + 2 * (q & 1)))
    a(pk("v_pk_add_f32", 20, 20, 22)); a("v_add_f32 v17, v20, v21")
    xl(17, 24)
    a("v_lshlrev_b32 v13, 7, v241"); a("s_lshl_b32 s41, s18, 3"); a("v_add_u32 v13, s41, v13")
    a("v_cmp_gt_u32 vcc, 16, v1"); a("s_and_saveexec_b64 s[56:57], vcc")
    a("buffer_store_dwordx2 v[16:17], v13, s[52:55], 0 offen %s" % st_flags('h'))
    a("s_mov_b64 exec, s[56:57]")
    if STAMP['on']:
        lbl = "ST_skip_ka"
        a("s_waitcnt vmcnt(0)")
        a("s_memrealtime s[96:97]"); a("s_waitcnt lgkmcnt(0)")
        a("s_cmp_lg_u32 s%d, 0" % S_WAVE); a("s_cbranch_scc1 %s" % lbl)
        a("s_load_dwordx2 s[70:71], s[0:1], %d" % KERNARG['ws']); a("s_waitcnt lgkmcnt(0)")
        make_srd(a, 72, 70, 1 * MB, off=WS_STAMP + 512 * 1024)
        a("s_lshl_b32 s76, s2, 6"); a("s_mov_b64 exec, 1"); a("v_mov_b32 v5, s76")
        for i in range(11):
            a("v_mov_b32 v4, s%d" % (80 + 2 * i)); a("buffer_store_dword v4, v5, s[72:75], 0 offen offset:%d" % (i * 4)); a("s_nop 1")
        a.label(lbl)
    a.label("K1_end")
    a("s_endpgm")
    return name, dict(grid=256, block=512, lds=lds_total, vgprs=256)

def gen_k3(a):
    name = "k3_kernel"; L = "K3"
    c = Cfg(MT=4, NT=7, K=1024, NS=3, nblk=4, ldb=7168, acc0=112)
    STL = c.lds
    CSL = c.lds + 1024
    B1F = 36
    kernel_header(a, name)
    a("s_cmp_ge_u32 s2, 256"); a("s_cbranch_scc1 K3_end")
    stamp(a, 0)
    ld_ptr(a, 34, 'ws'); ld_ptr(a, 32, 'w1'); ld_ptr(a, 36, 'b1')
    wave_lane(a)
    tile_map(a, OPT.get('k3map', '8x4'))
    a("s_lshl_b32 s44, s17, 3")
    a("s_and_b32 s43, s18, 1")
    a("s_mul_i32 s45, s18, 448"); a("s_lshl_b32 s42, s43, 6"); a("s_sub_u32 s45, s45, s42")
    for b in range(1, 4): a("s_add_u32 s%d, s45, %d" % (45 + b, b * 128))
    a("s_waitcnt lgkmcnt(0)")
    make_srd(a, S_SRDA, 34, 4 * MB, off=WS_H)
    make_srd(a, S_SRDB, 32, 1024 * 3584 * 2)
    a("s_cmp_ge_u32 s%d, 4" % S_WAVE); a("s_cbranch_scc1 K3_loader")
    vA = 2; vB = [3, 4, 5, 6]
    compute_setup(a, c, vA, vB, tmp=9)
    if OPT.get('touch_k3', OPT.get('touch', 0)):
        nA, nB = map_share(OPT.get('k3map', '8x4'))
        touch_setup(a, c, nA, nB, 66, 67, 44, 45, 128, 252, 253, 12, 68, 69, 254, OPT.get('touch_k3', OPT.get('touch', 0)))
    a("s_mul_i32 s40, s39, 7"); a("s_lshl_b32 s41, s43, 1"); a("s_add_u32 s40, s40, s41")
    a("v_mov_b32 v9, v3")
    for j in range(4):
        a("s_add_u32 s41, s40, %d" % j); a("s_and_b32 s42, s41, 3"); a("s_lshl_b32 s42, s42, 5"); a("v_xor_b32 v%d, s42, v9" % (3 + j))
        a("s_lshr_b32 s42, s41, 2"); a("s_lshl_b32 s42, s42, 13"); a("v_add_u32 v%d, s42, v%d" % (3 + j, 3 + j))
    tm = [(vB[j & 3], c.blk_off[0] + (j >> 2) * 8192) for j in range(7)]
    make_srd(a, 48, 34, 2048 * 3584 * 2, off=WS_H1)
    make_srd(a, 56, 36, 3584 * 2)
    a("s_mul_i32 s40, s18, 224"); a("s_mul_i32 s41, s39, 112"); a("s_add_u32 s40, s40, s41")
    a("v_lshrrev_b32 v9, 4, v1"); a("v_lshlrev_b32 v9, 2, v9"); a("v_add_u32 v9, s40, v9")
    a("v_lshlrev_b32 v10, 2, v9"); a("v_lshlrev_b32 v11, 1, v9")
    def after_b0(a):
        stamp(a, 1)
        for j in range(7):
            a("buffer_load_dwordx2 v[%d:%d], v11, s[56:59], 0 offen offset:%d" % (224 + j * 2, 225 + j * 2, j * 32))
    c.after_b0 = after_b0
    a("s_lshl_b32 s40, s38, 2"); a("s_add_u32 s40, s40, s44"); a("s_mul_i32 s40, s40, 112")
    a("s_mul_i32 s41, s18, 7"); a("s_add_u32 s40, s40, s41")
    a("s_mul_i32 s41, s39, 3"); a("s_add_u32 s40, s40, s41")
    a("s_lshl_b32 s40, s40, 10")
    a("v_lshlrev_b32 v14, 4, v1"); a("v_add_u32 v14, s40, v14")
    compute_loop(a, c, L, tm, vA)
    stamp(a, 2)
    a("s_barrier")
    a("v_and_b32 v12, 15, v1"); a("v_lshlrev_b32 v12, 3, v12"); a("s_lshl_b32 s41, s38, 9"); a("s_add_u32 s41, s41, %d" % STL); a("v_add_u32 v12, s41, v12")
    for i in range(4): a("ds_read_b64 v[%d:%d], v12 offset:%d" % (16 + 2 * i, 17 + 2 * i, i * 128))
    a("s_mul_i32 s40, s39, 7"); a("s_lshl_b32 s41, s43, 1"); a("s_add_u32 s40, s40, s41"); a("s_lshl_b32 s40, s40, 6"); a("s_add_u32 s40, s40, %d" % CSL)
    a("v_lshrrev_b32 v12, 4, v1"); a("v_lshlrev_b32 v12, 4, v12"); a("v_add_u32 v12, s40, v12")
    for j in range(7): a("ds_read_b128 v[%d:%d], v12 offset:%d" % (100 - 0 + 0 if False else 64 + j * 4, 67 + j * 4, j * 64))
    a("s_waitcnt vmcnt(0) lgkmcnt(0)")
    for i in range(4): a("v_mov_b32 v%d, v%d" % (24 + 2 * i, 17 + 2 * i))
    for j in range(7):
        for h in range(2):
            a("v_lshlrev_b32 v%d, 16, v%d" % (B1F + j * 4 + 2 * h, 224 + j * 2 + h)); a("v_and_b32 v%d, 0xffff0000, v%d" % (B1F + j * 4 + 2 * h + 1, 224 + j * 2 + h))
    def acc(i, j): return c.acc0 + (i * 7 + j) * 4
    def tile_vals(i, j, dst, tmp):
        b = acc(i, j)
        for h in range(2):
            a(pk("v_pk_fma_f32", tmp + 2 * h, 64 + j * 4 + 2 * h, 24 + 2 * i, B1F + j * 4 + 2 * h, mods="op_sel_hi:[1,0,1] neg_lo:[0,1,0] neg_hi:[0,1,0]"))
        for h in range(2):
            a(pk("v_pk_fma_f32", b + 2 * h, b + 2 * h, 16 + 2 * i, tmp + 2 * h, mods="op_sel_hi:[1,0,1]"))
        for r in range(4): a("v_max_f32 v%d, 0, v%d" % (tmp + r, b + r))
        for h in range(2): a(pk("v_pk_mul_f32", b + 2 * h, b + 2 * h, tmp + 2 * h))
        a("v_cvt_pk_bf16_f32 v%d, v%d, v%d" % (dst, b, b + 1)); a("v_cvt_pk_bf16_f32 v%d, v%d, v%d" % (dst + 1, b + 2, b + 3))
    def pair(i, j0, dst):
        interleave(a, lambda x: tile_vals_on(x, i, j0, dst, 92), lambda x: tile_vals_on(x, i, j0 + 1, dst + 2, 96))
    def tile_vals_on(x, i, j, dst, tmp):
        nonlocal a
        sv = a; a = x
        tile_vals(i, j, dst, tmp)
        a = sv
    fl = st_flags('h1')
    a("s_mov_b32 s42, 0")
    a("s_cmp_eq_u32 s39, 0"); a("s_cbranch_scc0 K3_epi1")
    for i in range(4):
        for pr in range(3):
            d = 100 + ((i * 4 + pr) % 3) * 4
            pair(i, 2 * pr, d)
            a("buffer_store_dwordx4 v[%d:%d], v14, s[48:51], s42 offen offset:%d %s" % (d, d + 3, pr * 1024, fl))
        d = 100 + ((i * 4 + 3) % 3) * 4
        tile_vals(i, 6, d, 92)
        a("buffer_store_dwordx2 v[%d:%d], v14, s[48:51], s42 offen offset:3072 %s" % (d, d + 1, fl))
        if i < 3: a("s_add_u32 s42, s42, %d" % (112 * 1024))
    stamp_flush(a, 4, 3)
    a("s_branch K3_end")
    a.label("K3_epi1")
    for i in range(4):
        d = 100
        tile_vals(i, 0, d, 92)
        a("buffer_store_dwordx2 v[%d:%d], v14, s[48:51], s42 offen offset:8 %s" % (d, d + 1, fl))
        for pr in range(3):
            d = 100 + ((pr + 1) % 3) * 4
            pair(i, 2 * pr + 1, d)
            a("buffer_store_dwordx4 v[%d:%d], v14, s[48:51], s42 offen offset:%d %s" % (d, d + 3, (pr + 1) * 1024, fl))
        if i < 3: a("s_add_u32 s42, s42, %d" % (112 * 1024))
    a("s_branch K3_end")
    a.label("K3_loader")
    Ld = loader_setup(a, c, 44, ["s45", "s46", "s47", "s48"])
    make_srd(a, 12, 34, 1 * MB, off=WS_STATS)
    make_srd(a, 52, 34, 16 * 16 * 1024, off=WS_CSP)
    make_srd(a, 56, 34, 65536, off=WS_CNT)
    a("s_sub_u32 s49, s%d, 4" % S_WAVE)
    a("s_lshl_b32 s40, s17, 7"); a("s_lshl_b32 s42, s49, 5"); a("s_add_u32 s40, s40, s42")
    a("v_and_b32 v30, 15, v1"); a("v_add_u32 v30, s40, v30"); a("v_lshlrev_b32 v30, 7, v30")
    a("v_lshrrev_b32 v31, 4, v1"); a("v_lshl_add_u32 v30, v31, 5, v30")
    a("s_add_u32 s50, s18, 64"); a("s_lshl_b32 s50, s50, 8")
    a("v_lshrrev_b32 v26, 3, v1"); a("s_mov_b32 s42, 7168"); a("v_mul_lo_u32 v26, v26, s42"); a("v_and_b32 v27, 7, v1"); a("v_lshl_add_u32 v26, v27, 4, v26")
    a("s_mul_i32 s40, s17, %d" % (64 * 7168)); a("s_lshl_b32 s42, s49, 7"); a("s_add_u32 s40, s40, s42"); a("s_add_u32 s40, s40, s45"); a("v_add_u32 v26, s40, v26")
    a("s_lshl_b32 s40, s18, 4"); a("s_add_u32 s40, s40, s17"); a("s_lshl_b32 s40, s40, 10"); a("s_lshl_b32 s42, s49, 8"); a("s_add_u32 s40, s40, s42")
    a("v_lshlrev_b32 v25, 5, v27"); a("v_add_u32 v25, s40, v25")
    a("s_lshl_b32 s40, s18, 14"); a("s_lshl_b32 s42, s49, 8"); a("s_add_u32 s40, s40, s42")
    a("v_lshlrev_b32 v29, 12, v31"); a("v_and_b32 v28, 15, v1"); a("v_lshl_add_u32 v29, v28, 4, v29"); a("v_add_u32 v29, s40, v29")
    def after_ramp(a):
        a("s_mov_b32 s42, 0")
        for i in range(8):
            a("buffer_load_dwordx4 v[%d:%d], v26, s[%d:%d], s42 offen" % (160 + i * 4, 163 + i * 4, S_SRDB, S_SRDB + 3))
            if i < 7: a("s_add_u32 s42, s42, %d" % (8 * 7168))
    def hook_sum(a):
        for q in range(8): a("v_mov_b32 v%d, 0" % (192 + q))
        for i in range(8):
            for dw in range(4):
                r = 160 + 4 * i + dw; t = 200 + 2 * (dw & 1)
                a("v_lshlrev_b32 v%d, 16, v%d" % (t, r)); a("v_and_b32 v%d, 0xffff0000, v%d" % (t + 1, r))
                a(pk("v_pk_add_f32", 192 + 2 * dw, 192 + 2 * dw, t))
        for q in range(8): a("v_add_f32_dpp v%d, v%d, v%d row_ror:8 row_mask:0xf bank_mask:0xf" % (192 + q, 192 + q, 192 + q))
        allreduce4(a, "v_add_f32", [192, 193, 194, 195], None); allreduce4(a, "v_add_f32", [196, 197, 198, 199], None)
        a("s_mov_b64 s[78:79], exec"); a("s_mov_b64 exec, 0xff")
        a("buffer_store_dwordx4 v[192:195], v25, s[52:55], 0 offen sc1"); a("buffer_store_dwordx4 v[196:199], v25, s[52:55], 0 offen offset:16 sc1")
        a("s_mov_b64 exec, s[78:79]")
    def hook_signal(a):
        a("s_cmp_lg_u32 s%d, 4" % S_WAVE); a("s_cbranch_scc1 K3_hookret")
        signal(a, "K3_s", 56, 50, 204)
    def hook_pollissue(a):
        a("v_mov_b32 v207, 0")
        a("buffer_load_dword v206, v207, s[56:59], s50 offen sc1")
    def hook_pollcheck(a):
        a("v_readfirstlane_b32 s78, v206")
        a("s_cmp_ge_u32 s78, 16"); a("s_cbranch_scc1 K3_hookret")
        spin_wait(a, "K3_sp", 56, 50, 16, 206)
    def tail(a):
        for i in range(2):
            for q in range(2):
                a("buffer_load_dwordx4 v[%d:%d], v30, s[12:15], 0 offen offset:%d" % (64 + i * 8 + q * 4, 67 + i * 8 + q * 4, i * 16 * 128 + q * 16))
        for i in range(4):
            a("buffer_load_dwordx4 v[%d:%d], v29, s[52:55], 0 offen offset:%d" % (96 + i * 4, 99 + i * 4, i * 1024))
    loader_loop(a, c, Ld, L, tail_loads=tail, n_tail=8, after_ramp=after_ramp, hooks={2: hook_sum, 5: hook_signal, 10: hook_pollissue, 12: hook_pollcheck})
    a("s_waitcnt vmcnt(0)")
    def xl2(r, t):
        a("v_mov_b32 v%d, v%d" % (t, r)); a("v_permlane32_swap_b32 v%d, v%d" % (r, t)); a("v_add_f32 v%d, v%d, v%d" % (r, r, t))
        a("v_mov_b32 v%d, v%d" % (t, r)); a("v_permlane16_swap_b32 v%d, v%d" % (r, t)); a("v_add_f32 v%d, v%d, v%d" % (r, r, t))
    for i in range(2):
        b = 64 + i * 8
        mean, var, t = 40 + i * 4, 41 + i * 4, 42 + i * 4
        a("v_add_f32 v%d, v%d, v%d" % (mean, b, b + 2))
        for q in range(2, 4): a("v_add_f32 v%d, v%d, v%d" % (mean, mean, b + 2 * q))
        xl2(mean, t)
        a("v_mul_f32 v%d, 0x3d800000, v%d" % (mean, mean))
        a("v_mov_b32 v%d, 0" % var)
        for q in range(4):
            a("v_sub_f32 v%d, v%d, v%d" % (t, b + 2 * q, mean)); a("v_mul_f32 v%d, v%d, v%d" % (t, t, t))
            a("v_fmac_f32 v%d, 0x42800000, v%d" % (var, t)); a("v_add_f32 v%d, v%d, v%d" % (var, var, b + 2 * q + 1))
        xl2(var, t)
        a("v_mul_f32 v%d, 0x3a800000, v%d" % (var, var))
        bf16_round(a, mean, mean); bf16_round(a, var, var)
        a("v_add_f32 v%d, 0x3727c5ac, v%d" % (var, var)); bf16_round(a, var, var)
        a("v_sqrt_f32 v%d, v%d" % (var, var)); bf16_round(a, var, var)
        a("v_rcp_f32 v%d, v%d" % (50 + 2 * i, var))
        a("v_mul_f32 v%d, v%d, v%d" % (51 + 2 * i, 50 + 2 * i, mean))
    for lv in (2, 1):
        for i in range(lv):
            for h in range(2): a(pk("v_pk_add_f32", 96 + i * 4 + 2 * h, 96 + i * 4 + 2 * h, 96 + (i + lv) * 4 + 2 * h))
    allreduce4(a, "v_add_f32", [96, 97, 98, 99], None)
    a("v_and_b32 v28, 15, v1"); a("v_lshlrev_b32 v28, 4, v28"); a("s_lshl_b32 s41, s49, 8"); a("s_add_u32 s41, s41, %d" % CSL); a("v_add_u32 v28, s41, v28")
    a("ds_write_b128 v28, v[96:99]")
    a("v_and_b32 v30, 15, v1"); a("v_lshlrev_b32 v30, 3, v30"); a("s_lshl_b32 s41, s49, 8"); a("s_add_u32 s41, s41, %d" % STL); a("v_add_u32 v30, s41, v30")
    a("ds_write_b64 v30, v[50:51]"); a("ds_write_b64 v30, v[52:53] offset:128")
    a("s_waitcnt lgkmcnt(0)"); a("s_barrier")
    a.label("K3_end")
    a("s_endpgm")
    return name, dict(grid=256, block=512, lds=c.lds + 2048, vgprs=256)

def gen_k4(a):
    name = "k4_kernel"; L = "K4"
    c = Cfg(MT=4, NT=2, K=3584, NS=OPT.get('k4ns', 6), nblk=1, ldb=2048, acc0=112, aflags=OPT.get('k4a', ''), bflags=OPT.get('k4b', ''))
    kernel_header(a, name)
    a("s_cmp_ge_u32 s2, 256"); a("s_cbranch_scc1 K4_end")
    stamp(a, 0)
    ld_ptr(a, 34, 'ws'); ld_ptr(a, 32, 'w2'); ld_ptr(a, 36, 'b2'); ld_ptr(a, 62, 'out')
    wave_lane(a)
    tile_map(a, OPT.get('k4map', '4x8'))
    a("s_lshl_b32 s44, s17, 3")
    a("s_lshl_b32 s45, s18, 7")
    a("s_waitcnt lgkmcnt(0)")
    make_srd(a, S_SRDA, 34, 2048 * 3584 * 2, off=WS_H1)
    make_srd(a, S_SRDB, 32, 3584 * 1024 * 2)
    a("s_cmp_ge_u32 s%d, 4" % S_WAVE); a("s_cbranch_scc1 K4_loader")
    vA = 2; vB = [3, 4]
    compute_setup(a, c, vA, vB, tmp=9)
    a("s_lshl_b32 s25, s39, 6"); a("v_xor_b32 v3, s25, v3"); a("v_xor_b32 v4, 32, v3")
    tm = [(vB[j], c.blk_off[0]) for j in range(2)]
    if OPT.get('touch_k4', OPT.get('touch', 0)):
        nA, nB = map_share(OPT.get('k4map', '4x8'))
        touch_setup(a, c, nA, nB, 66, 67, 44, 45, 128, 252, 253, 12, 68, 69, 254, OPT.get('touch_k4', OPT.get('touch', 0)))
    make_srd(a, 52, 62, 2048 * 1024 * 2)
    make_srd(a, 56, 36, 1024 * 2)
    make_srd(a, 48, 34, 4 * MB, off=WS_H)
    a("s_lshl_b32 s40, s38, 2"); a("s_add_u32 s40, s40, s44"); a("s_lshl_b32 s40, s40, 5"); a("s_lshl_b32 s41, s18, 1"); a("s_add_u32 s41, s41, s39"); a("s_add_u32 s40, s40, s41")
    a("s_lshl_b32 s40, s40, 10")
    a("v_lshlrev_b32 v14, 4, v1"); a("v_add_u32 v14, s40, v14")
    a("s_lshl_b32 s40, s18, 6"); a("s_lshl_b32 s41, s39, 5"); a("s_add_u32 s40, s40, s41")
    a("v_lshrrev_b32 v12, 4, v1"); a("v_lshlrev_b32 v12, 2, v12"); a("v_add_u32 v12, s40, v12"); a("v_lshlrev_b32 v12, 1, v12")
    def after_b0(a):
        stamp(a, 1)
        a("s_mov_b32 s42, 0")
        for i in range(4):
            a("buffer_load_dwordx4 v[%d:%d], v14, s[48:51], s42 offen" % (160 + i * 4, 163 + i * 4))
            if i < 3: a("s_add_u32 s42, s42, %d" % (32 * 1024))
        for j in range(2): a("buffer_load_dwordx2 v[%d:%d], v12, s[56:59], 0 offen offset:%d" % (176 + j * 2, 177 + j * 2, j * 32))
    c.after_b0 = after_b0
    a("s_lshl_b32 s40, s17, 7"); a("s_lshl_b32 s42, s38, 6"); a("s_add_u32 s40, s40, s42")
    a("v_and_b32 v9, 15, v1"); a("v_add_u32 v9, s40, v9"); a("v_lshlrev_b32 v9, 11, v9")
    a("v_bfe_u32 v10, v1, 4, 1"); a("v_lshl_add_u32 v9, v10, 5, v9")
    a("v_lshrrev_b32 v10, 5, v1"); a("v_lshl_add_u32 v9, v10, 4, v9")
    a("s_lshl_b32 s41, s18, 7"); a("s_lshl_b32 s42, s39, 6"); a("s_add_u32 s41, s41, s42"); a("v_add_u32 v9, s41, v9")
    (compute_loop_full if OPT.get('full', 1) else compute_loop)(a, c, L, tm, vA)
    stamp(a, 2)
    a("s_waitcnt vmcnt(0)")
    for j in range(2):
        for h in range(2):
            a("v_lshlrev_b32 v%d, 16, v%d" % (180 + j * 4 + 2 * h, 176 + j * 2 + h)); a("v_and_b32 v%d, 0xffff0000, v%d" % (181 + j * 4 + 2 * h, 176 + j * 2 + h))
    for i in range(4):
        for q in range(4):
            a("v_lshlrev_b32 v%d, 16, v%d" % (16 + i * 8 + 2 * q, 160 + i * 4 + q)); a("v_and_b32 v%d, 0xffff0000, v%d" % (17 + i * 8 + 2 * q, 160 + i * 4 + q))
    for i in range(4):
        b = c.acc0 + i * 8
        for q in range(4): a(pk("v_pk_add_f32", b + 2 * q, b + 2 * q, 180 + 2 * q))
    for i in range(4):
        b = c.acc0 + i * 8
        for q in range(4): a(pk("v_pk_add_f32", b + 2 * q, b + 2 * q, 16 + i * 8 + 2 * q))
    a("s_mov_b32 s42, 0")
    for i in range(4):
        b = c.acc0 + i * 8; d = 48 + i * 4
        for q in range(4): a("v_cvt_pk_bf16_f32 v%d, v%d, v%d" % (d + q, b + 2 * q, b + 2 * q + 1))
    for i in range(4):
        d = 48 + i * 4
        a("v_permlane16_swap_b32 v%d, v%d" % (d, d + 2)); a("v_permlane16_swap_b32 v%d, v%d" % (d + 1, d + 3))
    for i in range(4):
        d = 48 + i * 4
        a("buffer_store_dwordx4 v[%d:%d], v9, s[52:55], s42 offen %s" % (d, d + 3, st_flags('out')))
        if i < 3: a("s_add_u32 s42, s42, %d" % (16 * 2048))
    stamp_flush(a, 5, 3)
    if OPT.get('dbgout'):
        a("s_cmp_lg_u32 s2, 0"); a("s_cbranch_scc1 K4_end"); a("s_cmp_lg_u32 s%d, 0" % S_WAVE); a("s_cbranch_scc1 K4_end")
        a("s_waitcnt vmcnt(0)")
        a("s_mov_b64 exec, 0xffff")
        a("s_load_dwordx2 s[70:71], s[0:1], %d" % KERNARG['ws']); a("s_load_dwordx2 s[68:69], s[0:1], %d" % KERNARG['dbg']); a("s_waitcnt lgkmcnt(0)")
        make_srd(a, 72, 70, 1 * MB, off=WS_STAMP)
        offs = [0, 16, 512*1024 + 0, 512*1024 + 4, 512*1024 + 8, 512*1024 + 16, 512*1024 + 24, 512*1024 + 32, 4*512*32 + 0, 4*512*32 + 4, 4*512*32 + 8, 4*512*32 + 16, 5*512*32 + 0, 5*512*32 + 4, 5*512*32 + 8, 5*512*32 + 16]
        a("v_mov_b32 v6, 0")
        for i, o in enumerate(offs):
            a("v_mov_b32 v7, %d" % o); a("v_cmp_eq_u32 vcc, %d, v1" % i); a("v_cndmask_b32 v6, v6, v7, vcc")
        a("buffer_load_dword v8, v6, s[72:75], 0 offen sc1"); a("v_mov_b32 v9, 0"); a("buffer_load_dword v10, v9, s[72:75], 0 offen sc1")
        a("s_waitcnt vmcnt(0)")
        a("v_sub_u32 v8, v8, v10")
        a("s_sub_u32 s68, s68, %d" % (OPT.get("dbgoff", 3) * 512)); a("s_subb_u32 s69, s69, 0"); a("s_mov_b32 s70, 64"); a("s_mov_b32 s71, 0x20000")
        a("s_mov_b32 s72, s68"); a("s_mov_b32 s73, s69"); a("s_mov_b32 s74, 64"); a("s_mov_b32 s75, 0x20000")
        a("v_lshlrev_b32 v6, 2, v1")
        a("buffer_store_dword v8, v6, s[72:75], 0 offen")
    a("s_branch K4_end")
    a.label("K4_loader")
    Ld = loader_setup(a, c, 44, ["s45"])
    loader_loop(a, c, Ld, L)
    a.label("K4_end")
    a("s_endpgm")
    a.label("CODE_END")
    return name, dict(grid=256, block=512, lds=c.lds, vgprs=256)

def build(opt):
    OPT.clear(); OPT.update(opt)
    STAMP['on'] = opt.get('stamp', False)
    hdr = open("cdna_kernels/%s.s.ref" % NAME).read().split("; Override launch")[0]
    kernels = []
    body = []
    for g in (gen_k0, gen_k1, gen_k3, gen_k4):
        a = Asm()
        name, info = g(a)
        lines, n = hazard.fix(a.lines)
        body.append("\n".join(lines) + "\n")
        kernels.append((name, info))
    order = opt.get('order', [k for k, _ in kernels])
    info = dict(kernels)
    txt = hdr
    for k in order:
        i = info[k]
        txt += "; @launch kernel=%s grid=(%d,1,1) block=(%d,1,1) lds=%d\n" % (k, i['grid'], i['block'], i['lds'])
    txt += '.amdgcn_target "amdgcn-amd-amdhsa--gfx950"\n.text\n' + "".join(body)
    txt += '.section .rodata,"a"\n'
    for k, i in kernels:
        txt += ".p2align 6\n" + kernel_desc(k, i['vgprs'])
    return txt

if __name__ == "__main__":
    opt = json.loads(sys.argv[2]) if len(sys.argv) > 2 else {}
    open(sys.argv[1], "w").write(build(opt))
```

```python
from asmlib import *

S_SRDA = 4; S_SRDB = 8; S_WAVE = 16; S_CNT = 19; S_STG = 20; S_KA = 21; S_KB = 22; S_T0 = 23; S_T1 = 24; S_T2 = 25; S_RD = 26; S_NEG = 27; S_POS = 28
MF = "v_mfma_f32_16x16x32_bf16"

class Cfg:
    def __init__(self, **kw):
        self.WM = 2; self.WN = 2; self.MT = 4; self.NT = 6
        self.K = 1024; self.NS = 3; self.nblk = 3; self.ldb = 6144
        self.swap_tiles = set(); self.acc0 = 112; self.frag0 = 16
        self.aflags = ""; self.bflags = ""
        self.after_b0 = None
        self.__dict__.update(kw)
        self.BM = self.WM * self.MT * 16
        self.T = self.K // 64
        self.A_bytes = self.BM * 128
        self.blk_off = [self.A_bytes + 8192 * b for b in range(self.nblk)]
        self.stage = self.A_bytes + 8192 * self.nblk
        self.lds = self.stage * self.NS

def loader_setup(a, c, s_mtbase, blk_col_sgprs, vbase=2):
    nmt = c.BM // 16
    per = nmt // 4
    va = []
    v = vbase
    a("s_sub_u32 s%d, s%d, 4" % (S_T0, S_WAVE))
    a("v_lshlrev_b32 v%d, 4, v1" % v)
    lane16 = v; v += 1
    a("s_mul_i32 s%d, s%d, %d" % (S_T1, S_T0, per))
    a("s_add_u32 s%d, s%d, s%d" % (S_T1, S_T1, s_mtbase))
    KS = getattr(c, 'Kstride', c.K)
    a("s_mul_i32 s%d, s%d, %d" % (S_T1, S_T1, KS // 32 * 1024))
    for i in range(per):
        a("v_add_u32 v%d, s%d, v%d" % (v, S_T1, lane16))
        if i < per - 1: a("s_add_u32 s%d, s%d, %d" % (S_T1, S_T1, KS // 32 * 1024))
        va.append(v); v += 1
    tmp = v; v += 1
    tmp2 = v; v += 1
    patf = v; v += 1
    a("s_mov_b32 s%d, %d" % (S_T1, c.ldb))
    a("v_lshrrev_b32 v%d, 3, v1" % tmp)
    a("v_mul_lo_u32 v%d, v%d, s%d" % (patf, tmp, S_T1))
    a("v_bfe_u32 v%d, v1, 4, 2" % tmp); a("v_lshlrev_b32 v%d, 1, v%d" % (tmp, tmp))
    a("v_and_b32 v%d, 7, v1" % tmp2)
    a("v_xor_b32 v%d, v%d, v%d" % (tmp, tmp, tmp2))
    a("v_lshl_add_u32 v%d, v%d, 4, v%d" % (patf, tmp, patf))
    a("s_mul_i32 s%d, s%d, %d" % (S_T2, S_T0, 16 * c.ldb))
    vb = []
    for bi in range(c.nblk):
        a("s_add_u32 s%d, s%d, %s" % (S_T1, S_T2, blk_col_sgprs[bi]))
        a("v_add_u32 v%d, s%d, v%d" % (v, S_T1, patf))
        a("v_add_u32 v%d, %d, v%d" % (v + 1, 8 * c.ldb - 1024, v))
        vb.append([v, v + 1]); v += 2
    a("s_mul_i32 s27, s%d, %d" % (S_T0, per * 2048))
    a("s_lshl_b32 s28, s%d, 11" % S_T0)
    ndma = per * 2 + 2 * c.nblk
    return dict(va=va, vb=vb, ndma=ndma, per=per, vnext=v)

def loader_issue(a, c, L):
    for i, v in enumerate(L['va']):
        if i == 0:
            a("s_add_u32 m0, s%d, s27" % S_STG)
        else:
            a("s_add_u32 m0, m0, 2048")
        for s in range(2):
            a("buffer_load_dwordx4 v%d, s[%d:%d], s%d offen offset:%d %s lds" % (v, S_SRDA, S_SRDA + 3, S_KA, s * 1024, c.aflags))
    a("s_add_u32 s%d, s%d, s28" % (S_T1, S_STG))
    for bi in range(c.nblk):
        a("s_add_u32 m0, s%d, %d" % (S_T1, c.blk_off[bi]))
        for e, v in enumerate(L['vb'][bi]):
            a("buffer_load_dwordx4 v%d, s[%d:%d], s%d offen offset:%d %s lds" % (v, S_SRDB, S_SRDB + 3, S_KB, e * 1024, c.bflags))

def loader_advance(a, c):
    a("s_add_u32 s%d, s%d, 2048" % (S_KA, S_KA))
    a("s_add_u32 s%d, s%d, %d" % (S_KB, S_KB, 64 * c.ldb))
    a("s_add_u32 s%d, s%d, %d" % (S_STG, S_STG, c.stage))
    a("s_cmp_eq_u32 s%d, %d" % (S_STG, c.stage * c.NS))
    a("s_cselect_b32 s%d, 0, s%d" % (S_STG, S_STG))

def loader_loop(a, c, L, lbl, tail_loads=None, n_tail=0, after_ramp=None, hooks=None):
    nd = L['ndma']; NS = c.NS; T = c.T
    pre = NS - 1
    a("s_mov_b32 s%d, 0" % S_STG)
    a("s_mov_b32 s%d, %s" % (S_KA, getattr(c, 'ka0', '0'))); a("s_mov_b32 s%d, %s" % (S_KB, getattr(c, 'kb0', '0')))
    p0 = min(2, pre)
    for p in range(p0):
        loader_issue(a, c, L); loader_advance(a, c)
    a("s_waitcnt vmcnt(%d)" % (nd * (p0 - 1)))
    a("s_barrier")
    for p in range(p0, NS):
        loader_issue(a, c, L); loader_advance(a, c)
    if after_ramp: after_ramp(a)
    n_loop = T - pre - 1
    a("s_mov_b32 s%d, %d" % (S_CNT, n_loop))
    a.label(lbl + "_lloop")
    a("s_waitcnt vmcnt(%d)" % (nd * (pre - 1)))
    a("s_barrier")
    loader_issue(a, c, L); loader_advance(a, c)
    hooks = hooks or {}
    for t in sorted(hooks):
        a("s_cmp_eq_u32 s%d, %d" % (S_CNT, n_loop - (t - 1))); a("s_cbranch_scc1 %s_hook%d" % (lbl, t))
    a.label(lbl + "_hookret")
    a("s_sub_u32 s%d, s%d, 1" % (S_CNT, S_CNT))
    a("s_cmp_lg_u32 s%d, 0" % S_CNT)
    a("s_cbranch_scc1 %s_lloop" % lbl)
    if hooks:
        a("s_branch %s_lafter" % lbl)
        for t in sorted(hooks):
            a.label("%s_hook%d" % (lbl, t))
            hooks[t](a)
            a("s_branch %s_hookret" % lbl)
        a.label(lbl + "_lafter")
    if tail_loads: tail_loads(a)
    for r in range(pre):
        n = nd * (pre - 1 - r) + n_tail
        assert n <= 63
        a("s_waitcnt vmcnt(%d)" % n)
        a("s_barrier")

def compute_setup(a, c, vA, vB, tmp):
    a("s_lshr_b32 s38, s%d, 1" % S_WAVE); a("s_and_b32 s39, s%d, 1" % S_WAVE)
    a("s_mul_i32 s%d, s38, %d" % (S_T2, c.MT * 2048))
    a("v_lshlrev_b32 v%d, 4, v1" % vA)
    a("v_add_u32 v%d, s%d, v%d" % (vA, S_T2, vA))
    tr_pattern(a, vB[0], tmp)

def tr_pattern(a, dst, tmp):
    t0, t1 = tmp, tmp + 1
    a("v_bfe_u32 v%d, v1, 1, 1" % t0)
    a("v_bfe_u32 v%d, v1, 3, 2" % t1)
    a("v_lshlrev_b32 v%d, 1, v%d" % (t1, t1))
    a("v_xor_b32 v%d, v%d, v%d" % (t0, t0, t1))
    a("v_lshrrev_b32 v%d, 2, v1" % t1)
    a("v_lshlrev_b32 v%d, 7, v%d" % (dst, t1))
    a("v_lshl_add_u32 v%d, v%d, 4, v%d" % (dst, t0, dst))
    a("v_and_b32 v%d, 1, v1" % t1)
    a("v_lshl_add_u32 v%d, v%d, 3, v%d" % (dst, t1, dst))

def compute_loop(a, c, lbl, tilemap, vA):
    MT, NT = c.MT, c.NT
    fs = (MT + NT) * 4
    P = c.frag0; Q = c.frag0 + fs
    assert c.frag0 + 2 * fs <= c.acc0
    def act(setb, i): return setb + i * 4
    def wt(setb, j): return setb + MT * 4 + j * 4
    def accr(i, j): return c.acc0 + (i * NT + j) * 4
    sch = LgkmSched(a)
    addr_regs = sorted(set([vA] + [t[0] for t in tilemap]))
    def reads(setb, s):
        out = []
        order = [('a', 0), ('w', 0)] + [('a', i) for i in range(1, MT)] + [('w', j) for j in range(1, NT)]
        for kind, j in order:
            if kind == 'a':
                out.append(("ds_read_b128 %s, v%d offset:%d" % (vr(act(setb, j), 4), vA, (j * 2 + s) * 1024), (setb, 'a', j)))
            else:
                reg, imm = tilemap[j]
                for jj in range(2):
                    out.append(("ds_read_b64_tr_b16 %s, v%d offset:%d" % (vr(wt(setb, j) + jj * 2, 2), reg, imm + s * 4096 + jj * 2048), (setb, 'w', j)))
        return out
    ms = [(i, j) for j in range(NT) for i in range(MT)]
    def advance():
        a("s_add_u32 s%d, s%d, %d" % (S_RD, S_RD, c.stage))
        a("s_cmp_eq_u32 s%d, %d" % (S_RD, c.stage * c.NS))
        a("s_cselect_b32 s%d, s%d, s%d" % (S_T0, S_NEG, S_POS))
        a("s_cselect_b32 s%d, 0, s%d" % (S_RD, S_RD))
        for r in addr_regs:
            a("v_add_u32 v%d, s%d, v%d" % (r, S_T0, r))
    T_ = getattr(c, 'touch', None)
    def do_touch():
        if not T_: return
        a("buffer_load_dword v%d, v%d, s[%d:%d], s%d offen" % (T_['dst'], T_['vA'], S_SRDA, S_SRDA + 3, T_['sA']))
        a("s_add_u32 s%d, s%d, 2048" % (T_['sA'], T_['sA']))
        a("buffer_load_dword v%d, v%d, s[%d:%d], s%d offen" % (T_['dst'] + 1, T_['vB'], S_SRDB, S_SRDB + 3, T_['sB']))
        a("s_add_u32 s%d, s%d, %d" % (T_['sB'], T_['sB'], 64 * c.ldb))
    def group(setc, setn, s_next, pre_barrier=False, noreads=False, post=None, first=False, touch=False):
        rd = [] if noreads else reads(setn, s_next)
        if pre_barrier:
            sch.drain()
            a("s_barrier")
        ri = 0
        nm = len(ms)
        for k, (i, j) in enumerate(ms):
            sch.need({(setc, 'a', i), (setc, 'w', j)})
            A_, B_ = wt(setc, j), act(setc, i)
            if j in c.swap_tiles: A_, B_ = B_, A_
            cin = "0" if first else vr(accr(i, j), 4)
            a("%s %s, %s, %s, %s" % (MF, vr(accr(i, j), 4), vr(A_, 4), vr(B_, 4), cin))
            if ri < len(rd):
                sch.issue(*rd[ri]); ri += 1
                if ri == len(rd) and post: post(); post = None
            if touch and k == nm - 2: do_touch()
        while ri < len(rd):
            sch.issue(*rd[ri]); ri += 1
        if post: post()
    a("s_mov_b32 s%d, 0" % S_RD)
    a("s_mov_b32 s%d, 0x%x" % (S_NEG, -(c.stage * (c.NS - 1)) & 0xffffffff))
    a("s_mov_b32 s%d, %d" % (S_POS, c.stage))
    a("s_mov_b32 s%d, %d" % (S_CNT, c.T - 2))
    a("s_barrier")
    for t in reads(P, 0): sch.issue(*t)
    if c.after_b0: c.after_b0(a)
    q0 = list(sch.q)
    group(P, Q, 1, post=advance, first=True, touch=True)
    group(Q, P, 0, pre_barrier=True)
    assert sch.q == q0
    def cnt():
        advance()
    a.label(lbl + "_cloop")
    once = getattr(c, 'once', None)
    if once:
        for n_, (when, fn) in enumerate(once if isinstance(once, list) else [once]):
            a("s_cmp_lg_u32 s%d, %s" % (S_CNT, when)); a("s_cbranch_scc1 %s_noonce%d" % (lbl, n_))
            fn(a)
            a.label("%s_noonce%d" % (lbl, n_))
    group(P, Q, 1, post=advance, touch=True)
    a("s_sub_u32 s%d, s%d, 1" % (S_CNT, S_CNT))
    group(Q, P, 0, pre_barrier=True)
    assert sch.q == q0
    a("s_cmp_lg_u32 s%d, 0" % S_CNT)
    a("s_cbranch_scc1 %s_cloop" % lbl)
    group(P, Q, 1)
    group(Q, P, 0, noreads=True)


def touch_setup(a, c, nA, nB, s_idxA, s_idxB, s_mtbase, s_col0, blkstride, vA, vB, tmp, sA, sB, dst, LA):
    LW = 32 // nA; RW = 16 // nB
    a("s_mul_i32 s%d, s%d, %d" % (S_T0, s_idxA, 128 // nA)); a("s_mul_i32 s%d, s%d, %d" % (S_T1, S_WAVE, LW)); a("s_add_u32 s%d, s%d, s%d" % (S_T0, S_T0, S_T1))
    a("v_add_u32 v%d, s%d, v1" % (tmp, S_T0))
    a("v_lshrrev_b32 v%d, 4, v%d" % (tmp + 1, tmp)); a("v_add_u32 v%d, s%d, v%d" % (tmp + 1, s_mtbase, tmp + 1))
    a("s_mov_b32 s%d, %d" % (S_T1, c.K // 32 * 1024)); a("v_mul_lo_u32 v%d, v%d, s%d" % (vA, tmp + 1, S_T1))
    a("v_and_b32 v%d, 15, v%d" % (tmp, tmp)); a("v_lshl_add_u32 v%d, v%d, 7, v%d" % (vA, tmp, vA))
    a("v_mov_b32 v%d, 0x7ff00000" % (tmp + 1))
    a("v_cmp_gt_u32 vcc, %d, v1" % LW); a("v_cndmask_b32 v%d, v%d, v%d, vcc" % (vA, tmp + 1, vA))
    sh = RW.bit_length() - 1
    a("s_mul_i32 s%d, s%d, %d" % (S_T0, s_idxB, 64 // nB)); a("s_mul_i32 s%d, s%d, %d" % (S_T1, S_WAVE, RW)); a("s_add_u32 s%d, s%d, s%d" % (S_T0, S_T0, S_T1))
    a("v_and_b32 v%d, %d, v1" % (tmp, RW - 1)); a("v_add_u32 v%d, s%d, v%d" % (tmp, S_T0, tmp))
    a("s_mov_b32 s%d, %d" % (S_T1, c.ldb)); a("v_mul_lo_u32 v%d, v%d, s%d" % (vB, tmp, S_T1))
    a("v_lshrrev_b32 v%d, %d, v1" % (tmp, sh)); a("s_mov_b32 s%d, %d" % (S_T1, blkstride)); a("v_mul_lo_u32 v%d, v%d, s%d" % (tmp, tmp, S_T1))
    a("v_add_u32 v%d, v%d, v%d" % (vB, vB, tmp)); a("v_add_u32 v%d, s%d, v%d" % (vB, s_col0, vB))
    a("v_cmp_gt_u32 vcc, %d, v1" % (RW * c.nblk)); a("v_cndmask_b32 v%d, v%d, v%d, vcc" % (vB, tmp + 1, vB))
    a("s_mov_b32 s%d, %d" % (sA, c.NS * 2048)); a("s_mov_b32 s%d, %d" % (sB, c.NS * 64 * c.ldb))
    for t in range(c.NS, LA):
        a("buffer_load_dword v%d, v%d, s[%d:%d], s%d offen" % (dst, vA, S_SRDA, S_SRDA + 3, sA))
        a("s_add_u32 s%d, s%d, 2048" % (sA, sA))
        a("buffer_load_dword v%d, v%d, s[%d:%d], s%d offen" % (dst + 1, vB, S_SRDB, S_SRDB + 3, sB))
        a("s_add_u32 s%d, s%d, %d" % (sB, sB, 64 * c.ldb))
    c.touch = dict(vA=vA, vB=vB, sA=sA, sB=sB, dst=dst)


def compute_loop_full(a, c, lbl, tilemap, vA):
    MT, NT = c.MT, c.NT
    fs1 = (MT + NT) * 4
    fs = 2 * fs1
    P = c.frag0; Q = c.frag0 + fs
    assert c.frag0 + 2 * fs <= c.acc0
    def act(setb, s, i): return setb + s * fs1 + i * 4
    def wt(setb, s, j): return setb + s * fs1 + MT * 4 + j * 4
    def accr(i, j): return c.acc0 + (i * NT + j) * 4
    sch = LgkmSched(a)
    addr_regs = sorted(set([vA] + [t[0] for t in tilemap]))
    def reads(setb):
        out = []
        for s in range(2):
            order = [('a', 0), ('w', 0)] + [('a', i) for i in range(1, MT)] + [('w', j) for j in range(1, NT)]
            for kind, j in order:
                if kind == 'a':
                    out.append(("ds_read_b128 %s, v%d offset:%d" % (vr(act(setb, s, j), 4), vA, (j * 2 + s) * 1024), (setb, s, 'a', j)))
                else:
                    reg, imm = tilemap[j]
                    for jj in range(2):
                        out.append(("ds_read_b64_tr_b16 %s, v%d offset:%d" % (vr(wt(setb, s, j) + jj * 2, 2), reg, imm + s * 4096 + jj * 2048), (setb, s, 'w', j)))
        return out
    ms = [(s, i, j) for s in range(2) for j in range(NT) for i in range(MT)]
    def advance():
        a("s_add_u32 s%d, s%d, %d" % (S_RD, S_RD, c.stage))
        a("s_cmp_eq_u32 s%d, %d" % (S_RD, c.stage * c.NS))
        a("s_cselect_b32 s%d, s%d, s%d" % (S_T0, S_NEG, S_POS))
        a("s_cselect_b32 s%d, 0, s%d" % (S_RD, S_RD))
        for r in addr_regs:
            a("v_add_u32 v%d, s%d, v%d" % (r, S_T0, r))
    def step(setc, setn, barrier=True, noreads=False, first=False):
        rd = [] if noreads else reads(setn)
        if barrier:
            sch.drain()
            a("s_barrier")
        ri = 0
        for k, (s, i, j) in enumerate(ms):
            sch.need({(setc, s, 'a', i), (setc, s, 'w', j)})
            A_, B_ = wt(setc, s, j), act(setc, s, i)
            if j in c.swap_tiles: A_, B_ = B_, A_
            cin = "0" if (first and s == 0) else vr(accr(i, j), 4)
            a("%s %s, %s, %s, %s" % (MF, vr(accr(i, j), 4), vr(A_, 4), vr(B_, 4), cin))
            if ri < len(rd):
                sch.issue(*rd[ri]); ri += 1
        while ri < len(rd):
            sch.issue(*rd[ri]); ri += 1
        if not noreads: advance()
    a("s_mov_b32 s%d, 0" % S_RD)
    a("s_mov_b32 s%d, 0x%x" % (S_NEG, -(c.stage * (c.NS - 1)) & 0xffffffff))
    a("s_mov_b32 s%d, %d" % (S_POS, c.stage))
    assert c.T % 2 == 0
    a("s_mov_b32 s%d, %d" % (S_CNT, (c.T - 2) // 2))
    a("s_barrier")
    for t in reads(P): sch.issue(*t)
    advance()
    if c.after_b0: c.after_b0(a)
    step(P, Q, first=True)
    a.label(lbl + "_cloop")
    step(Q, P)
    a("s_sub_u32 s%d, s%d, 1" % (S_CNT, S_CNT))
    step(P, Q)
    a("s_cmp_lg_u32 s%d, 0" % S_CNT)
    a("s_cbranch_scc1 %s_cloop" % lbl)
    step(Q, P, barrier=False, noreads=True)
```

```python
import sys, json
from asmlib import *
from core2 import *
import hazard

NAME = "sequential_preLN__linear_kernel_hedgehog__dense_activation_squared_relu__prompt"
MB = 1 << 20
WS_XN = 0
WS_PHIQ = 4 * MB
WS_KVP = 12 * MB
KVP_STRIDE = 4352
WS_O = 20 * MB
WS_H = 24 * MB
WS_STATS = 28 * MB
WS_CS1 = 29 * MB
WS_CNT = 30 * MB
WS_CSP = 31 * MB
WS_H1 = 32 * MB
WS_P4 = 48 * MB
WS_STAMP = 200 * MB
LOG2E = 0x3fb8aa3b
OPT = {}
STAMP = {'on': False}

def ld_ptr(a, s, key):
    a("s_load_dwordx2 s[%d:%d], s[0:1], %d" % (s, s + 1, KERNARG[key]))

def wave_lane(a):
    a("v_and_b32 v1, 63, v0")
    a("v_lshrrev_b32 v2, 6, v0")
    a("s_nop 0")
    a("v_readfirstlane_b32 s%d, v2" % S_WAVE)

def bf16_round(a, dst, src):
    a("v_cvt_pk_bf16_f32 v%d, v%d, v%d" % (dst, src, src))
    a("v_lshlrev_b32 v%d, 16, v%d" % (dst, dst))

def stamp(a, idx):
    if STAMP['on']:
        a("s_memrealtime s[%d:%d]" % (80 + 2 * idx, 81 + 2 * idx)); a("s_waitcnt lgkmcnt(0)")
def stamp_flush(a, kid, n, wave=0):
    if not STAMP['on']: return
    lbl = "ST_skip_%d_%d" % (kid, len(a.lines))
    stamp(a, n)
    a("s_waitcnt vmcnt(0)")
    n += 1
    stamp(a, n)
    a("s_cmp_lg_u32 s%d, %d" % (S_WAVE, wave)); a("s_cbranch_scc1 %s" % lbl)
    a("s_load_dwordx2 s[70:71], s[0:1], %d" % KERNARG['ws']); a("s_waitcnt lgkmcnt(0)")
    make_srd(a, 72, 70, 1 * MB, off=WS_STAMP)
    a("s_add_u32 s76, s2, %d" % (kid * 512)); a("s_lshl_b32 s76, s76, 5")
    a("s_mov_b64 exec, 1")
    a("v_mov_b32 v5, s76")
    for i in range(n + 1):
        a("v_mov_b32 v4, s%d" % (80 + 2 * i))
        a("buffer_store_dword v4, v5, s[72:75], 0 offen offset:%d" % (i * 4))
        a("s_nop 1")
    a.label(lbl)

def pk(op, d, s0, s1, s2=None, mods=""):
    ops = [d, s0, s1] + ([s2] if s2 is not None else [])
    def f(x): return x if isinstance(x, str) else "v[%d:%d]" % (x, x + 1)
    return "%s %s %s" % (op, ", ".join(f(x) for x in ops), mods)

def touch(a, vdst, vaddr, srd, soff="0"):
    a("buffer_load_dword v%d, v%d, s[%d:%d], %s offen" % (vdst, vaddr, srd, srd + 3, soff))

def st_flags(key):
    return OPT.get('st_' + key, OPT.get('st', ''))

def allreduce4(a, op, r, t):
    a("v_permlane32_swap_b32 v%d, v%d" % (r[0], r[1])); a("v_permlane32_swap_b32 v%d, v%d" % (r[2], r[3]))
    a("%s v%d, v%d, v%d" % (op, r[0], r[0], r[1])); a("%s v%d, v%d, v%d" % (op, r[2], r[2], r[3]))
    a("v_permlane16_swap_b32 v%d, v%d" % (r[0], r[2]))
    a("%s v%d, v%d, v%d" % (op, r[0], r[0], r[2]))
    a("v_mov_b32 v%d, v%d" % (r[2], r[0]))
    a("v_permlane16_swap_b32 v%d, v%d" % (r[0], r[2]))
    a("v_mov_b32 v%d, v%d" % (r[1], r[0])); a("v_mov_b32 v%d, v%d" % (r[3], r[2]))
    a("v_permlane32_swap_b32 v%d, v%d" % (r[0], r[1])); a("v_permlane32_swap_b32 v%d, v%d" % (r[2], r[3]))

def gen_k0(a):
    name = "k0_kernel"
    kernel_header(a, name)
    a.label("CODE_BEGIN")
    a("s_cmp_ge_u32 s2, 256"); a("s_cbranch_scc1 K0_end")
    stamp(a, 0)
    ld_ptr(a, 30, 'x'); ld_ptr(a, 34, 'ws'); ld_ptr(a, 32, 'wqkv'); ld_ptr(a, 36, 'wo'); ld_ptr(a, 38, 'w1')
    wave_lane(a)
    a("v_and_b32 v2, 7, v0"); a("v_lshrrev_b32 v3, 3, v0")
    a("s_lshl_b32 s20, s2, 3"); a("v_add_u32 v4, s20, v2"); a("v_lshlrev_b32 v4, 11, v4"); a("v_lshl_add_u32 v4, v3, 6, v4")
    a("s_waitcnt lgkmcnt(0)")
    make_srd(a, 4, 30, 2048 * 1024 * 2)
    for i in range(4):
        a("buffer_load_dwordx4 v[%d:%d], v4, s[4:7], 0 offen offset:%d" % (16 + 4 * i, 19 + 4 * i, i * 16))
    a("s_lshl_b32 s21, s2, 2"); a("s_add_u32 s21, s21, s%d" % S_WAVE); a("s_lshl_b32 s21, s21, 13")
    a("v_lshlrev_b32 v5, 7, v1")
    make_srd(a, 12, 32, 1024 * 3072 * 2)
    touch(a, 10, 5, 12, "s21")
    if OPT.get('slowpf', 1):
        make_srd(a, 12, 32, 1024 * 3072 * 2)
        a("s_and_b32 s22, s2, 7"); a("s_lshr_b32 s23, s2, 3")
        a("s_and_b32 s26, s22, 2"); a("s_cmp_eq_u32 s26, 0"); a("s_cselect_b32 s26, 0, 0x1000000")
        a("s_lshr_b32 s22, s22, 2"); a("s_lshl_b32 s22, s22, 10"); a("s_add_u32 s22, s22, 384")
        a("s_mul_i32 s23, s23, %d" % (32 * 6144)); a("s_add_u32 s22, s22, s23"); a("s_add_u32 s22, s22, s26")
        a("s_cmp_ge_u32 s%d, 2" % S_WAVE); a("s_cselect_b32 s26, 0x1000000, 0"); a("s_add_u32 s22, s22, s26")
        a("s_lshl_b32 s26, s%d, 12" % S_WAVE); a("s_add_u32 s22, s22, s26")
        a("v_and_b32 v6, 31, v1"); a("s_mov_b32 s26, 6144"); a("v_mul_lo_u32 v6, v6, s26"); a("v_lshrrev_b32 v7, 5, v1"); a("v_lshl_add_u32 v6, v7, 11, v6")
        touch(a, 36, 6, 12, "s22")
    a("s_getpc_b64 s[24:25]")
    a.label("K0_pc")
    a("s_sub_u32 s24, s24, K0_pc-CODE_BEGIN"); a("s_subb_u32 s25, s25, 0")
    a("s_mov_b32 s26, CODE_END-CODE_BEGIN"); a("s_mov_b32 s27, 0x20000")
    a("s_lshr_b32 s21, s2, 3"); a("s_and_b32 s21, s21, 15"); a("s_lshl_b32 s21, s21, 13")
    touch(a, 11, 5, 24, "s21")
    make_srd(a, 8, 34, 4 * MB, off=WS_XN)
    a("s_waitcnt vmcnt(%d)" % (3 if OPT.get('slowpf', 1) else 2))
    for i in range(16):
        a("v_lshlrev_b32 v%d, 16, v%d" % (64 + 2 * i, 16 + i))
        a("v_and_b32 v%d, 0xffff0000, v%d" % (65 + 2 * i, 16 + i))
    def rowsum(src_pairs, dst):
        pass
    for i in range(8): a(pk("v_pk_add_f32", 40 + 2 * i, 64 + 2 * i, 80 + 2 * i))
    for i in range(4): a(pk("v_pk_add_f32", 40 + 2 * i, 40 + 2 * i, 48 + 2 * i))
    for i in range(2): a(pk("v_pk_add_f32", 40 + 2 * i, 40 + 2 * i, 44 + 2 * i))
    a(pk("v_pk_add_f32", 40, 40, 42)); a("v_add_f32 v6, v40, v41")
    def xl(r, t):
        a("v_add_f32_dpp v%d, v%d, v%d row_ror:8 row_mask:0xf bank_mask:0xf" % (r, r, r))
        a("v_mov_b32 v%d, v%d" % (t, r)); a("v_permlane16_swap_b32 v%d, v%d" % (r, t)); a("v_add_f32 v%d, v%d, v%d" % (r, r, t))
        a("v_mov_b32 v%d, v%d" % (t, r)); a("v_permlane32_swap_b32 v%d, v%d" % (r, t)); a("v_add_f32 v%d, v%d, v%d" % (r, r, t))
    xl(6, 7)
    a("v_lshlrev_b32 v8, 2, v2"); a("s_lshl_b32 s21, s%d, 5" % S_WAVE); a("v_add_u32 v9, s21, v8")
    a("ds_write_b32 v9, v6")
    a("s_waitcnt lgkmcnt(0)"); a("s_barrier")
    a("ds_read_b32 v12, v8"); a("ds_read_b32 v13, v8 offset:32"); a("ds_read_b32 v14, v8 offset:64"); a("ds_read_b32 v15, v8 offset:96")
    a("s_waitcnt lgkmcnt(0)")
    a("v_add_f32 v12, v12, v13"); a("v_add_f32 v14, v14, v15"); a("v_add_f32 v12, v12, v14")
    a("v_mul_f32 v12, 0x3a800000, v12")
    for i in range(16): a(pk("v_pk_add_f32", 96 + 2 * i, 64 + 2 * i, 12, mods="op_sel_hi:[1,0] neg_lo:[0,1] neg_hi:[0,1]"))
    for i in range(4): a(pk("v_pk_mul_f32", 40 + 2 * i, 96 + 2 * i, 96 + 2 * i))
    for i in range(4, 16): a(pk("v_pk_fma_f32", 40 + 2 * (i & 3), 96 + 2 * i, 96 + 2 * i, 40 + 2 * (i & 3)))
    a(pk("v_pk_add_f32", 40, 40, 42)); a(pk("v_pk_add_f32", 44, 44, 46)); a(pk("v_pk_add_f32", 40, 40, 44)); a("v_add_f32 v6, v40, v41")
    xl(6, 7)
    a("ds_write_b32 v9, v6 offset:128")
    a("s_waitcnt lgkmcnt(0)"); a("s_barrier")
    a("ds_read_b32 v13, v8 offset:128"); a("ds_read_b32 v14, v8 offset:160"); a("ds_read_b32 v15, v8 offset:192"); a("ds_read_b32 v6, v8 offset:224")
    a("s_waitcnt lgkmcnt(0)")
    a("v_add_f32 v13, v13, v14"); a("v_add_f32 v15, v15, v6"); a("v_add_f32 v13, v13, v15")
    a("v_mul_f32 v14, 0x3a800000, v13")
    bf16_round(a, 12, 12); bf16_round(a, 14, 14)
    a("v_add_f32 v14, 0x3727c5ac, v14"); bf16_round(a, 14, 14)
    a("v_sqrt_f32 v14, v14"); bf16_round(a, 14, 14)
    a("v_rcp_f32 v14, v14")
    for i in range(16):
        p = 64 + 2 * i
        a(pk("v_pk_add_f32", p, p, 12, mods="op_sel_hi:[1,0] neg_lo:[0,1] neg_hi:[0,1]"))
    for i in range(16):
        p = 64 + 2 * i
        a("v_cvt_pk_bf16_f32 v%d, v%d, v%d" % (96 + i, p, p + 1))
    for i in range(16):
        p = 64 + 2 * i
        a("v_lshlrev_b32 v%d, 16, v%d" % (p, 96 + i)); a("v_and_b32 v%d, 0xffff0000, v%d" % (p + 1, 96 + i))
    for i in range(16):
        p = 64 + 2 * i
        a(pk("v_pk_mul_f32", p, p, 14, mods="op_sel_hi:[1,0]"))
    for g in range(4):
        for q, dw in enumerate((2 * g, 2 * g + 1, 8 + 2 * g, 9 + 2 * g)):
            a("v_cvt_pk_bf16_f32 v%d, v%d, v%d" % (16 + 4 * g + q, 64 + 2 * dw, 65 + 2 * dw))
    a("s_lshr_b32 s20, s2, 1"); a("s_lshl_b32 s20, s20, 15"); a("s_and_b32 s21, s2, 1"); a("s_lshl_b32 s21, s21, 7"); a("s_add_u32 s20, s20, s21")
    a("v_lshlrev_b32 v4, 10, v3"); a("v_lshl_add_u32 v4, v2, 4, v4"); a("v_add_u32 v4, s20, v4")
    for g in range(4):
        a("buffer_store_dwordx4 v[%d:%d], v4, s[8:11], 0 offen offset:%d %s" % (16 + 4 * g, 19 + 4 * g, g * 256, st_flags('k0')))
    make_srd(a, 12, 34, 131072, off=WS_CNT)
    a("s_lshl_b32 s21, s2, 8"); a("v_lshlrev_b32 v34, 16, v0"); a("v_add_u32 v34, s21, v34"); a("v_mov_b32 v35, 0")
    a("v_cmp_gt_u32 vcc, 2, v0"); a("s_and_saveexec_b64 s[40:41], vcc"); a("s_cbranch_execz K0_nz")
    a("buffer_store_dword v35, v34, s[12:15], 0 offen sc1")
    a.label("K0_nz")
    a("s_mov_b64 exec, s[40:41]")
    stamp(a, 1); stamp(a, 2)
    stamp_flush(a, 0, 3)
    a.label("K0_end")
    a("s_endpgm")
    return name, dict(grid=256, block=256, lds=1024, vgprs=128)

def map_share(mode):
    return {'8x4': (4, 8), '4x8': (8, 4), '2x16': (16, 2)}[mode]
def tile_map(a, mode):
    a("s_and_b32 s40, s2, 7"); a("s_lshr_b32 s41, s2, 3")
    sh = {'8x4': 3, '4x8': 2, '2x16': 1}[mode]
    a("s_lshr_b32 s66, s41, %d" % sh); a("s_and_b32 s67, s41, %d" % ((1 << sh) - 1))
    if mode == '8x4':
        a("s_and_b32 s42, s40, 1"); a("s_lshl_b32 s42, s42, 3"); a("s_and_b32 s43, s41, 7"); a("s_add_u32 s17, s42, s43")
        a("s_lshr_b32 s42, s40, 1"); a("s_lshl_b32 s42, s42, 2"); a("s_lshr_b32 s43, s41, 3"); a("s_add_u32 s18, s42, s43")
    elif mode == '4x8':
        a("s_and_b32 s42, s40, 3"); a("s_lshl_b32 s42, s42, 2"); a("s_and_b32 s43, s41, 3"); a("s_add_u32 s17, s42, s43")
        a("s_lshr_b32 s42, s40, 2"); a("s_lshl_b32 s42, s42, 3"); a("s_lshr_b32 s43, s41, 2"); a("s_add_u32 s18, s42, s43")
    elif mode == '2x16':
        a("s_lshl_b32 s42, s40, 1"); a("s_and_b32 s43, s41, 1"); a("s_add_u32 s17, s42, s43")
        a("s_lshr_b32 s18, s41, 1")

def exp4(a, P, E, T):
    MX = [T + 0, T + 2, T + 4, T + 6]; MN = [T + 8, T + 10, T + 12, T + 14]
    for i in range(4):
        p = P + 8 * i
        a("v_max3_f32 v%d, v%d, v%d, v%d" % (MX[i], p, p + 1, p + 2)); a("v_min3_f32 v%d, v%d, v%d, v%d" % (MN[i], p, p + 1, p + 2))
    for i in range(4):
        p = P + 8 * i
        a("v_max3_f32 v%d, v%d, v%d, v%d" % (MX[i], MX[i], p + 3, p + 4)); a("v_min3_f32 v%d, v%d, v%d, v%d" % (MN[i], MN[i], p + 3, p + 4))
    for i in range(4):
        p = P + 8 * i
        a("v_max3_f32 v%d, v%d, v%d, v%d" % (MX[i], MX[i], p + 5, p + 6)); a("v_min3_f32 v%d, v%d, v%d, v%d" % (MN[i], MN[i], p + 5, p + 6))
    for i in range(4):
        p = P + 8 * i
        a("v_max_f32 v%d, v%d, v%d" % (MX[i], MX[i], p + 7)); a("v_min_f32 v%d, v%d, v%d" % (MN[i], MN[i], p + 7))
    interleave(a, lambda b: allreduce4(b, "v_max_f32", MX, None), lambda b: allreduce4(b, "v_min_f32", MN, None))
    for i in range(4):
        a("v_mul_f32 v%d, s46, v%d" % (MX[i], MX[i])); a("v_mul_f32 v%d, s46, v%d" % (MN[i], MN[i]))
    for i in range(4):
        for h in range(4):
            p = P + 8 * i + 2 * h; e = E + 8 * i + 2 * h
            a(pk("v_pk_fma_f32", e, p, "s[46:47]", MX[i], mods="op_sel_hi:[1,1,0] neg_lo:[0,0,1] neg_hi:[0,0,1]"))
            a(pk("v_pk_fma_f32", p, p, "s[46:47]", MN[i], mods="op_sel_hi:[1,1,0] neg_lo:[1,0,0] neg_hi:[1,0,0]"))
    for i in range(4):
        for q in range(8):
            a("v_exp_f32 v%d, v%d" % (E + 8 * i + q, E + 8 * i + q)); a("v_exp_f32 v%d, v%d" % (P + 8 * i + q, P + 8 * i + q))

def norm4(a, P, E, T):
    MX = [T + 0, T + 2, T + 4, T + 6]; MN = [T + 8, T + 10, T + 12, T + 14]
    for i in range(4):
        e = E + 8 * i; p = P + 8 * i
        a(pk("v_pk_add_f32", MX[i], e, e + 2)); a(pk("v_pk_add_f32", MN[i], p, p + 2))
    for i in range(4):
        e = E + 8 * i; p = P + 8 * i
        a(pk("v_pk_add_f32", MX[i], MX[i], e + 4)); a(pk("v_pk_add_f32", MN[i], MN[i], p + 4))
    for i in range(4):
        e = E + 8 * i; p = P + 8 * i
        a(pk("v_pk_add_f32", MX[i], MX[i], e + 6)); a(pk("v_pk_add_f32", MN[i], MN[i], p + 6))
    for i in range(4):
        a("v_add_f32 v%d, v%d, v%d" % (MX[i], MX[i], MX[i] + 1)); a("v_add_f32 v%d, v%d, v%d" % (MN[i], MN[i], MN[i] + 1))
    interleave(a, lambda b: allreduce4(b, "v_add_f32", MX, None), lambda b: allreduce4(b, "v_add_f32", MN, None))
    for i in range(4):
        a("v_rcp_f32 v%d, v%d" % (MX[i], MX[i])); a("v_rcp_f32 v%d, v%d" % (MN[i], MN[i]))
    for i in range(4):
        for h in range(4):
            p = P + 8 * i + 2 * h; e = E + 8 * i + 2 * h
            a(pk("v_pk_mul_f32", e, e, MX[i], mods="op_sel_hi:[1,0]")); a(pk("v_pk_mul_f32", p, p, MN[i], mods="op_sel_hi:[1,0]"))

def interleave(a, f, g):
    x = Asm(); y = Asm(); f(x); g(y)
    for i in range(max(len(x.lines), len(y.lines))):
        if i < len(x.lines): a.lines.append(x.lines[i])
        if i < len(y.lines): a.lines.append(y.lines[i])

def wphi_loads(a, WP, s_head, vtmp):
    a("s_lshl_b32 s41, s%d, 11" % s_head)
    a("v_lshrrev_b32 v%d, 4, v1" % vtmp); a("v_lshlrev_b32 v%d, 8, v%d" % (vtmp, vtmp))
    a("v_and_b32 v%d, 15, v1" % (vtmp + 1)); a("v_lshl_add_u32 v%d, v%d, 1, v%d" % (vtmp, vtmp + 1, vtmp)); a("v_add_u32 v%d, s41, v%d" % (vtmp, vtmp))
    for u in range(2):
        for j in range(8):
            d_off = (16 * (j >> 2) + (j & 3)) * 64 + u * 32
            a("buffer_load_ushort v%d, v%d, s[12:15], 0 offen offset:%d" % (WP + u * 8 + j, vtmp, d_off))
def wphi_pack(a, WP):
    for u in range(2):
        for p in range(4):
            a("v_lshl_or_b32 v%d, v%d, 16, v%d" % (WP + u * 4 + p, WP + u * 8 + 2 * p + 1, WP + u * 8 + 2 * p))

def spin_wait(a, lbl, srd, s_off, target, vtmp):
    a("s_mov_b32 s77, 0x40000")
    a("v_mov_b32 v%d, 0" % (vtmp + 1))
    a.label(lbl)
    a("buffer_load_dword v%d, v%d, s[%d:%d], s%d offen sc1" % (vtmp, vtmp + 1, srd, srd + 3, s_off))
    a("s_waitcnt vmcnt(0)")
    a("v_readfirstlane_b32 s78, v%d" % vtmp)
    a("s_cmp_ge_u32 s78, %d" % target); a("s_cbranch_scc1 %s_done" % lbl)
    a("s_sleep 1")
    a("s_sub_u32 s77, s77, 1"); a("s_cmp_lg_u32 s77, 0"); a("s_cbranch_scc1 %s" % lbl)
    a.label(lbl + "_done")

def signal(a, lbl, srd, s_off, vtmp):
    a("v_mov_b32 v%d, 1" % vtmp); a("v_mov_b32 v%d, 0" % (vtmp + 1))
    a("s_mov_b64 s[78:79], exec"); a("s_mov_b64 exec, 1")
    a("buffer_atomic_add v%d, v%d, s[%d:%d], s%d offen" % (vtmp, vtmp + 1, srd, srd + 3, s_off))
    a("s_mov_b64 exec, s[78:79]")

def allreduce2(a, op, r0, r1, t):
    a("v_permlane32_swap_b32 v%d, v%d" % (r0, r1)); a("%s v%d, v%d, v%d" % (op, r0, r0, r1))
    a("v_mov_b32 v%d, v%d" % (t, r0)); a("v_permlane16_swap_b32 v%d, v%d" % (r0, t)); a("%s v%d, v%d, v%d" % (op, r0, r0, t))
    a("v_mov_b32 v%d, v%d" % (r1, r0)); a("v_permlane32_swap_b32 v%d, v%d" % (r0, r1))

def gen_k1(a):
    name = "ka_kernel"; L = "K1"
    c = Cfg(MT=4, NT=6, K=1024, NS=3, nblk=3, ldb=6144, acc0=112, swap_tiles={4, 5})
    XCH = c.lds
    KVF = XCH + 16384
    FLG = c.lds + 32768
    lds_total = c.lds + 32768 + 256
    SW = 'sc1'
    LDF = OPT.get('ldf', '')
    kernel_header(a, name)
    a("s_cmp_ge_u32 s2, 256"); a("s_cbranch_scc1 K1_end")
    stamp(a, 0)
    ld_ptr(a, 34, 'ws'); ld_ptr(a, 32, 'wqkv'); ld_ptr(a, 36, 'wphi'); ld_ptr(a, 60, 'wo'); ld_ptr(a, 62, 'w2'); ld_ptr(a, 64, 'x'); ld_ptr(a, 68, 'w1')
    wave_lane(a)
    tile_map(a, '8x4')
    a("s_lshl_b32 s44, s17, 3")
    for b in range(3):
        a("s_lshl_b32 s%d, s18, 7" % (45 + b)); a("s_add_u32 s%d, s%d, %d" % (45 + b, 45 + b, b * 2048))
    a("s_waitcnt lgkmcnt(0)")
    make_srd(a, S_SRDA, 34, 4 * MB, off=WS_XN)
    make_srd(a, S_SRDB, 32, 1024 * 3072 * 2)
    a("s_cmp_ge_u32 s%d, 4" % S_WAVE); a("s_cbranch_scc1 K1_loader")
    vA = 2; vB = [3, 4]
    compute_setup(a, c, vA, vB, tmp=9)
    a("s_lshl_b32 s25, s39, 6"); a("v_xor_b32 v3, s25, v3"); a("v_xor_b32 v4, 32, v3")
    tm = [(vB[j & 1], c.blk_off[j >> 1]) for j in range(6)]
    make_srd(a, 12, 36, 32 * 32 * 32 * 2)
    a("s_lshl_b32 s45, s18, 1"); a("s_add_u32 s45, s45, s39")
    WP = 96
    wphi_loads(a, WP, 45, 9)
    def after_b0(a):
        stamp(a, 1)
        make_srd(a, 48, 60, 1024 * 1024 * 2)
        a("s_lshl_b32 s40, s2, 2"); a("s_add_u32 s40, s40, s%d" % S_WAVE); a("s_lshl_b32 s40, s40, 13")
        a("v_lshlrev_b32 v9, 7, v1")
        touch(a, 242, 9, 48, "s40")
    c.after_b0 = after_b0
    if OPT.get('mlppf', 1):
        a("s_lshl_b32 s70, s2, 2"); a("s_add_u32 s70, s70, s%d" % S_WAVE); a("s_lshl_b32 s70, s70, 13")
        a("v_lshlrev_b32 v244, 7, v1")
        make_srd(a, 52, 68, 1024 * 3584 * 2); make_srd(a, 56, 62, 3584 * 1024 * 2)
        a("s_mul_i32 s71, s%d, 3" % S_WAVE); a("s_sub_u32 s71, %d, s71" % (c.T - 3)); a("s_sub_u32 s72, s71, 1")
        c.once = [("s71", lambda a: touch(a, 243, 244, 52, "s70")), ("s72", lambda a: touch(a, 240, 244, 56, "s70"))]
    compute_loop(a, c, L, tm, vA)
    stamp(a, 2)
    def acc(i, j): return c.acc0 + (i * 6 + j) * 4
    F = 16
    for i in range(4):
        for jj in range(2):
            b = acc(i, 2 + jj)
            a("v_cvt_pk_bf16_f32 v%d, v%d, v%d" % (F + i * 4 + jj * 2, b, b + 1)); a("v_cvt_pk_bf16_f32 v%d, v%d, v%d" % (F + i * 4 + jj * 2 + 1, b + 2, b + 3))
    for ms in range(2):
        for dt in range(2):
            r = 32 + (ms * 2 + dt) * 4
            for h in range(2):
                b = acc(2 * ms + h, 4 + dt)
                a("v_cvt_pk_bf16_f32 v%d, v%d, v%d" % (r + 2 * h, b, b + 1)); a("v_cvt_pk_bf16_f32 v%d, v%d, v%d" % (r + 2 * h + 1, b + 2, b + 3))
    a("v_lshlrev_b32 v9, 4, v1"); a("s_lshl_b32 s41, s%d, 13" % S_WAVE); a("s_add_u32 s41, s41, %d" % XCH); a("v_add_u32 v9, s41, v9")
    for t in range(8): a("ds_write_b128 v9, v[%d:%d] offset:%d" % (F + t * 4, F + t * 4 + 3, t * 1024))
    for i in range(4):
        for jj in range(2):
            b = acc(i, jj)
            a("v_cvt_pk_bf16_f32 v%d, v%d, v%d" % (48 + i * 4 + jj * 2, b, b + 1)); a("v_cvt_pk_bf16_f32 v%d, v%d, v%d" % (48 + i * 4 + jj * 2 + 1, b + 2, b + 3))
    a("s_waitcnt lgkmcnt(0)"); a("s_barrier")
    a("s_waitcnt vmcnt(0)")
    wphi_pack(a, WP)
    def stage_wo():
        a("s_lshr_b32 s31, s2, 4")
        make_srd(a, 8, 60, 1024 * 1024 * 2)
        a("v_lshrrev_b32 v7, 3, v1"); a("v_lshlrev_b32 v7, 11, v7")
        a("v_bfe_u32 v8, v1, 4, 2"); a("v_lshlrev_b32 v8, 1, v8"); a("v_and_b32 v9, 7, v1"); a("v_xor_b32 v8, v8, v9"); a("v_lshl_add_u32 v7, v8, 4, v7")
        a("s_lshl_b32 s43, s%d, 15" % S_WAVE); a("s_lshl_b32 s41, s31, 7"); a("s_add_u32 s43, s43, s41"); a("v_add_u32 v7, s43, v7")
        a("v_add_u32 v8, %d, v7" % (8 * 2048 - 1024))
        a("s_lshl_b32 s41, s%d, 11" % S_WAVE); a("s_mov_b32 s43, %d" % (4 * 64 * 2048))
        for t in range(4, 15):
            a("s_add_u32 m0, s41, %d" % (t * 8192))
            a("buffer_load_dwordx4 v7, s[8:11], s43 offen lds")
            a("buffer_load_dwordx4 v8, s[8:11], s43 offen offset:1024 lds")
            if t < 14: a("s_add_u32 s43, s43, %d" % (64 * 2048))
    if OPT.get('bstage', 'early') == 'early': stage_wo()
    a("s_lshl_b32 s41, s%d, 2" % S_WAVE); a("s_add_u32 s41, s41, %d" % FLG); a("v_mov_b32 v14, s41"); a("s_mov_b32 s77, 0x100000")
    a.label("KA_qw")
    a("ds_read_b32 v15, v14"); a("s_waitcnt lgkmcnt(0)"); a("v_readfirstlane_b32 s78, v15")
    a("s_cmp_eq_u32 s78, 1"); a("s_cbranch_scc1 KA_qw_done")
    a("s_sleep 2")
    a("s_sub_u32 s77, s77, 1"); a("s_cmp_lg_u32 s77, 0"); a("s_cbranch_scc1 KA_qw")
    a.label("KA_qw_done")
    a("s_mov_b32 s46, 0x%x" % LOG2E); a("s_mov_b32 s47, 0x%x" % LOG2E)
    Pq = 112; Eq = 144; Tq = 176; PQ = 208
    for i in range(4):
        for u in range(2):
            a("%s v[%d:%d], v[%d:%d], v[%d:%d], 0" % (MF, Pq + i * 8 + u * 4, Pq + i * 8 + u * 4 + 3, WP + u * 4, WP + u * 4 + 3, 48 + i * 4, 48 + i * 4 + 3))
    exp4(a, Pq, Eq, Tq)
    for i in range(4):
        for q in range(4):
            a("v_cvt_pk_bf16_f32 v%d, v%d, v%d" % (PQ + i * 8 + q, Eq + 8 * i + 2 * q, Eq + 8 * i + 2 * q + 1))
            a("v_cvt_pk_bf16_f32 v%d, v%d, v%d" % (PQ + i * 8 + 4 + q, Pq + 8 * i + 2 * q, Pq + 8 * i + 2 * q + 1))
    if OPT.get('bstage', 'early') == 'late': stage_wo()
    a("s_branch KA_common")
    a.label("K1_loader")
    Ld = loader_setup(a, c, 44, ["s45", "s46", "s47"])
    a("s_sub_u32 s49, s%d, 4" % S_WAVE)
    WP = 96
    a("s_lshr_b32 s38, s49, 1"); a("s_and_b32 s39, s49, 1")
    make_srd(a, 12, 36, 32 * 32 * 32 * 2)
    a("s_lshl_b32 s48, s18, 1"); a("s_add_u32 s48, s48, s39")
    a("v_lshlrev_b32 v28, 2, v1"); a("v_add_u32 v28, %d, v28" % FLG); a("v_mov_b32 v29, 0")
    a("ds_write_b32 v28, v29"); a("s_waitcnt lgkmcnt(0)")
    def tail2(a):
        wphi_loads(a, WP, 48, 30)
    loader_loop(a, c, Ld, L, tail_loads=tail2, n_tail=16)
    a("s_mov_b32 s46, 0x%x" % LOG2E); a("s_mov_b32 s47, 0x%x" % LOG2E)
    make_srd(a, 52, 34, 8 * MB, off=WS_KVP)
    a("s_waitcnt vmcnt(0)")
    wphi_pack(a, WP)
    a("s_barrier")
    if OPT.get('kprio', 1): a("s_setprio 3")
    stamp(a, 0)
    a("v_lshlrev_b32 v9, 4, v1"); a("s_lshl_b32 s41, s49, 13"); a("s_add_u32 s41, s41, %d" % XCH); a("v_add_u32 v9, s41, v9")
    for t in range(4): a("ds_read_b128 v[%d:%d], v9 offset:%d" % (16 + t * 4, 19 + t * 4, t * 1024))
    a("s_waitcnt lgkmcnt(0)")
    Pk = 112; Ek = 144; Tk = 176
    for i in range(4):
        for u in range(2):
            a("%s v[%d:%d], v[%d:%d], v[%d:%d], 0" % (MF, Pk + i * 8 + u * 4, Pk + i * 8 + u * 4 + 3, WP + u * 4, WP + u * 4 + 3, 16 + i * 4, 16 + i * 4 + 3))
    a("v_and_b32 v9, 15, v1"); a("v_lshlrev_b32 v10, 7, v9")
    a("v_bfe_u32 v11, v1, 1, 2"); a("v_lshlrev_b32 v11, 1, v11")
    a("v_lshrrev_b32 v12, 5, v1"); a("v_xor_b32 v11, v11, v12"); a("v_lshl_add_u32 v10, v11, 4, v10")
    a("v_bfe_u32 v11, v1, 4, 1"); a("v_lshl_add_u32 v10, v11, 3, v10")
    a("s_lshl_b32 s41, s39, 14"); a("s_lshl_b32 s42, s38, 13"); a("s_add_u32 s41, s41, s42"); a("v_add_u32 v10, s41, v10")
    for k in range(1, 4): a("v_xor_b32 v%d, %d, v10" % (10 + k, k * 32))
    exp4(a, Pk, Ek, Tk)
    norm4(a, Pk, Ek, Tk)
    for i in range(4):
        r = 16 + i * 8
        for q in range(4):
            a("v_cvt_pk_bf16_f32 v%d, v%d, v%d" % (r + q, Ek + 8 * i + 2 * q, Ek + 8 * i + 2 * q + 1))
            a("v_cvt_pk_bf16_f32 v%d, v%d, v%d" % (r + 4 + q, Pk + 8 * i + 2 * q, Pk + 8 * i + 2 * q + 1))
        a("ds_write_b64 v10, v[%d:%d] offset:%d" % (r, r + 1, i * 2048)); a("ds_write_b64 v11, v[%d:%d] offset:%d" % (r + 2, r + 3, i * 2048))
        a("ds_write_b64 v12, v[%d:%d] offset:%d" % (r + 4, r + 5, i * 2048)); a("ds_write_b64 v13, v[%d:%d] offset:%d" % (r + 6, r + 7, i * 2048))
    tr_pattern(a, 3, 14)
    a("s_lshl_b32 s41, s39, 14"); a("v_add_u32 v3, s41, v3")
    a("s_lshl_b32 s41, s38, 6"); a("v_xor_b32 v3, s41, v3"); a("v_xor_b32 v4, 32, v3")
    a("v_lshlrev_b32 v9, 4, v1"); a("s_lshl_b32 s41, s39, 13"); a("s_add_u32 s41, s41, %d" % (XCH + 4096)); a("v_add_u32 v9, s41, v9")
    for wmp in range(2):
        for t in range(4): a("ds_read_b128 v[%d:%d], v9 offset:%d" % (48 + (wmp * 4 + t) * 4, 51 + (wmp * 4 + t) * 4, wmp * 16384 + t * 1024))
    for q in range(4): a("v_mov_b32 v%d, 0x3f803f80" % (88 + q))
    stamp(a, 1)
    a("s_waitcnt lgkmcnt(0)")
    a("s_lshl_b32 s41, s49, 2"); a("s_add_u32 s41, s41, %d" % FLG); a("v_mov_b32 v14, s41"); a("v_mov_b32 v15, 1")
    a("ds_write_b32 v14, v15")
    a("v_xor_b32 v14, 8, v14")
    a("s_mov_b32 s77, 0x100000")
    a.label("KA_pair")
    a("ds_read_b32 v15, v14"); a("s_waitcnt lgkmcnt(0)"); a("v_readfirstlane_b32 s78, v15")
    a("s_cmp_eq_u32 s78, 1"); a("s_cbranch_scc1 KA_pair_done")
    a("s_sub_u32 s77, s77, 1"); a("s_cmp_lg_u32 s77, 0"); a("s_cbranch_scc1 KA_pair")
    a.label("KA_pair_done")
    stamp(a, 2)
    for ms in range(4):
        for ftl in range(2):
            r = 16 + (ms * 2 + ftl) * 4
            a("ds_read_b64_tr_b16 v[%d:%d], v%d offset:%d" % (r, r + 1, 3 + ftl, ms * 4096))
            a("ds_read_b64_tr_b16 v[%d:%d], v%d offset:%d" % (r + 2, r + 3, 3 + ftl, ms * 4096 + 2048))
    KV = 112
    for ms in range(4):
        a("s_waitcnt lgkmcnt(%d)" % (12 - 4 * ms))
        for ftl in range(2):
            for dt in range(3):
                d = KV + (ftl * 3 + dt) * 4
                B = (48 + (ms * 2 + dt) * 4) if dt < 2 else 88
                A = 16 + (ms * 2 + ftl) * 4
                cin = "0" if ms == 0 else "v[%d:%d]" % (d, d + 3)
                a("%s v[%d:%d], v[%d:%d], v[%d:%d], %s" % (MF, d, d + 3, A, A + 3, B, B + 3, cin))
    a("s_lshl_b32 s41, s48, 4"); a("s_add_u32 s41, s41, s17"); a("s_mul_i32 s41, s41, %d" % KVP_STRIDE)
    a("s_lshl_b32 s42, s38, 11"); a("s_add_u32 s42, s42, s41")
    a("v_lshlrev_b32 v9, 4, v1"); a("v_add_u32 v9, s42, v9")
    for ftl in range(2):
        for dt in range(3):
            d = KV + (ftl * 3 + dt) * 4
            o = 16 + ftl * 8 + dt * 2
            a("v_cvt_pk_bf16_f32 v%d, v%d, v%d" % (o, d, d + 1)); a("v_cvt_pk_bf16_f32 v%d, v%d, v%d" % (o + 1, d + 2, d + 3))
        a("buffer_store_dwordx4 v[%d:%d], v9, s[52:55], 0 offen offset:%d %s" % (16 + ftl * 8, 19 + ftl * 8, ftl * 1024, SW))
    a("v_lshrrev_b32 v9, 4, v1"); a("v_lshlrev_b32 v9, 3, v9"); a("s_lshl_b32 s42, s38, 6"); a("s_add_u32 s41, s41, s42"); a("s_add_u32 s41, s41, 4096"); a("v_add_u32 v9, s41, v9")
    a("v_and_b32 v10, 15, v1"); a("v_cmp_eq_u32 vcc, 0, v10"); a("s_and_saveexec_b64 s[40:41], vcc")
    for ftl in range(2):
        a("buffer_store_dwordx2 v[%d:%d], v9, s[52:55], 0 offen offset:%d %s" % (20 + ftl * 8, 21 + ftl * 8, ftl * 32, SW))
    a("s_mov_b64 exec, s[40:41]")
    if STAMP['on']:
        a("s_memrealtime s[98:99]"); a("s_waitcnt lgkmcnt(0)")
    a("s_waitcnt vmcnt(0)")
    if STAMP['on']:
        a("s_memrealtime s[100:101]"); a("s_waitcnt lgkmcnt(0)")
    a("v_mov_b32 v14, %d" % (FLG + 16)); a("v_mov_b32 v15, 1")
    a("s_mov_b64 s[78:79], exec"); a("s_mov_b64 exec, 1"); a("ds_add_u32 v14, v15"); a("s_mov_b64 exec, s[78:79]")
    a("s_waitcnt lgkmcnt(0)")
    if OPT.get('kprio', 1): a("s_setprio 0")
    a.label("KA_common")
    stamp(a, 3)
    a("s_and_b32 s30, s2, 7"); a("s_lshl_b32 s30, s30, 1"); a("s_bfe_u32 s31, s2, 0x10003"); a("s_add_u32 s30, s30, s31"); a("s_lshr_b32 s31, s2, 4")
    make_srd(a, 52, 34, 8 * MB, off=WS_KVP)
    make_srd(a, 56, 34, 65536, off=WS_CNT)
    a("s_lshl_b32 s50, s18, 8")
    a("s_lshl_b32 s51, s17, 8"); a("s_add_u32 s51, s51, 4096")
    a("s_lshl_b32 s29, s30, 8"); a("s_add_u32 s29, s29, 4096")
    a("v_lshlrev_b32 v2, 4, v1")
    a("s_cmp_lt_u32 s%d, 4" % S_WAVE); a("s_cbranch_scc1 KA_redc")
    a("s_cmp_lg_u32 s%d, 4" % S_WAVE); a("s_cbranch_scc1 KA_nopoll1")
    a("v_mov_b32 v14, %d" % (FLG + 16)); a("s_mov_b32 s77, 0x100000")
    a.label("KA_dr")
    a("ds_read_b32 v15, v14"); a("s_waitcnt lgkmcnt(0)"); a("v_readfirstlane_b32 s78, v15")
    a("s_cmp_eq_u32 s78, 4"); a("s_cbranch_scc1 KA_dr_done")
    a("s_sub_u32 s77, s77, 1"); a("s_cmp_lg_u32 s77, 0"); a("s_cbranch_scc1 KA_dr")
    a.label("KA_dr_done")
    signal(a, "KA_s1", 56, 50, 40)
    spin_wait(a, "KA_p1", 56, 50, 16, 40)
    a("v_mov_b32 v14, %d" % (FLG + 20)); a("v_mov_b32 v15, 1"); a("ds_write_b32 v14, v15"); a("s_waitcnt lgkmcnt(0)")
    a("s_branch KA_kvready")
    a.label("KA_nopoll1")
    a("v_mov_b32 v14, %d" % (FLG + 20)); a("s_mov_b32 s77, 0x400000")
    a.label("KA_kw")
    a("ds_read_b32 v15, v14"); a("s_waitcnt lgkmcnt(0)"); a("v_readfirstlane_b32 s78, v15")
    a("s_cmp_eq_u32 s78, 1"); a("s_cbranch_scc1 KA_kvready")
    a("s_sleep 1")
    a("s_sub_u32 s77, s77, 1"); a("s_cmp_lg_u32 s77, 0"); a("s_cbranch_scc1 KA_kw")
    a.label("KA_kvready")
    stamp(a, 4)
    a("s_and_b32 s40, s49, 1"); a("s_lshr_b32 s41, s49, 1")
    a("s_lshl_b32 s42, s18, 1"); a("s_add_u32 s42, s42, s40"); a("s_mul_i32 s42, s42, %d" % (16 * KVP_STRIDE))
    a("s_lshl_b32 s43, s41, 10"); a("s_add_u32 s43, s43, s42"); a("v_add_u32 v3, s43, v2")
    a("v_lshrrev_b32 v4, 2, v1"); a("s_mov_b32 s43, %d" % KVP_STRIDE); a("v_mul_lo_u32 v4, v4, s43"); a("v_and_b32 v6, 3, v1"); a("v_lshl_add_u32 v4, v6, 3, v4")
    a("s_lshl_b32 s43, s41, 5"); a("s_add_u32 s43, s43, s42"); a("s_add_u32 s43, s43, 4096"); a("v_add_u32 v4, s43, v4")
    a("buffer_load_dwordx2 v[10:11], v4, s[52:55], 0 offen %s" % LDF)
    a("buffer_load_dwordx2 v[12:13], v4, s[52:55], 0 offen offset:64 %s" % LDF)
    a("s_mov_b32 s43, 0")
    for p in range(16):
        a("buffer_load_dwordx4 v[%d:%d], v3, s[52:55], s43 offen %s" % (32 + p * 8, 35 + p * 8, LDF))
        a("buffer_load_dwordx4 v[%d:%d], v3, s[52:55], s43 offen offset:2048 %s" % (36 + p * 8, 39 + p * 8, LDF))
        if p < 15: a("s_add_u32 s43, s43, %d" % KVP_STRIDE)
    a("v_lshrrev_b32 v5, 4, v1"); a("v_bfe_u32 v6, v1, 2, 2"); a("v_cmp_eq_u32 vcc, v5, v6")
    a("v_and_b32 v5, 1, v1"); a("v_lshlrev_b32 v5, 4, v5"); a("v_mov_b32 v6, 0x3f80"); a("v_lshlrev_b32 v6, v5, v6"); a("v_cndmask_b32 v6, 0, v6, vcc")
    a("v_and_b32 v5, 2, v1"); a("v_cmp_eq_u32 vcc, 0, v5")
    a("v_cndmask_b32 v160, 0, v6, vcc"); a("v_cndmask_b32 v161, v6, 0, vcc") if False else None
    a("v_mov_b32 v7, 0")
    a("v_cndmask_b32 v160, v7, v6, vcc"); a("v_cndmask_b32 v161, v6, v7, vcc")
    a("v_mov_b32 v162, 0"); a("v_mov_b32 v163, 0"); a("v_mov_b32 v164, 0"); a("v_mov_b32 v165, 0"); a("v_mov_b32 v166, v160"); a("v_mov_b32 v167, v161")
    a("s_waitcnt vmcnt(32)")
    for b in (0, 1):
        src = 10 + 2 * b; d = 16 + 4 * b
        a("v_lshlrev_b32 v%d, 16, v%d" % (d, src)); a("v_and_b32 v%d, 0xffff0000, v%d" % (d + 1, src)); a("v_lshlrev_b32 v%d, 16, v%d" % (d + 2, src + 1)); a("v_and_b32 v%d, 0xffff0000, v%d" % (d + 3, src + 1))
    for sh in (4, 8):
        for q in range(8): a("v_add_f32_dpp v%d, v%d, v%d row_ror:%d row_mask:0xf bank_mask:0xf" % (16 + q, 16 + q, 16 + q, sh))
    allreduce4(a, "v_add_f32", [16, 17, 18, 19], None); allreduce4(a, "v_add_f32", [20, 21, 22, 23], None)
    a("v_cvt_pk_bf16_f32 v10, v16, v17"); a("v_cvt_pk_bf16_f32 v11, v18, v19"); a("v_cvt_pk_bf16_f32 v12, v20, v21"); a("v_cvt_pk_bf16_f32 v13, v22, v23")
    a("v_and_b32 v6, 3, v1"); a("v_lshlrev_b32 v6, 3, v6"); a("s_lshl_b32 s43, s41, 5"); a("s_lshl_b32 s45, s40, 13"); a("s_add_u32 s43, s43, s45"); a("s_add_u32 s43, s43, %d" % (KVF + 4096)); a("v_add_u32 v6, s43, v6")
    a("ds_write_b64 v6, v[10:11]"); a("ds_write_b64 v6, v[12:13] offset:64")
    for p in range(16):
        if p % 2 == 0: a("s_waitcnt vmcnt(%d)" % (28 - 2 * p))
        for b in (0, 1):
            for hf in (0, 1):
                d = 168 + b * 8 + hf * 4
                cin = "0" if p == 0 else "v[%d:%d]" % (d, d + 3)
                a("%s v[%d:%d], v[%d:%d], v[%d:%d], %s" % (MF, d, d + 3, 160 + hf * 4, 163 + hf * 4, 32 + p * 8 + b * 4, 35 + p * 8 + b * 4, cin))
    a("v_lshlrev_b32 v6, 3, v1"); a("s_lshl_b32 s43, s41, 9"); a("s_add_u32 s43, s43, s45"); a("s_add_u32 s43, s43, %d" % KVF); a("v_add_u32 v7, s43, v6")
    for b in (0, 1):
        for dt in (0, 1):
            d = 168 + b * 8 + dt * 4
            a("v_cvt_pk_bf16_f32 v28, v%d, v%d" % (d, d + 1)); a("v_cvt_pk_bf16_f32 v29, v%d, v%d" % (d + 2, d + 3))
            a("ds_write_b64 v7, v[28:29] offset:%d" % (dt * 2048 + b * 1024))
    stamp(a, 5)
    a("s_waitcnt lgkmcnt(0)"); a("s_barrier")
    make_srd(a, 8, 60, 1024 * 1024 * 2)
    a("v_lshrrev_b32 v7, 3, v1"); a("v_lshlrev_b32 v7, 11, v7")
    a("v_bfe_u32 v8, v1, 4, 2"); a("v_lshlrev_b32 v8, 1, v8"); a("v_and_b32 v9, 7, v1"); a("v_xor_b32 v8, v8, v9"); a("v_lshl_add_u32 v7, v8, 4, v7")
    a("s_lshl_b32 s43, s49, 15"); a("s_lshl_b32 s45, s31, 7"); a("s_add_u32 s43, s43, s45"); a("v_add_u32 v7, s43, v7")
    a("v_add_u32 v8, %d, v7" % (8 * 2048 - 1024))
    a("s_lshl_b32 s45, s49, 11")
    for t in (0, 1, 2, 3, 15):
        a("s_mov_b32 s43, %d" % (t * 64 * 2048))
        a("s_add_u32 m0, s45, %d" % (t * 8192))
        a("buffer_load_dwordx4 v7, s[8:11], s43 offen lds")
        a("buffer_load_dwordx4 v8, s[8:11], s43 offen offset:1024 lds")
    a("s_waitcnt vmcnt(0)")
    make_srd(a, 12, 34, 4 * MB, off=WS_O)
    a("s_barrier")
    a("s_branch KA_pre7")
    a.label("KA_redc")
    a("s_barrier")
    stamp(a, 4); stamp(a, 5)
    a("v_lshlrev_b32 v6, 3, v1"); a("s_lshl_b32 s43, s39, 13"); a("s_add_u32 s43, s43, %d" % KVF); a("v_add_u32 v6, s43, v6")
    for dt in range(2):
        for fs in range(2):
            r = 32 + (dt * 2 + fs) * 4
            a("ds_read_b64 v[%d:%d], v6 offset:%d" % (r, r + 1, dt * 2048 + (2 * fs) * 512))
            a("ds_read_b64 v[%d:%d], v6 offset:%d" % (r + 2, r + 3, dt * 2048 + (2 * fs + 1) * 512))
    a("v_lshrrev_b32 v7, 4, v1"); a("v_lshlrev_b32 v7, 3, v7"); a("v_add_u32 v7, s43, v7")
    for fs in range(2):
        a("ds_read_b64 v[%d:%d], v7 offset:%d" % (48 + fs * 4, 49 + fs * 4, 4096 + (2 * fs) * 32))
        a("ds_read_b64 v[%d:%d], v7 offset:%d" % (50 + fs * 4, 51 + fs * 4, 4096 + (2 * fs + 1) * 32))
    for q in range(4): a("v_mov_b32 v%d, 0x3f803f80" % (56 + q))
    a("s_waitcnt lgkmcnt(0)")
    RB = 64
    for i in range(4):
        R = RB + i * 32
        for fs in range(2):
            B = PQ + (i * 2 + fs) * 4
            for dt in range(2):
                d = R + (fs * 2 + dt) * 4; A = 32 + (dt * 2 + fs) * 4
                a("%s v[%d:%d], v[%d:%d], v[%d:%d], 0" % (MF, d, d + 3, A, A + 3, B, B + 3))
            a("%s v[%d:%d], v[%d:%d], v[%d:%d], 0" % (MF, R + 16 + fs * 4, R + 19 + fs * 4, 48 + fs * 4, 51 + fs * 4, B, B + 3))
            a("%s v[%d:%d], v[56:59], v[%d:%d], 0" % (MF, R + 24 + fs * 4, R + 27 + fs * 4, B, B + 3))
    make_srd(a, 12, 34, 4 * MB, off=WS_O)
    a("s_lshl_b32 s40, s38, 2"); a("s_add_u32 s40, s40, s44"); a("s_lshl_b32 s40, s40, 5"); a("s_lshl_b32 s41, s18, 1"); a("s_add_u32 s41, s41, s39"); a("s_add_u32 s40, s40, s41"); a("s_lshl_b32 s40, s40, 10")
    a("v_add_u32 v5, s40, v2"); a("v_xor_b32 v8, 1024, v5")
    for i in range(4):
        R = RB + i * 32
        a("v_rcp_f32 v%d, v%d" % (R + 24, R + 24)); a("v_rcp_f32 v%d, v%d" % (R + 28, R + 28))
    for i in range(4):
        R = RB + i * 32
        a("v_mul_f32 v%d, v%d, v%d" % (R + 16, R + 16, R + 24)); a("v_fma_f32 v%d, v%d, v%d, v%d" % (R + 16, R + 20, R + 28, R + 16))
        a("v_add_f32 v%d, 0x358637bd, v%d" % (R + 16, R + 16))
    for i in range(4):
        R = RB + i * 32
        a("v_rcp_f32 v%d, v%d" % (R + 16, R + 16))
    for i in range(4):
        R = RB + i * 32
        a("v_mul_f32 v%d, v%d, v%d" % (R + 24, R + 24, R + 16)); a("v_mul_f32 v%d, v%d, v%d" % (R + 28, R + 28, R + 16))
    a("s_mov_b32 s43, 0")
    for i in range(4):
        R = RB + i * 32
        for h in range(4): a(pk("v_pk_mul_f32", R + 2 * h, R + 2 * h, R + 24, mods="op_sel_hi:[1,0]"))
        for h in range(4): a(pk("v_pk_fma_f32", R + 2 * h, R + 8 + 2 * h, R + 28, R + 2 * h, mods="op_sel_hi:[1,0,1]"))
        for h in range(4): a("v_cvt_pk_bf16_f32 v%d, v%d, v%d" % (16 + i * 4 + h, R + 2 * h, R + 2 * h + 1))
        a("buffer_store_dwordx4 v[%d:%d], v%d, s[12:15], s43 offen %s" % (16 + i * 4, 19 + i * 4, 5 if i % 2 == 0 else 8, SW))
        if i < 3: a("s_add_u32 s43, s43, %d" % (32 * 1024))
    if STAMP['on']:
        a("s_memrealtime s[98:99]"); a("s_waitcnt lgkmcnt(0)")
    a("s_waitcnt vmcnt(0)")
    a("s_barrier")
    if STAMP['on']:
        a("s_memrealtime s[100:101]"); a("s_waitcnt lgkmcnt(0)")
    a.label("KA_pre7")
    a("s_mov_b32 s17, s30"); a("s_mov_b32 s18, s31"); a("s_lshl_b32 s44, s30, 3")
    make_srd(a, 8, 64, 2048 * 1024 * 2)
    a("s_lshl_b32 s40, s17, 7"); a("s_lshl_b32 s41, s%d, 4" % S_WAVE); a("s_add_u32 s40, s40, s41")
    a("v_and_b32 v9, 15, v1"); a("v_add_u32 v241, s40, v9"); a("v_lshlrev_b32 v9, 11, v241")
    a("s_lshl_b32 s41, s18, 7"); a("v_lshrrev_b32 v10, 4, v1"); a("v_lshl_add_u32 v9, v10, 3, v9"); a("v_add_u32 v9, s41, v9")
    a("s_cmp_lg_u32 s%d, 0" % S_WAVE); a("s_cbranch_scc1 KA_nopoll2")
    signal(a, "KA_s2", 56, 51, 40)
    spin_wait(a, "KA_p2", 56, 29, 16, 40)
    a.label("KA_nopoll2")
    a("s_barrier")
    stamp(a, 6)
    D = 8; AR = 16; BR = 80; AC = 176
    a("s_add_u32 s40, s%d, s44" % S_WAVE); a("s_lshl_b32 s40, s40, 15")
    a("v_add_u32 v3, s40, v2")
    tr_pattern(a, 5, 14)
    for t in range(1, 4): a("v_xor_b32 v%d, %d, v5" % (5 + t, t * 32))
    def aload1(k):
        a("buffer_load_dwordx4 v[%d:%d], v3, s[12:15], s42 offen %s" % (AR + k * 4, AR + k * 4 + 3, LDF))
        a("s_add_u32 s43, s43, 1024"); a("s_and_b32 s43, s43, 0x7fff"); a("s_xor_b32 s42, s43, s45")
    for j in range(4):
        a("buffer_load_dwordx2 v[%d:%d], v9, s[8:11], 0 offen offset:%d" % (208 + j * 2, 209 + j * 2, j * 32))
    a("s_and_b32 s43, s18, 3"); a("s_lshl_b32 s43, s43, 13")
    a("s_lshl_b32 s41, s43, 2")
    for t in range(4): a("v_add_u32 v%d, s41, v%d" % (5 + t, 5 + t))
    a("s_and_b32 s45, s%d, 1" % S_WAVE); a("s_lshl_b32 s45, s45, 10")
    a("s_xor_b32 s42, s43, s45")
    for k in range(D): aload1(k)
    for q in range(16): a("v_mov_b32 v%d, 0" % (AC + q))
    sch = LgkmSched(a)
    def bread_list(setb, k):
        return [("ds_read_b64_tr_b16 v[%d:%d], v%d offset:%d" % (setb + j * 4 + jj * 2, setb + j * 4 + jj * 2 + 1, 5 + j, k * 4096 + jj * 2048), (setb, j)) for j in range(4) for jj in range(2)]
    def body(last):
        for k in range(D):
            cur = BR + (k & 1) * 16; nxt = BR + ((k + 1) & 1) * 16
            if k < D - 1: rd = bread_list(nxt, k + 1)
            elif not last:
                for t in range(4): a("v_add_u32 v%d, %d, v%d" % (5 + t, D * 4096, 5 + t)); a("v_and_b32 v%d, 0x1ffff, v%d" % (5 + t, 5 + t))
                rd = bread_list(nxt, 0)
            else: rd = []
            a("s_waitcnt vmcnt(%d)" % ((D - 1) if not last else (D - 1 - k)))
            for j in range(4):
                sch.need({(cur, j)})
                d = AC + j * 4
                a("%s v[%d:%d], v[%d:%d], v[%d:%d], v[%d:%d]" % (MF, d, d + 3, cur + j * 4, cur + j * 4 + 3, AR + k * 4, AR + k * 4 + 3, d, d + 3))
                for m in (2 * j, 2 * j + 1):
                    if m < len(rd): sch.issue(*rd[m])
            if not last: aload1(k)
    for t_ in bread_list(BR, 0): sch.issue(*t_)
    q0 = list(sch.q)
    a("s_mov_b32 s46, 3")
    a.label("KA_gloop")
    body(False)
    assert sch.q == q0, (sch.q, q0)
    a("s_sub_u32 s46, s46, 1"); a("s_cmp_lg_u32 s46, 0"); a("s_cbranch_scc1 KA_gloop")
    body(True)
    stamp(a, 7)
    make_srd(a, 48, 34, 4 * MB, off=WS_H)
    make_srd(a, 52, 34, 1 * MB, off=WS_STATS)
    for j in range(4):
        for h in range(2):
            a("v_lshlrev_b32 v%d, 16, v%d" % (16 + j * 4 + 2 * h, 208 + j * 2 + h)); a("v_and_b32 v%d, 0xffff0000, v%d" % (17 + j * 4 + 2 * h, 208 + j * 2 + h))
    for q in range(8): a(pk("v_pk_add_f32", AC + 2 * q, AC + 2 * q, 16 + 2 * q))
    a("s_lshl_b32 s41, s18, 11"); a("s_add_u32 s40, s40, s41"); a("v_add_u32 v14, s40, v2")
    for jp in range(2):
        d = 48 + jp * 4
        for q in range(4): a("v_cvt_pk_bf16_f32 v%d, v%d, v%d" % (d + q, AC + jp * 8 + 2 * q, AC + jp * 8 + 2 * q + 1))
        a("buffer_store_dwordx4 v[%d:%d], v14, s[48:51], 0 offen offset:%d %s" % (d, d + 3, jp * 1024, st_flags('h')))
    a(pk("v_pk_add_f32", 16, AC, AC + 2)); a(pk("v_pk_add_f32", 18, AC + 4, AC + 6)); a(pk("v_pk_add_f32", 20, AC + 8, AC + 10)); a(pk("v_pk_add_f32", 22, AC + 12, AC + 14))
    a(pk("v_pk_add_f32", 16, 16, 18)); a(pk("v_pk_add_f32", 20, 20, 22)); a(pk("v_pk_add_f32", 16, 16, 20)); a("v_add_f32 v16, v16, v17")
    def xl(r, t):
        a("v_mov_b32 v%d, v%d" % (t, r)); a("v_permlane32_swap_b32 v%d, v%d" % (r, t)); a("v_add_f32 v%d, v%d, v%d" % (r, r, t))
        a("v_mov_b32 v%d, v%d" % (t, r)); a("v_permlane16_swap_b32 v%d, v%d" % (r, t)); a("v_add_f32 v%d, v%d, v%d" % (r, r, t))
    xl(16, 24)
    a("v_mul_f32 v16, 0x3c800000, v16")
    for q in range(8): a(pk("v_pk_add_f32", AC + 2 * q, AC + 2 * q, 16, mods="op_sel_hi:[1,0] neg_lo:[0,1] neg_hi:[0,1]"))
    a(pk("v_pk_mul_f32", 20, AC, AC)); a(pk("v_pk_mul_f32", 22, AC + 2, AC + 2))
    for q in range(2, 8): a(pk("v_pk_fma_f32", 20 + 2 * (q & 1), AC + 2 * q, AC + 2 * q, 20 + 2 * (q & 1)))
    a(pk("v_pk_add_f32", 20, 20, 22)); a("v_add_f32 v17, v20, v21")
    xl(17, 24)
    a("v_lshlrev_b32 v13, 7, v241"); a("s_lshl_b32 s41, s18, 3"); a("v_add_u32 v13, s41, v13")
    a("v_cmp_gt_u32 vcc, 16, v1"); a("s_and_saveexec_b64 s[56:57], vcc")
    a("buffer_store_dwordx2 v[16:17], v13, s[52:55], 0 offen %s" % st_flags('h'))
    a("s_mov_b64 exec, s[56:57]")
    if STAMP['on']:
        lbl = "ST_skip_ka"
        a("s_waitcnt vmcnt(0)")
        a("s_memrealtime s[96:97]"); a("s_waitcnt lgkmcnt(0)")
        a("s_and_b32 s76, s%d, 3" % S_WAVE); a("s_cmp_lg_u32 s76, 0"); a("s_cbranch_scc1 %s" % lbl)
        a("s_load_dwordx2 s[70:71], s[0:1], %d" % KERNARG['ws']); a("s_waitcnt lgkmcnt(0)")
        make_srd(a, 72, 70, 1 * MB, off=WS_STAMP + 512 * 1024)
        a("s_lshl_b32 s76, s2, 6"); a("s_lshl_b32 s77, s%d, 16" % S_WAVE); a("s_add_u32 s76, s76, s77"); a("s_mov_b64 exec, 1"); a("v_mov_b32 v5, s76")
        for i in range(11):
            a("v_mov_b32 v4, s%d" % (80 + 2 * i)); a("buffer_store_dword v4, v5, s[72:75], 0 offen offset:%d" % (i * 4)); a("s_nop 1")
        a.label(lbl)
    a.label("K1_end")
    a("s_endpgm")
    return name, dict(grid=256, block=512, lds=lds_total, vgprs=256)

def gen_k3(a):
    name = "k3_kernel"; L = "K3"
    c = Cfg(MT=4, NT=7, K=1024, NS=3, nblk=4, ldb=7168, acc0=112)
    STL = c.lds
    CSL = c.lds + 1024
    B1F = 36
    kernel_header(a, name)
    a("s_cmp_ge_u32 s2, 256"); a("s_cbranch_scc1 K3_end")
    stamp(a, 0)
    ld_ptr(a, 34, 'ws'); ld_ptr(a, 32, 'w1'); ld_ptr(a, 36, 'b1')
    wave_lane(a)
    tile_map(a, OPT.get('k3map', '8x4'))
    a("s_lshl_b32 s44, s17, 3")
    a("s_and_b32 s43, s18, 1")
    a("s_mul_i32 s45, s18, 448"); a("s_lshl_b32 s42, s43, 6"); a("s_sub_u32 s45, s45, s42")
    for b in range(1, 4): a("s_add_u32 s%d, s45, %d" % (45 + b, b * 128))
    a("s_waitcnt lgkmcnt(0)")
    make_srd(a, S_SRDA, 34, 4 * MB, off=WS_H)
    make_srd(a, S_SRDB, 32, 1024 * 3584 * 2)
    a("s_cmp_ge_u32 s%d, 4" % S_WAVE); a("s_cbranch_scc1 K3_loader")
    vA = 2; vB = [3, 4, 5, 6]
    compute_setup(a, c, vA, vB, tmp=9)
    if OPT.get('touch_k3', OPT.get('touch', 0)):
        nA, nB = map_share(OPT.get('k3map', '8x4'))
        touch_setup(a, c, nA, nB, 66, 67, 44, 45, 128, 252, 253, 12, 68, 69, 254, OPT.get('touch_k3', OPT.get('touch', 0)))
    a("s_mul_i32 s40, s39, 7"); a("s_lshl_b32 s41, s43, 1"); a("s_add_u32 s40, s40, s41")
    a("v_mov_b32 v9, v3")
    for j in range(4):
        a("s_add_u32 s41, s40, %d" % j); a("s_and_b32 s42, s41, 3"); a("s_lshl_b32 s42, s42, 5"); a("v_xor_b32 v%d, s42, v9" % (3 + j))
        a("s_lshr_b32 s42, s41, 2"); a("s_lshl_b32 s42, s42, 13"); a("v_add_u32 v%d, s42, v%d" % (3 + j, 3 + j))
    tm = [(vB[j & 3], c.blk_off[0] + (j >> 2) * 8192) for j in range(7)]
    make_srd(a, 48, 34, 2048 * 3584 * 2, off=WS_H1)
    make_srd(a, 56, 36, 3584 * 2)
    a("s_mul_i32 s40, s18, 224"); a("s_mul_i32 s41, s39, 112"); a("s_add_u32 s40, s40, s41")
    a("v_lshrrev_b32 v9, 4, v1"); a("v_lshlrev_b32 v9, 2, v9"); a("v_add_u32 v9, s40, v9")
    a("v_lshlrev_b32 v10, 2, v9"); a("v_lshlrev_b32 v11, 1, v9")
    def after_b0(a):
        stamp(a, 1)
        for j in range(7):
            a("buffer_load_dwordx2 v[%d:%d], v11, s[56:59], 0 offen offset:%d" % (224 + j * 2, 225 + j * 2, j * 32))
    c.after_b0 = after_b0
    a("s_lshl_b32 s40, s38, 2"); a("s_add_u32 s40, s40, s44"); a("s_mul_i32 s40, s40, 112")
    a("s_mul_i32 s41, s18, 7"); a("s_add_u32 s40, s40, s41")
    a("s_mul_i32 s41, s39, 3"); a("s_add_u32 s40, s40, s41")
    a("s_lshl_b32 s40, s40, 10")
    a("v_lshlrev_b32 v14, 4, v1"); a("v_add_u32 v14, s40, v14")
    compute_loop(a, c, L, tm, vA)
    stamp(a, 2)
    a("s_barrier")
    a("v_and_b32 v12, 15, v1"); a("v_lshlrev_b32 v12, 3, v12"); a("s_lshl_b32 s41, s38, 9"); a("s_add_u32 s41, s41, %d" % STL); a("v_add_u32 v12, s41, v12")
    for i in range(4): a("ds_read_b64 v[%d:%d], v12 offset:%d" % (16 + 2 * i, 17 + 2 * i, i * 128))
    a("s_mul_i32 s40, s39, 7"); a("s_lshl_b32 s41, s43, 1"); a("s_add_u32 s40, s40, s41"); a("s_lshl_b32 s40, s40, 6"); a("s_add_u32 s40, s40, %d" % CSL)
    a("v_lshrrev_b32 v12, 4, v1"); a("v_lshlrev_b32 v12, 4, v12"); a("v_add_u32 v12, s40, v12")
    for j in range(7): a("ds_read_b128 v[%d:%d], v12 offset:%d" % (100 - 0 + 0 if False else 64 + j * 4, 67 + j * 4, j * 64))
    a("s_waitcnt vmcnt(0) lgkmcnt(0)")
    for i in range(4): a("v_mov_b32 v%d, v%d" % (24 + 2 * i, 17 + 2 * i))
    for j in range(7):
        for h in range(2):
            a("v_lshlrev_b32 v%d, 16, v%d" % (B1F + j * 4 + 2 * h, 224 + j * 2 + h)); a("v_and_b32 v%d, 0xffff0000, v%d" % (B1F + j * 4 + 2 * h + 1, 224 + j * 2 + h))
    def acc(i, j): return c.acc0 + (i * 7 + j) * 4
    def tile_vals(i, j, dst, tmp):
        b = acc(i, j)
        for h in range(2):
            a(pk("v_pk_fma_f32", tmp + 2 * h, 64 + j * 4 + 2 * h, 24 + 2 * i, B1F + j * 4 + 2 * h, mods="op_sel_hi:[1,0,1] neg_lo:[0,1,0] neg_hi:[0,1,0]"))
        for h in range(2):
            a(pk("v_pk_fma_f32", b + 2 * h, b + 2 * h, 16 + 2 * i, tmp + 2 * h, mods="op_sel_hi:[1,0,1]"))
        for r in range(4): a("v_max_f32 v%d, 0, v%d" % (tmp + r, b + r))
        for h in range(2): a(pk("v_pk_mul_f32", b + 2 * h, b + 2 * h, tmp + 2 * h))
        a("v_cvt_pk_bf16_f32 v%d, v%d, v%d" % (dst, b, b + 1)); a("v_cvt_pk_bf16_f32 v%d, v%d, v%d" % (dst + 1, b + 2, b + 3))
    def pair(i, j0, dst):
        interleave(a, lambda x: tile_vals_on(x, i, j0, dst, 92), lambda x: tile_vals_on(x, i, j0 + 1, dst + 2, 96))
    def tile_vals_on(x, i, j, dst, tmp):
        nonlocal a
        sv = a; a = x
        tile_vals(i, j, dst, tmp)
        a = sv
    fl = st_flags('h1')
    a("s_mov_b32 s42, 0")
    a("s_cmp_eq_u32 s39, 0"); a("s_cbranch_scc0 K3_epi1")
    for i in range(4):
        for pr in range(3):
            d = 100 + ((i * 4 + pr) % 3) * 4
            pair(i, 2 * pr, d)
            a("buffer_store_dwordx4 v[%d:%d], v14, s[48:51], s42 offen offset:%d %s" % (d, d + 3, pr * 1024, fl))
        d = 100 + ((i * 4 + 3) % 3) * 4
        tile_vals(i, 6, d, 92)
        a("buffer_store_dwordx2 v[%d:%d], v14, s[48:51], s42 offen offset:3072 %s" % (d, d + 1, fl))
        if i < 3: a("s_add_u32 s42, s42, %d" % (112 * 1024))
    stamp_flush(a, 4, 3)
    a("s_branch K3_end")
    a.label("K3_epi1")
    for i in range(4):
        d = 100
        tile_vals(i, 0, d, 92)
        a("buffer_store_dwordx2 v[%d:%d], v14, s[48:51], s42 offen offset:8 %s" % (d, d + 1, fl))
        for pr in range(3):
            d = 100 + ((pr + 1) % 3) * 4
            pair(i, 2 * pr + 1, d)
            a("buffer_store_dwordx4 v[%d:%d], v14, s[48:51], s42 offen offset:%d %s" % (d, d + 3, (pr + 1) * 1024, fl))
        if i < 3: a("s_add_u32 s42, s42, %d" % (112 * 1024))
    a("s_branch K3_end")
    a.label("K3_loader")
    Ld = loader_setup(a, c, 44, ["s45", "s46", "s47", "s48"])
    make_srd(a, 12, 34, 1 * MB, off=WS_STATS)
    make_srd(a, 52, 34, 16 * 16 * 1024, off=WS_CSP)
    make_srd(a, 56, 34, 65536, off=WS_CNT)
    a("s_sub_u32 s49, s%d, 4" % S_WAVE)
    a("s_lshl_b32 s40, s17, 7"); a("s_lshl_b32 s42, s49, 5"); a("s_add_u32 s40, s40, s42")
    a("v_and_b32 v30, 15, v1"); a("v_add_u32 v30, s40, v30"); a("v_lshlrev_b32 v30, 7, v30")
    a("v_lshrrev_b32 v31, 4, v1"); a("v_lshl_add_u32 v30, v31, 5, v30")
    a("s_add_u32 s50, s18, 64"); a("s_lshl_b32 s50, s50, 8")
    a("v_lshrrev_b32 v26, 3, v1"); a("s_mov_b32 s42, 7168"); a("v_mul_lo_u32 v26, v26, s42"); a("v_and_b32 v27, 7, v1"); a("v_lshl_add_u32 v26, v27, 4, v26")
    a("s_mul_i32 s40, s17, %d" % (64 * 7168)); a("s_lshl_b32 s42, s49, 7"); a("s_add_u32 s40, s40, s42"); a("s_add_u32 s40, s40, s45"); a("v_add_u32 v26, s40, v26")
    a("s_lshl_b32 s40, s18, 4"); a("s_add_u32 s40, s40, s17"); a("s_lshl_b32 s40, s40, 10"); a("s_lshl_b32 s42, s49, 8"); a("s_add_u32 s40, s40, s42")
    a("v_lshlrev_b32 v25, 5, v27"); a("v_add_u32 v25, s40, v25")
    a("s_lshl_b32 s40, s18, 14"); a("s_lshl_b32 s42, s49, 8"); a("s_add_u32 s40, s40, s42")
    a("v_lshlrev_b32 v29, 12, v31"); a("v_and_b32 v28, 15, v1"); a("v_lshl_add_u32 v29, v28, 4, v29"); a("v_add_u32 v29, s40, v29")
    def after_ramp(a):
        a("s_mov_b32 s42, 0")
        for i in range(8):
            a("buffer_load_dwordx4 v[%d:%d], v26, s[%d:%d], s42 offen" % (160 + i * 4, 163 + i * 4, S_SRDB, S_SRDB + 3))
            if i < 7: a("s_add_u32 s42, s42, %d" % (8 * 7168))
    def hook_sum(a):
        for q in range(8): a("v_mov_b32 v%d, 0" % (192 + q))
        for i in range(8):
            for dw in range(4):
                r = 160 + 4 * i + dw; t = 200 + 2 * (dw & 1)
                a("v_lshlrev_b32 v%d, 16, v%d" % (t, r)); a("v_and_b32 v%d, 0xffff0000, v%d" % (t + 1, r))
                a(pk("v_pk_add_f32", 192 + 2 * dw, 192 + 2 * dw, t))
        for q in range(8): a("v_add_f32_dpp v%d, v%d, v%d row_ror:8 row_mask:0xf bank_mask:0xf" % (192 + q, 192 + q, 192 + q))
        allreduce4(a, "v_add_f32", [192, 193, 194, 195], None); allreduce4(a, "v_add_f32", [196, 197, 198, 199], None)
        a("s_mov_b64 s[78:79], exec"); a("s_mov_b64 exec, 0xff")
        a("buffer_store_dwordx4 v[192:195], v25, s[52:55], 0 offen sc1"); a("buffer_store_dwordx4 v[196:199], v25, s[52:55], 0 offen offset:16 sc1")
        a("s_mov_b64 exec, s[78:79]")
    def hook_signal(a):
        a("s_cmp_lg_u32 s%d, 4" % S_WAVE); a("s_cbranch_scc1 K3_hookret")
        signal(a, "K3_s", 56, 50, 204)
    def hook_pollissue(a):
        a("v_mov_b32 v207, 0")
        a("buffer_load_dword v206, v207, s[56:59], s50 offen sc1")
    def hook_pollcheck(a):
        a("v_readfirstlane_b32 s78, v206")
        a("s_cmp_ge_u32 s78, 16"); a("s_cbranch_scc1 K3_hookret")
        spin_wait(a, "K3_sp", 56, 50, 16, 206)
    def tail(a):
        for i in range(2):
            for q in range(2):
                a("buffer_load_dwordx4 v[%d:%d], v30, s[12:15], 0 offen offset:%d" % (64 + i * 8 + q * 4, 67 + i * 8 + q * 4, i * 16 * 128 + q * 16))
        for i in range(4):
            a("buffer_load_dwordx4 v[%d:%d], v29, s[52:55], 0 offen offset:%d" % (96 + i * 4, 99 + i * 4, i * 1024))
    loader_loop(a, c, Ld, L, tail_loads=tail, n_tail=8, after_ramp=after_ramp, hooks={2: hook_sum, 5: hook_signal, 10: hook_pollissue, 12: hook_pollcheck})
    a("s_waitcnt vmcnt(0)")
    def xl2(r, t):
        a("v_mov_b32 v%d, v%d" % (t, r)); a("v_permlane32_swap_b32 v%d, v%d" % (r, t)); a("v_add_f32 v%d, v%d, v%d" % (r, r, t))
        a("v_mov_b32 v%d, v%d" % (t, r)); a("v_permlane16_swap_b32 v%d, v%d" % (r, t)); a("v_add_f32 v%d, v%d, v%d" % (r, r, t))
    for i in range(2):
        b = 64 + i * 8
        mean, var, t = 40 + i * 4, 41 + i * 4, 42 + i * 4
        a("v_add_f32 v%d, v%d, v%d" % (mean, b, b + 2))
        for q in range(2, 4): a("v_add_f32 v%d, v%d, v%d" % (mean, mean, b + 2 * q))
        xl2(mean, t)
        a("v_mul_f32 v%d, 0x3d800000, v%d" % (mean, mean))
        a("v_mov_b32 v%d, 0" % var)
        for q in range(4):
            a("v_sub_f32 v%d, v%d, v%d" % (t, b + 2 * q, mean)); a("v_mul_f32 v%d, v%d, v%d" % (t, t, t))
            a("v_fmac_f32 v%d, 0x42800000, v%d" % (var, t)); a("v_add_f32 v%d, v%d, v%d" % (var, var, b + 2 * q + 1))
        xl2(var, t)
        a("v_mul_f32 v%d, 0x3a800000, v%d" % (var, var))
        bf16_round(a, mean, mean); bf16_round(a, var, var)
        a("v_add_f32 v%d, 0x3727c5ac, v%d" % (var, var)); bf16_round(a, var, var)
        a("v_sqrt_f32 v%d, v%d" % (var, var)); bf16_round(a, var, var)
        a("v_rcp_f32 v%d, v%d" % (50 + 2 * i, var))
        a("v_mul_f32 v%d, v%d, v%d" % (51 + 2 * i, 50 + 2 * i, mean))
    for lv in (2, 1):
        for i in range(lv):
            for h in range(2): a(pk("v_pk_add_f32", 96 + i * 4 + 2 * h, 96 + i * 4 + 2 * h, 96 + (i + lv) * 4 + 2 * h))
    allreduce4(a, "v_add_f32", [96, 97, 98, 99], None)
    a("v_and_b32 v28, 15, v1"); a("v_lshlrev_b32 v28, 4, v28"); a("s_lshl_b32 s41, s49, 8"); a("s_add_u32 s41, s41, %d" % CSL); a("v_add_u32 v28, s41, v28")
    a("ds_write_b128 v28, v[96:99]")
    a("v_and_b32 v30, 15, v1"); a("v_lshlrev_b32 v30, 3, v30"); a("s_lshl_b32 s41, s49, 8"); a("s_add_u32 s41, s41, %d" % STL); a("v_add_u32 v30, s41, v30")
    a("ds_write_b64 v30, v[50:51]"); a("ds_write_b64 v30, v[52:53] offset:128")
    a("s_waitcnt lgkmcnt(0)"); a("s_barrier")
    if OPT.get('k3pf', 1):
        a("s_cmp_lg_u32 s%d, 4" % S_WAVE); a("s_cbranch_scc1 K3_end")
        a("s_load_dwordx2 s[60:61], s[0:1], %d" % KERNARG['w2']); a("s_waitcnt lgkmcnt(0)")
        make_srd(a, 64, 60, 3584 * 1024 * 2)
        a("s_and_b32 s40, s2, 1"); a("s_mul_i32 s40, s40, %d" % (1792 * 2048)); a("s_lshr_b32 s41, s2, 3"); a("s_mul_i32 s42, s41, %d" % (64 * 2048)); a("s_add_u32 s40, s40, s42")
        a("s_bfe_u32 s42, s2, 0x10002"); a("s_lshl_b32 s42, s42, 10"); a("s_add_u32 s40, s40, s42"); a("s_add_u32 s40, s40, 384")
        a("s_cmp_lt_u32 s41, 28"); a("s_cselect_b32 s40, s40, 0x1000000")
        a("v_lshlrev_b32 v20, 11, v1")
        a("buffer_load_dword v21, v20, s[64:67], s40 offen")
    a.label("K3_end")
    a("s_endpgm")
    return name, dict(grid=256, block=512, lds=c.lds + 2048, vgprs=256)

def gen_k4(a):
    name = "k4_kernel"; L = "K4"
    c = Cfg(MT=4, NT=4, K=1792, NS=OPT.get('k4ns', 4), nblk=2, ldb=2048, acc0=112)
    c.Kstride = 3584; c.ka0 = "s46"; c.kb0 = "s47"
    kernel_header(a, name)
    a("s_cmp_ge_u32 s2, 256"); a("s_cbranch_scc1 K4_end")
    stamp(a, 0)
    ld_ptr(a, 34, 'ws'); ld_ptr(a, 32, 'w2'); ld_ptr(a, 36, 'b2'); ld_ptr(a, 62, 'out')
    wave_lane(a)
    a("s_lshr_b32 s41, s2, 3")
    a("s_and_b32 s30, s2, 1")
    a("s_bfe_u32 s42, s2, 0x10001"); a("s_lshl_b32 s42, s42, 3"); a("s_and_b32 s43, s41, 7"); a("s_add_u32 s17, s42, s43")
    a("s_bfe_u32 s42, s2, 0x10002"); a("s_lshl_b32 s42, s42, 2"); a("s_lshr_b32 s43, s41, 3"); a("s_add_u32 s18, s42, s43")
    a("s_lshl_b32 s44, s17, 3")
    a("s_lshl_b32 s45, s18, 8")
    a("s_mul_i32 s46, s30, %d" % (56 * 1024)); a("s_mul_i32 s47, s30, %d" % (1792 * 2048))
    a("s_add_u32 s48, s45, 128")
    a("s_waitcnt lgkmcnt(0)")
    make_srd(a, S_SRDA, 34, 2048 * 3584 * 2, off=WS_H1)
    make_srd(a, S_SRDB, 32, 3584 * 1024 * 2)
    a("s_cmp_ge_u32 s%d, 4" % S_WAVE); a("s_cbranch_scc1 K4_loader")
    vA = 2; vB = [3, 4, 5, 6]
    compute_setup(a, c, vA, vB, tmp=9)
    a("s_lshl_b32 s25, s39, 13"); a("v_add_u32 v3, s25, v3")
    for t in range(1, 4): a("v_xor_b32 v%d, %d, v3" % (3 + t, t * 32))
    tm = [(vB[j], c.blk_off[0]) for j in range(4)]
    make_srd(a, 52, 62, 2048 * 1024 * 2)
    make_srd(a, 56, 36, 1024 * 2)
    make_srd(a, 48, 34, 4 * MB, off=WS_H)
    a("s_lshl_b32 s31, s18, 2"); a("s_lshl_b32 s41, s39, 1"); a("s_add_u32 s31, s31, s41"); a("s_add_u32 s31, s31, s30")
    a("s_lshl_b32 s40, s38, 2"); a("s_add_u32 s40, s40, s44"); a("s_lshl_b32 s40, s40, 5"); a("s_add_u32 s40, s40, s31"); a("s_lshl_b32 s40, s40, 10")
    a("v_lshlrev_b32 v14, 4, v1"); a("v_add_u32 v14, s40, v14")
    a("s_lshl_b32 s40, s31, 5")
    a("v_lshrrev_b32 v12, 4, v1"); a("v_lshlrev_b32 v12, 2, v12"); a("v_add_u32 v12, s40, v12"); a("v_lshlrev_b32 v12, 1, v12")
    def after_b0(a):
        stamp(a, 1)
        a("s_mov_b32 s42, 0")
        for i in range(4):
            a("buffer_load_dwordx4 v[%d:%d], v14, s[48:51], s42 offen" % (192 + i * 4, 195 + i * 4))
            if i < 3: a("s_add_u32 s42, s42, %d" % (32 * 1024))
        for j in range(2): a("buffer_load_dwordx2 v[%d:%d], v12, s[56:59], 0 offen offset:%d" % (208 + j * 2, 209 + j * 2, j * 32))
    c.after_b0 = after_b0
    a("s_lshl_b32 s40, s17, 7"); a("s_lshl_b32 s42, s38, 6"); a("s_add_u32 s40, s40, s42")
    a("v_and_b32 v9, 15, v1"); a("v_add_u32 v9, s40, v9"); a("v_lshlrev_b32 v9, 11, v9")
    a("v_bfe_u32 v10, v1, 4, 1"); a("v_lshl_add_u32 v9, v10, 5, v9")
    a("v_lshrrev_b32 v10, 5, v1"); a("v_lshl_add_u32 v9, v10, 4, v9")
    a("s_lshl_b32 s41, s31, 6"); a("v_add_u32 v9, s41, v9")
    if OPT.get('k4pf', 1):
        a("s_and_b32 s60, s17, 7"); a("s_lshl_b32 s60, s60, 2"); a("s_add_u32 s60, s60, s%d" % S_WAVE)
        a("s_mul_i32 s61, s60, %d" % (64 * 2048)); a("s_add_u32 s61, s61, s47"); a("s_add_u32 s61, s61, s45"); a("s_add_u32 s61, s61, 128")
        a("s_and_b32 s64, s18, 3"); a("s_cmp_eq_u32 s64, 1"); a("s_cselect_b32 s61, s61, 0x1000000")
        a("s_cmp_lt_u32 s60, 28"); a("s_cselect_b32 s61, s61, 0x1000000")
        a("v_lshlrev_b32 v250, 11, v1")
        a("s_cmp_lt_u32 s60, 14"); a("s_cselect_b32 s64, s61, 0x1000000"); a("s_cselect_b32 s65, 0x1000000, s61")
        a("buffer_load_dword v251, v250, s[%d:%d], s64 offen" % (S_SRDB, S_SRDB + 3))
        c.once = (c.T - 2 - 7, lambda a: a("buffer_load_dword v252, v250, s[%d:%d], s65 offen" % (S_SRDB, S_SRDB + 3)))
    compute_loop(a, c, L, tm, vA)
    stamp(a, 2)
    def acc(i, j): return c.acc0 + (i * 4 + j) * 4
    make_srd(a, 40, 34, 8 * MB, off=WS_P4)
    make_srd(a, 64, 34, 131072, off=WS_CNT)
    a("s_lshl_b32 s46, s17, 3"); a("s_add_u32 s46, s46, s18"); a("s_lshl_b32 s46, s46, 1")
    a("s_xor_b32 s47, s30, 1"); a("s_add_u32 s47, s47, s46")
    a("s_add_u32 s46, s46, s30")
    a("s_lshl_b32 s60, s47, 2"); a("s_add_u32 s60, s60, s%d" % S_WAVE); a("s_lshl_b32 s60, s60, 13")
    a("s_lshl_b32 s61, s46, 2"); a("s_add_u32 s61, s61, s%d" % S_WAVE); a("s_lshl_b32 s61, s61, 13")
    a("v_lshlrev_b32 v11, 4, v1"); a("v_add_u32 v13, s61, v11"); a("v_add_u32 v11, s60, v11")
    a("s_add_u32 s47, s47, 128"); a("s_lshl_b32 s47, s47, 8"); a("s_add_u32 s46, s46, 128"); a("s_lshl_b32 s46, s46, 8")
    a("s_cmp_eq_u32 s30, 0"); a("s_cbranch_scc0 K4_kh1")
    def send_keep(sendj, keepj):
        n = 0
        for i in range(4):
            for jj in range(2):
                b = acc(i, sendj + jj)
                if n == 4: a("v_add_u32 v11, 4096, v11")
                a("buffer_store_dwordx4 v[%d:%d], v11, s[40:43], 0 offen offset:%d sc1" % (b, b + 3, (n & 3) * 1024))
                n += 1
        for i in range(4):
            for jj in range(2):
                b = acc(i, keepj + jj)
                for h in range(2): a("v_mov_b32 v%d, v%d" % (16 + i * 8 + jj * 4 + 2 * h, b + 2 * h)); a("v_mov_b32 v%d, v%d" % (17 + i * 8 + jj * 4 + 2 * h, b + 2 * h + 1))
    send_keep(2, 0)
    a("s_branch K4_sent")
    a.label("K4_kh1")
    send_keep(0, 2)
    a.label("K4_sent")
    a("s_waitcnt vmcnt(8)")
    for j in range(2):
        for h in range(2):
            a("v_lshlrev_b32 v%d, 16, v%d" % (212 + j * 4 + 2 * h, 208 + j * 2 + h)); a("v_and_b32 v%d, 0xffff0000, v%d" % (213 + j * 4 + 2 * h, 208 + j * 2 + h))
    for i in range(4):
        for q in range(4):
            a("v_lshlrev_b32 v%d, 16, v%d" % (48 + i * 8 + 2 * q, 192 + i * 4 + q)); a("v_and_b32 v%d, 0xffff0000, v%d" % (49 + i * 8 + 2 * q, 192 + i * 4 + q))
    for i in range(4):
        for q in range(4): a(pk("v_pk_add_f32", 16 + i * 8 + 2 * q, 16 + i * 8 + 2 * q, 212 + 2 * q))
    for i in range(4):
        for q in range(4): a(pk("v_pk_add_f32", 16 + i * 8 + 2 * q, 16 + i * 8 + 2 * q, 48 + i * 8 + 2 * q))
    a("s_waitcnt vmcnt(0)")
    a("s_barrier")
    a("s_cmp_lg_u32 s%d, 0" % S_WAVE); a("s_cbranch_scc1 K4_nopoll")
    signal(a, "K4_s", 64, 47, 80)
    spin_wait(a, "K4_p", 64, 46, 1, 80)
    a.label("K4_nopoll")
    a("s_barrier")
    if STAMP['on']:
        a("s_memrealtime s[98:99]"); a("s_waitcnt lgkmcnt(0)")
    for n in range(8):
        if n == 4: a("v_add_u32 v13, 4096, v13")
        a("buffer_load_dwordx4 v[%d:%d], v13, s[40:43], 0 offen offset:%d %s" % (48 + n * 4, 51 + n * 4, (n & 3) * 1024, OPT.get('xldf', 'sc1')))
    a("s_mov_b32 s45, 0")
    for i in range(4):
        a("s_waitcnt vmcnt(%d)" % (6 - i))
        for q in range(4): a(pk("v_pk_add_f32", 16 + i * 8 + 2 * q, 16 + i * 8 + 2 * q, 48 + i * 8 + 2 * q))
        d = 112 + i * 4
        for q in range(4): a("v_cvt_pk_bf16_f32 v%d, v%d, v%d" % (d + q, 16 + i * 8 + 2 * q, 17 + i * 8 + 2 * q))
        a("v_permlane16_swap_b32 v%d, v%d" % (d, d + 2)); a("v_permlane16_swap_b32 v%d, v%d" % (d + 1, d + 3))
        a("buffer_store_dwordx4 v[%d:%d], v9, s[52:55], s45 offen %s" % (d, d + 3, st_flags('out')))
        if i < 3: a("s_add_u32 s45, s45, %d" % (16 * 2048))
    stamp_flush(a, 5, 3)
    a("s_branch K4_end")
    a.label("K4_loader")
    Ld = loader_setup(a, c, 44, ["s45", "s48"])
    loader_loop(a, c, Ld, L)
    a.label("K4_end")
    a("s_endpgm")
    a.label("CODE_END")
    return name, dict(grid=256, block=512, lds=c.lds, vgprs=256)

def build(opt):
    OPT.clear(); OPT.update(opt)
    STAMP['on'] = opt.get('stamp', False)
    hdr = open("cdna_kernels/%s.s.ref" % NAME).read().split("; Override launch")[0]
    kernels = []
    body = []
    for g in (gen_k0, gen_k1, gen_k3, gen_k4):
        a = Asm()
        name, info = g(a)
        lines, n = hazard.fix(a.lines)
        body.append("\n".join(lines) + "\n")
        kernels.append((name, info))
    order = opt.get('order', [k for k, _ in kernels])
    info = dict(kernels)
    txt = hdr
    for k in order:
        i = info[k]
        txt += "; @launch kernel=%s grid=(%d,1,1) block=(%d,1,1) lds=%d\n" % (k, i['grid'], i['block'], i['lds'])
    txt += '.amdgcn_target "amdgcn-amd-amdhsa--gfx950"\n.text\n' + "".join(body)
    txt += '.section .rodata,"a"\n'
    for k, i in kernels:
        txt += ".p2align 6\n" + kernel_desc(k, i['vgprs'])
    return txt

if __name__ == "__main__":
    opt = json.loads(sys.argv[2]) if len(sys.argv) > 2 else {}
    open(sys.argv[1], "w").write(build(opt))
```

```python
from asmlib import *

S_SRDA = 4; S_SRDB = 8; S_WAVE = 16; S_CNT = 19; S_STG = 20; S_KA = 21; S_KB = 22; S_T0 = 23; S_T1 = 24; S_T2 = 25; S_RD = 26; S_NEG = 27; S_POS = 28
MF = "v_mfma_f32_16x16x32_bf16"

class Cfg:
    def __init__(self, **kw):
        self.WM = 2; self.WN = 2; self.MT = 4; self.NT = 6
        self.K = 1024; self.NS = 3; self.nblk = 3; self.ldb = 6144
        self.swap_tiles = set(); self.acc0 = 112; self.frag0 = 16
        self.aflags = ""; self.bflags = ""
        self.after_b0 = None
        self.__dict__.update(kw)
        self.BM = self.WM * self.MT * 16
        self.T = self.K // 64
        self.A_bytes = self.BM * 128
        self.blk_off = [self.A_bytes + 8192 * b for b in range(self.nblk)]
        self.stage = self.A_bytes + 8192 * self.nblk
        self.lds = self.stage * self.NS

def loader_setup(a, c, s_mtbase, blk_col_sgprs, vbase=2):
    nmt = c.BM // 16
    per = nmt // 4
    va = []
    v = vbase
    a("s_sub_u32 s%d, s%d, 4" % (S_T0, S_WAVE))
    a("v_lshlrev_b32 v%d, 4, v1" % v)
    lane16 = v; v += 1
    a("s_mul_i32 s%d, s%d, %d" % (S_T1, S_T0, per))
    a("s_add_u32 s%d, s%d, s%d" % (S_T1, S_T1, s_mtbase))
    KS = getattr(c, 'Kstride', c.K)
    a("s_mul_i32 s%d, s%d, %d" % (S_T1, S_T1, KS // 32 * 1024))
    for i in range(per):
        a("v_add_u32 v%d, s%d, v%d" % (v, S_T1, lane16))
        if i < per - 1: a("s_add_u32 s%d, s%d, %d" % (S_T1, S_T1, KS // 32 * 1024))
        va.append(v); v += 1
    tmp = v; v += 1
    tmp2 = v; v += 1
    patf = v; v += 1
    a("s_mov_b32 s%d, %d" % (S_T1, c.ldb))
    a("v_lshrrev_b32 v%d, 3, v1" % tmp)
    a("v_mul_lo_u32 v%d, v%d, s%d" % (patf, tmp, S_T1))
    a("v_bfe_u32 v%d, v1, 4, 2" % tmp); a("v_lshlrev_b32 v%d, 1, v%d" % (tmp, tmp))
    a("v_and_b32 v%d, 7, v1" % tmp2)
    a("v_xor_b32 v%d, v%d, v%d" % (tmp, tmp, tmp2))
    a("v_lshl_add_u32 v%d, v%d, 4, v%d" % (patf, tmp, patf))
    a("s_mul_i32 s%d, s%d, %d" % (S_T2, S_T0, 16 * c.ldb))
    vb = []
    for bi in range(c.nblk):
        a("s_add_u32 s%d, s%d, %s" % (S_T1, S_T2, blk_col_sgprs[bi]))
        a("v_add_u32 v%d, s%d, v%d" % (v, S_T1, patf))
        a("v_add_u32 v%d, %d, v%d" % (v + 1, 8 * c.ldb - 1024, v))
        vb.append([v, v + 1]); v += 2
    a("s_mul_i32 s27, s%d, %d" % (S_T0, per * 2048))
    a("s_lshl_b32 s28, s%d, 11" % S_T0)
    ndma = per * 2 + 2 * c.nblk
    return dict(va=va, vb=vb, ndma=ndma, per=per, vnext=v)

def loader_issue(a, c, L, part='AB'):
    if 'A' in part:
        for i, v in enumerate(L['va']):
            if i == 0:
                a("s_add_u32 m0, s%d, s27" % S_STG)
            else:
                a("s_add_u32 m0, m0, 2048")
            for s in range(2):
                a("buffer_load_dwordx4 v%d, s[%d:%d], s%d offen offset:%d %s lds" % (v, S_SRDA, S_SRDA + 3, S_KA, s * 1024, c.aflags))
    if 'B' in part:
        a("s_add_u32 s%d, s%d, s28" % (S_T1, S_STG))
        for bi in range(c.nblk):
            a("s_add_u32 m0, s%d, %d" % (S_T1, c.blk_off[bi]))
            for e, v in enumerate(L['vb'][bi]):
                a("buffer_load_dwordx4 v%d, s[%d:%d], s%d offen offset:%d %s lds" % (v, S_SRDB, S_SRDB + 3, S_KB, e * 1024, c.bflags))

def loader_advance(a, c):
    a("s_add_u32 s%d, s%d, 2048" % (S_KA, S_KA))
    a("s_add_u32 s%d, s%d, %d" % (S_KB, S_KB, 64 * c.ldb))
    a("s_add_u32 s%d, s%d, %d" % (S_STG, S_STG, c.stage))
    a("s_cmp_eq_u32 s%d, %d" % (S_STG, c.stage * c.NS))
    a("s_cselect_b32 s%d, 0, s%d" % (S_STG, S_STG))

def loader_loop(a, c, L, lbl, tail_loads=None, n_tail=0, after_ramp=None, hooks=None):
    nd = L['ndma']; NS = c.NS; T = c.T
    pre = NS - 1
    a("s_mov_b32 s%d, 0" % S_STG)
    a("s_mov_b32 s%d, %s" % (S_KA, getattr(c, 'ka0', '0'))); a("s_mov_b32 s%d, %s" % (S_KB, getattr(c, 'kb0', '0')))
    p0 = min(2, pre)
    gate = getattr(c, 'gate', None)
    if gate:
        assert p0 == 2
        na = L['per'] * 2
        loader_issue(a, c, L, 'B')
        a("s_mov_b32 s%d, %d" % (S_STG, c.stage)); a("s_add_u32 s%d, s%d, %d" % (S_KB, S_KB, 64 * c.ldb))
        loader_issue(a, c, L, 'B')
        a("s_add_u32 s%d, s%d, %d" % (S_KB, S_KB, 64 * c.ldb))
        gate(a)
        a("s_mov_b32 s%d, 0" % S_STG)
        loader_issue(a, c, L, 'A')
        a("s_mov_b32 s%d, %d" % (S_STG, c.stage)); a("s_add_u32 s%d, s%d, 2048" % (S_KA, S_KA))
        loader_issue(a, c, L, 'A')
        a("s_add_u32 s%d, s%d, 2048" % (S_KA, S_KA))
        a("s_mov_b32 s%d, %d" % (S_STG, (2 * c.stage) % (c.stage * c.NS)))
        a("s_waitcnt vmcnt(%d)" % na)
    else:
        for p in range(p0):
            loader_issue(a, c, L); loader_advance(a, c)
        a("s_waitcnt vmcnt(%d)" % (nd * (p0 - 1)))
    a("s_barrier")
    for p in range(p0, NS):
        loader_issue(a, c, L); loader_advance(a, c)
    if after_ramp: after_ramp(a)
    n_loop = T - pre - 1
    a("s_mov_b32 s%d, %d" % (S_CNT, n_loop))
    a.label(lbl + "_lloop")
    a("s_waitcnt vmcnt(%d)" % (nd * (pre - 1)))
    a("s_barrier")
    loader_issue(a, c, L); loader_advance(a, c)
    hooks = hooks or {}
    for t in sorted(hooks):
        a("s_cmp_eq_u32 s%d, %d" % (S_CNT, n_loop - (t - 1))); a("s_cbranch_scc1 %s_hook%d" % (lbl, t))
    a.label(lbl + "_hookret")
    a("s_sub_u32 s%d, s%d, 1" % (S_CNT, S_CNT))
    a("s_cmp_lg_u32 s%d, 0" % S_CNT)
    a("s_cbranch_scc1 %s_lloop" % lbl)
    if hooks:
        a("s_branch %s_lafter" % lbl)
        for t in sorted(hooks):
            a.label("%s_hook%d" % (lbl, t))
            hooks[t](a)
            a("s_branch %s_hookret" % lbl)
        a.label(lbl + "_lafter")
    if tail_loads: tail_loads(a)
    for r in range(pre):
        n = nd * (pre - 1 - r) + n_tail
        assert n <= 63
        a("s_waitcnt vmcnt(%d)" % n)
        a("s_barrier")

def compute_setup(a, c, vA, vB, tmp):
    a("s_lshr_b32 s38, s%d, 1" % S_WAVE); a("s_and_b32 s39, s%d, 1" % S_WAVE)
    a("s_mul_i32 s%d, s38, %d" % (S_T2, c.MT * 2048))
    a("v_lshlrev_b32 v%d, 4, v1" % vA)
    a("v_add_u32 v%d, s%d, v%d" % (vA, S_T2, vA))
    tr_pattern(a, vB[0], tmp)

def tr_pattern(a, dst, tmp):
    t0, t1 = tmp, tmp + 1
    a("v_bfe_u32 v%d, v1, 1, 1" % t0)
    a("v_bfe_u32 v%d, v1, 3, 2" % t1)
    a("v_lshlrev_b32 v%d, 1, v%d" % (t1, t1))
    a("v_xor_b32 v%d, v%d, v%d" % (t0, t0, t1))
    a("v_lshrrev_b32 v%d, 2, v1" % t1)
    a("v_lshlrev_b32 v%d, 7, v%d" % (dst, t1))
    a("v_lshl_add_u32 v%d, v%d, 4, v%d" % (dst, t0, dst))
    a("v_and_b32 v%d, 1, v1" % t1)
    a("v_lshl_add_u32 v%d, v%d, 3, v%d" % (dst, t1, dst))

def compute_loop(a, c, lbl, tilemap, vA):
    MT, NT = c.MT, c.NT
    fs = (MT + NT) * 4
    P = c.frag0; Q = c.frag0 + fs
    assert c.frag0 + 2 * fs <= c.acc0
    def act(setb, i): return setb + i * 4
    def wt(setb, j): return setb + MT * 4 + j * 4
    def accr(i, j): return c.acc0 + (i * NT + j) * 4
    sch = LgkmSched(a)
    addr_regs = sorted(set([vA] + [t[0] for t in tilemap]))
    def reads(setb, s):
        out = []
        order = [('a', 0), ('w', 0)] + [('a', i) for i in range(1, MT)] + [('w', j) for j in range(1, NT)]
        for kind, j in order:
            if kind == 'a':
                out.append(("ds_read_b128 %s, v%d offset:%d" % (vr(act(setb, j), 4), vA, (j * 2 + s) * 1024), (setb, 'a', j)))
            else:
                reg, imm = tilemap[j]
                for jj in range(2):
                    out.append(("ds_read_b64_tr_b16 %s, v%d offset:%d" % (vr(wt(setb, j) + jj * 2, 2), reg, imm + s * 4096 + jj * 2048), (setb, 'w', j)))
        return out
    ms = [(i, j) for j in range(NT) for i in range(MT)]
    def advance():
        a("s_add_u32 s%d, s%d, %d" % (S_RD, S_RD, c.stage))
        a("s_cmp_eq_u32 s%d, %d" % (S_RD, c.stage * c.NS))
        a("s_cselect_b32 s%d, s%d, s%d" % (S_T0, S_NEG, S_POS))
        a("s_cselect_b32 s%d, 0, s%d" % (S_RD, S_RD))
        for r in addr_regs:
            a("v_add_u32 v%d, s%d, v%d" % (r, S_T0, r))
    T_ = getattr(c, 'touch', None)
    def do_touch():
        if not T_: return
        a("buffer_load_dword v%d, v%d, s[%d:%d], s%d offen" % (T_['dst'], T_['vA'], S_SRDA, S_SRDA + 3, T_['sA']))
        a("s_add_u32 s%d, s%d, 2048" % (T_['sA'], T_['sA']))
        a("buffer_load_dword v%d, v%d, s[%d:%d], s%d offen" % (T_['dst'] + 1, T_['vB'], S_SRDB, S_SRDB + 3, T_['sB']))
        a("s_add_u32 s%d, s%d, %d" % (T_['sB'], T_['sB'], 64 * c.ldb))
    def group(setc, setn, s_next, pre_barrier=False, noreads=False, post=None, first=False, touch=False):
        rd = [] if noreads else reads(setn, s_next)
        if pre_barrier:
            sch.drain()
            a("s_barrier")
        ri = 0
        nm = len(ms)
        for k, (i, j) in enumerate(ms):
            sch.need({(setc, 'a', i), (setc, 'w', j)})
            A_, B_ = wt(setc, j), act(setc, i)
            if j in c.swap_tiles: A_, B_ = B_, A_
            cin = "0" if first else vr(accr(i, j), 4)
            a("%s %s, %s, %s, %s" % (MF, vr(accr(i, j), 4), vr(A_, 4), vr(B_, 4), cin))
            if ri < len(rd):
                sch.issue(*rd[ri]); ri += 1
                if ri == len(rd) and post: post(); post = None
            if touch and k == nm - 2: do_touch()
        while ri < len(rd):
            sch.issue(*rd[ri]); ri += 1
        if post: post()
    a("s_mov_b32 s%d, 0" % S_RD)
    a("s_mov_b32 s%d, 0x%x" % (S_NEG, -(c.stage * (c.NS - 1)) & 0xffffffff))
    a("s_mov_b32 s%d, %d" % (S_POS, c.stage))
    a("s_mov_b32 s%d, %d" % (S_CNT, c.T - 2))
    a("s_barrier")
    for t in reads(P, 0): sch.issue(*t)
    if c.after_b0: c.after_b0(a)
    q0 = list(sch.q)
    group(P, Q, 1, post=advance, first=True, touch=True)
    group(Q, P, 0, pre_barrier=True)
    assert sch.q == q0
    def cnt():
        advance()
    a.label(lbl + "_cloop")
    once = getattr(c, 'once', None)
    if once:
        for n_, (when, fn) in enumerate(once if isinstance(once, list) else [once]):
            a("s_cmp_lg_u32 s%d, %s" % (S_CNT, when)); a("s_cbranch_scc1 %s_noonce%d" % (lbl, n_))
            fn(a)
            a.label("%s_noonce%d" % (lbl, n_))
    group(P, Q, 1, post=advance, touch=True)
    a("s_sub_u32 s%d, s%d, 1" % (S_CNT, S_CNT))
    group(Q, P, 0, pre_barrier=True)
    assert sch.q == q0
    a("s_cmp_lg_u32 s%d, 0" % S_CNT)
    a("s_cbranch_scc1 %s_cloop" % lbl)
    group(P, Q, 1)
    group(Q, P, 0, noreads=True)


def touch_setup(a, c, nA, nB, s_idxA, s_idxB, s_mtbase, s_col0, blkstride, vA, vB, tmp, sA, sB, dst, LA):
    LW = 32 // nA; RW = 16 // nB
    a("s_mul_i32 s%d, s%d, %d" % (S_T0, s_idxA, 128 // nA)); a("s_mul_i32 s%d, s%d, %d" % (S_T1, S_WAVE, LW)); a("s_add_u32 s%d, s%d, s%d" % (S_T0, S_T0, S_T1))
    a("v_add_u32 v%d, s%d, v1" % (tmp, S_T0))
    a("v_lshrrev_b32 v%d, 4, v%d" % (tmp + 1, tmp)); a("v_add_u32 v%d, s%d, v%d" % (tmp + 1, s_mtbase, tmp + 1))
    a("s_mov_b32 s%d, %d" % (S_T1, c.K // 32 * 1024)); a("v_mul_lo_u32 v%d, v%d, s%d" % (vA, tmp + 1, S_T1))
    a("v_and_b32 v%d, 15, v%d" % (tmp, tmp)); a("v_lshl_add_u32 v%d, v%d, 7, v%d" % (vA, tmp, vA))
    a("v_mov_b32 v%d, 0x7ff00000" % (tmp + 1))
    a("v_cmp_gt_u32 vcc, %d, v1" % LW); a("v_cndmask_b32 v%d, v%d, v%d, vcc" % (vA, tmp + 1, vA))
    sh = RW.bit_length() - 1
    a("s_mul_i32 s%d, s%d, %d" % (S_T0, s_idxB, 64 // nB)); a("s_mul_i32 s%d, s%d, %d" % (S_T1, S_WAVE, RW)); a("s_add_u32 s%d, s%d, s%d" % (S_T0, S_T0, S_T1))
    a("v_and_b32 v%d, %d, v1" % (tmp, RW - 1)); a("v_add_u32 v%d, s%d, v%d" % (tmp, S_T0, tmp))
    a("s_mov_b32 s%d, %d" % (S_T1, c.ldb)); a("v_mul_lo_u32 v%d, v%d, s%d" % (vB, tmp, S_T1))
    a("v_lshrrev_b32 v%d, %d, v1" % (tmp, sh)); a("s_mov_b32 s%d, %d" % (S_T1, blkstride)); a("v_mul_lo_u32 v%d, v%d, s%d" % (tmp, tmp, S_T1))
    a("v_add_u32 v%d, v%d, v%d" % (vB, vB, tmp)); a("v_add_u32 v%d, s%d, v%d" % (vB, s_col0, vB))
    a("v_cmp_gt_u32 vcc, %d, v1" % (RW * c.nblk)); a("v_cndmask_b32 v%d, v%d, v%d, vcc" % (vB, tmp + 1, vB))
    a("s_mov_b32 s%d, %d" % (sA, c.NS * 2048)); a("s_mov_b32 s%d, %d" % (sB, c.NS * 64 * c.ldb))
    for t in range(c.NS, LA):
        a("buffer_load_dword v%d, v%d, s[%d:%d], s%d offen" % (dst, vA, S_SRDA, S_SRDA + 3, sA))
        a("s_add_u32 s%d, s%d, 2048" % (sA, sA))
        a("buffer_load_dword v%d, v%d, s[%d:%d], s%d offen" % (dst + 1, vB, S_SRDB, S_SRDB + 3, sB))
        a("s_add_u32 s%d, s%d, %d" % (sB, sB, 64 * c.ldb))
    c.touch = dict(vA=vA, vB=vB, sA=sA, sB=sB, dst=dst)


def compute_loop_full(a, c, lbl, tilemap, vA):
    MT, NT = c.MT, c.NT
    fs1 = (MT + NT) * 4
    fs = 2 * fs1
    P = c.frag0; Q = c.frag0 + fs
    assert c.frag0 + 2 * fs <= c.acc0
    def act(setb, s, i): return setb + s * fs1 + i * 4
    def wt(setb, s, j): return setb + s * fs1 + MT * 4 + j * 4
    def accr(i, j): return c.acc0 + (i * NT + j) * 4
    sch = LgkmSched(a)
    addr_regs = sorted(set([vA] + [t[0] for t in tilemap]))
    def reads(setb):
        out = []
        for s in range(2):
            order = [('a', 0), ('w', 0)] + [('a', i) for i in range(1, MT)] + [('w', j) for j in range(1, NT)]
            for kind, j in order:
                if kind == 'a':
                    out.append(("ds_read_b128 %s, v%d offset:%d" % (vr(act(setb, s, j), 4), vA, (j * 2 + s) * 1024), (setb, s, 'a', j)))
                else:
                    reg, imm = tilemap[j]
                    for jj in range(2):
                        out.append(("ds_read_b64_tr_b16 %s, v%d offset:%d" % (vr(wt(setb, s, j) + jj * 2, 2), reg, imm + s * 4096 + jj * 2048), (setb, s, 'w', j)))
        return out
    ms = [(s, i, j) for s in range(2) for j in range(NT) for i in range(MT)]
    def advance():
        a("s_add_u32 s%d, s%d, %d" % (S_RD, S_RD, c.stage))
        a("s_cmp_eq_u32 s%d, %d" % (S_RD, c.stage * c.NS))
        a("s_cselect_b32 s%d, s%d, s%d" % (S_T0, S_NEG, S_POS))
        a("s_cselect_b32 s%d, 0, s%d" % (S_RD, S_RD))
        for r in addr_regs:
            a("v_add_u32 v%d, s%d, v%d" % (r, S_T0, r))
    def step(setc, setn, barrier=True, noreads=False, first=False):
        rd = [] if noreads else reads(setn)
        if barrier:
            sch.drain()
            a("s_barrier")
        ri = 0
        for k, (s, i, j) in enumerate(ms):
            sch.need({(setc, s, 'a', i), (setc, s, 'w', j)})
            A_, B_ = wt(setc, s, j), act(setc, s, i)
            if j in c.swap_tiles: A_, B_ = B_, A_
            cin = "0" if (first and s == 0) else vr(accr(i, j), 4)
            a("%s %s, %s, %s, %s" % (MF, vr(accr(i, j), 4), vr(A_, 4), vr(B_, 4), cin))
            if ri < len(rd):
                sch.issue(*rd[ri]); ri += 1
        while ri < len(rd):
            sch.issue(*rd[ri]); ri += 1
        if not noreads: advance()
    a("s_mov_b32 s%d, 0" % S_RD)
    a("s_mov_b32 s%d, 0x%x" % (S_NEG, -(c.stage * (c.NS - 1)) & 0xffffffff))
    a("s_mov_b32 s%d, %d" % (S_POS, c.stage))
    assert c.T % 2 == 0
    a("s_mov_b32 s%d, %d" % (S_CNT, (c.T - 2) // 2))
    a("s_barrier")
    for t in reads(P): sch.issue(*t)
    advance()
    if c.after_b0: c.after_b0(a)
    step(P, Q, first=True)
    a.label(lbl + "_cloop")
    step(Q, P)
    a("s_sub_u32 s%d, s%d, 1" % (S_CNT, S_CNT))
    step(P, Q)
    a("s_cmp_lg_u32 s%d, 0" % S_CNT)
    a("s_cbranch_scc1 %s_cloop" % lbl)
    step(Q, P, barrier=False, noreads=True)
```

```python
import sys, json
from asmlib import *
from core3 import *
import hazard

NAME = "sequential_preLN__linear_kernel_hedgehog__dense_activation_squared_relu__prompt"
MB = 1 << 20
WS_XN = 0
WS_PHIQ = 4 * MB
WS_KVP = 12 * MB
KVP_STRIDE = 4352
WS_O = 20 * MB
WS_H = 24 * MB
WS_STATS = 28 * MB
WS_CS1 = 29 * MB
WS_CNT = 30 * MB
WS_CSP = 31 * MB
WS_H1 = 32 * MB
WS_P4 = 48 * MB
WS_STAMP = 200 * MB
LOG2E = 0x3fb8aa3b
OPT = {}
STAMP = {'on': False}

def ld_ptr(a, s, key):
    a("s_load_dwordx2 s[%d:%d], s[0:1], %d" % (s, s + 1, KERNARG[key]))

def wave_lane(a):
    a("v_and_b32 v1, 63, v0")
    a("v_lshrrev_b32 v2, 6, v0")
    a("s_nop 0")
    a("v_readfirstlane_b32 s%d, v2" % S_WAVE)

def bf16_round(a, dst, src):
    a("v_cvt_pk_bf16_f32 v%d, v%d, v%d" % (dst, src, src))
    a("v_lshlrev_b32 v%d, 16, v%d" % (dst, dst))

def stamp(a, idx):
    if STAMP['on']:
        a("s_memrealtime s[%d:%d]" % (80 + 2 * idx, 81 + 2 * idx)); a("s_waitcnt lgkmcnt(0)")
def stamp_flush(a, kid, n, wave=0):
    if not STAMP['on']: return
    lbl = "ST_skip_%d_%d" % (kid, len(a.lines))
    stamp(a, n)
    a("s_waitcnt vmcnt(0)")
    n += 1
    stamp(a, n)
    a("s_cmp_lg_u32 s%d, %d" % (S_WAVE, wave)); a("s_cbranch_scc1 %s" % lbl)
    a("s_load_dwordx2 s[70:71], s[0:1], %d" % KERNARG['ws']); a("s_waitcnt lgkmcnt(0)")
    make_srd(a, 72, 70, 1 * MB, off=WS_STAMP)
    a("s_add_u32 s76, s2, %d" % (kid * 512)); a("s_lshl_b32 s76, s76, 5")
    a("s_mov_b64 exec, 1")
    a("v_mov_b32 v5, s76")
    for i in range(n + 1):
        a("v_mov_b32 v4, s%d" % (80 + 2 * i))
        a("buffer_store_dword v4, v5, s[72:75], 0 offen offset:%d" % (i * 4))
        a("s_nop 1")
    a("s_mov_b64 exec, -1")
    a.label(lbl)

def pk(op, d, s0, s1, s2=None, mods=""):
    ops = [d, s0, s1] + ([s2] if s2 is not None else [])
    def f(x): return x if isinstance(x, str) else "v[%d:%d]" % (x, x + 1)
    return "%s %s %s" % (op, ", ".join(f(x) for x in ops), mods)

def touch(a, vdst, vaddr, srd, soff="0"):
    a("buffer_load_dword v%d, v%d, s[%d:%d], %s offen" % (vdst, vaddr, srd, srd + 3, soff))

def st_flags(key):
    return OPT.get('st_' + key, OPT.get('st', ''))

def allreduce4(a, op, r, t):
    a("v_permlane32_swap_b32 v%d, v%d" % (r[0], r[1])); a("v_permlane32_swap_b32 v%d, v%d" % (r[2], r[3]))
    a("%s v%d, v%d, v%d" % (op, r[0], r[0], r[1])); a("%s v%d, v%d, v%d" % (op, r[2], r[2], r[3]))
    a("v_permlane16_swap_b32 v%d, v%d" % (r[0], r[2]))
    a("%s v%d, v%d, v%d" % (op, r[0], r[0], r[2]))
    a("v_mov_b32 v%d, v%d" % (r[2], r[0]))
    a("v_permlane16_swap_b32 v%d, v%d" % (r[0], r[2]))
    a("v_mov_b32 v%d, v%d" % (r[1], r[0])); a("v_mov_b32 v%d, v%d" % (r[3], r[2]))
    a("v_permlane32_swap_b32 v%d, v%d" % (r[0], r[1])); a("v_permlane32_swap_b32 v%d, v%d" % (r[2], r[3]))

def gen_k0(a):
    name = "k0_kernel"
    kernel_header(a, name)
    a.label("CODE_BEGIN")
    a("s_cmp_ge_u32 s2, 256"); a("s_cbranch_scc1 K0_end")
    stamp(a, 0)
    ld_ptr(a, 30, 'x'); ld_ptr(a, 34, 'ws'); ld_ptr(a, 32, 'wqkv'); ld_ptr(a, 36, 'wo'); ld_ptr(a, 38, 'w1')
    wave_lane(a)
    a("v_and_b32 v2, 7, v0"); a("v_lshrrev_b32 v3, 3, v0")
    a("s_lshl_b32 s20, s2, 3"); a("v_add_u32 v4, s20, v2"); a("v_lshlrev_b32 v4, 11, v4"); a("v_lshl_add_u32 v4, v3, 6, v4")
    a("s_waitcnt lgkmcnt(0)")
    make_srd(a, 4, 30, 2048 * 1024 * 2)
    for i in range(4):
        a("buffer_load_dwordx4 v[%d:%d], v4, s[4:7], 0 offen offset:%d" % (16 + 4 * i, 19 + 4 * i, i * 16))
    a("s_lshl_b32 s21, s2, 2"); a("s_add_u32 s21, s21, s%d" % S_WAVE); a("s_lshl_b32 s21, s21, 13")
    a("v_lshlrev_b32 v5, 7, v1")
    make_srd(a, 12, 32, 1024 * 3072 * 2)
    touch(a, 10, 5, 12, "s21")
    if OPT.get('slowpf', 1):
        make_srd(a, 12, 32, 1024 * 3072 * 2)
        a("s_and_b32 s22, s2, 7"); a("s_lshr_b32 s23, s2, 3")
        a("s_and_b32 s26, s22, 2"); a("s_cmp_eq_u32 s26, 0"); a("s_cselect_b32 s26, 0, 0x1000000")
        a("s_lshr_b32 s22, s22, 2"); a("s_lshl_b32 s22, s22, 10"); a("s_add_u32 s22, s22, 384")
        a("s_mul_i32 s23, s23, %d" % (32 * 6144)); a("s_add_u32 s22, s22, s23"); a("s_add_u32 s22, s22, s26")
        a("s_cmp_ge_u32 s%d, 2" % S_WAVE); a("s_cselect_b32 s26, 0x1000000, 0"); a("s_add_u32 s22, s22, s26")
        a("s_lshl_b32 s26, s%d, 12" % S_WAVE); a("s_add_u32 s22, s22, s26")
        a("v_and_b32 v6, 31, v1"); a("s_mov_b32 s26, 6144"); a("v_mul_lo_u32 v6, v6, s26"); a("v_lshrrev_b32 v7, 5, v1"); a("v_lshl_add_u32 v6, v7, 11, v6")
        touch(a, 36, 6, 12, "s22")
    if OPT.get('tlb', 0):
        make_srd(a, 12, 34, 64 * MB)
        a("v_lshlrev_b32 v6, 21, v1"); a("v_add_u32 v6, 0x1ff80, v6")
        a("buffer_load_dword v37, v6, s[12:15], 0 offen")
        a("s_load_dwordx2 s[42:43], s[0:1], %d" % KERNARG['w2']); a("s_load_dwordx2 s[44:45], s[0:1], %d" % KERNARG['out']); a("s_waitcnt lgkmcnt(0)")
        a("v_lshlrev_b32 v6, 21, v1")
        make_srd(a, 12, 38, 1024 * 3584 * 2); a("buffer_load_dword v38, v6, s[12:15], 0 offen")
        make_srd(a, 12, 42, 1024 * 3584 * 2); a("buffer_load_dword v39, v6, s[12:15], 0 offen")
        make_srd(a, 12, 44, 2048 * 1024 * 2); a("buffer_load_dword v56, v6, s[12:15], 0 offen")
        make_srd(a, 12, 36, 1024 * 1024 * 2); a("buffer_load_dword v57, v6, s[12:15], 0 offen")
    a("s_getpc_b64 s[24:25]")
    a.label("K0_pc")
    a("s_sub_u32 s24, s24, K0_pc-CODE_BEGIN"); a("s_subb_u32 s25, s25, 0")
    a("s_mov_b32 s26, CODE_END-CODE_BEGIN"); a("s_mov_b32 s27, 0x20000")
    a("s_lshr_b32 s21, s2, 3"); a("s_and_b32 s21, s21, 15"); a("s_lshl_b32 s21, s21, 13")
    touch(a, 11, 5, 24, "s21")
    make_srd(a, 8, 34, 4 * MB, off=WS_XN)
    a("s_waitcnt vmcnt(%d)" % ((3 if OPT.get('slowpf', 1) else 2) + (5 if OPT.get('tlb', 0) else 0)))
    for i in range(16):
        a("v_lshlrev_b32 v%d, 16, v%d" % (64 + 2 * i, 16 + i))
        a("v_and_b32 v%d, 0xffff0000, v%d" % (65 + 2 * i, 16 + i))
    def rowsum(src_pairs, dst):
        pass
    for i in range(8): a(pk("v_pk_add_f32", 40 + 2 * i, 64 + 2 * i, 80 + 2 * i))
    for i in range(4): a(pk("v_pk_add_f32", 40 + 2 * i, 40 + 2 * i, 48 + 2 * i))
    for i in range(2): a(pk("v_pk_add_f32", 40 + 2 * i, 40 + 2 * i, 44 + 2 * i))
    a(pk("v_pk_add_f32", 40, 40, 42)); a("v_add_f32 v6, v40, v41")
    def xl(r, t):
        a("v_add_f32_dpp v%d, v%d, v%d row_ror:8 row_mask:0xf bank_mask:0xf" % (r, r, r))
        a("v_mov_b32 v%d, v%d" % (t, r)); a("v_permlane16_swap_b32 v%d, v%d" % (r, t)); a("v_add_f32 v%d, v%d, v%d" % (r, r, t))
        a("v_mov_b32 v%d, v%d" % (t, r)); a("v_permlane32_swap_b32 v%d, v%d" % (r, t)); a("v_add_f32 v%d, v%d, v%d" % (r, r, t))
    xl(6, 7)
    a("v_lshlrev_b32 v8, 2, v2"); a("s_lshl_b32 s21, s%d, 5" % S_WAVE); a("v_add_u32 v9, s21, v8")
    a("ds_write_b32 v9, v6")
    a("s_waitcnt lgkmcnt(0)"); a("s_barrier")
    a("ds_read_b32 v12, v8"); a("ds_read_b32 v13, v8 offset:32"); a("ds_read_b32 v14, v8 offset:64"); a("ds_read_b32 v15, v8 offset:96")
    a("s_waitcnt lgkmcnt(0)")
    a("v_add_f32 v12, v12, v13"); a("v_add_f32 v14, v14, v15"); a("v_add_f32 v12, v12, v14")
    a("v_mul_f32 v12, 0x3a800000, v12")
    for i in range(16): a(pk("v_pk_add_f32", 96 + 2 * i, 64 + 2 * i, 12, mods="op_sel_hi:[1,0] neg_lo:[0,1] neg_hi:[0,1]"))
    for i in range(4): a(pk("v_pk_mul_f32", 40 + 2 * i, 96 + 2 * i, 96 + 2 * i))
    for i in range(4, 16): a(pk("v_pk_fma_f32", 40 + 2 * (i & 3), 96 + 2 * i, 96 + 2 * i, 40 + 2 * (i & 3)))
    a(pk("v_pk_add_f32", 40, 40, 42)); a(pk("v_pk_add_f32", 44, 44, 46)); a(pk("v_pk_add_f32", 40, 40, 44)); a("v_add_f32 v6, v40, v41")
    xl(6, 7)
    a("ds_write_b32 v9, v6 offset:128")
    a("s_waitcnt lgkmcnt(0)"); a("s_barrier")
    a("ds_read_b32 v13, v8 offset:128"); a("ds_read_b32 v14, v8 offset:160"); a("ds_read_b32 v15, v8 offset:192"); a("ds_read_b32 v6, v8 offset:224")
    a("s_waitcnt lgkmcnt(0)")
    a("v_add_f32 v13, v13, v14"); a("v_add_f32 v15, v15, v6"); a("v_add_f32 v13, v13, v15")
    a("v_mul_f32 v14, 0x3a800000, v13")
    bf16_round(a, 12, 12); bf16_round(a, 14, 14)
    a("v_add_f32 v14, 0x3727c5ac, v14"); bf16_round(a, 14, 14)
    a("v_sqrt_f32 v14, v14"); bf16_round(a, 14, 14)
    a("v_rcp_f32 v14, v14")
    for i in range(16):
        p = 64 + 2 * i
        a(pk("v_pk_add_f32", p, p, 12, mods="op_sel_hi:[1,0] neg_lo:[0,1] neg_hi:[0,1]"))
    for i in range(16):
        p = 64 + 2 * i
        a("v_cvt_pk_bf16_f32 v%d, v%d, v%d" % (96 + i, p, p + 1))
    for i in range(16):
        p = 64 + 2 * i
        a("v_lshlrev_b32 v%d, 16, v%d" % (p, 96 + i)); a("v_and_b32 v%d, 0xffff0000, v%d" % (p + 1, 96 + i))
    for i in range(16):
        p = 64 + 2 * i
        a(pk("v_pk_mul_f32", p, p, 14, mods="op_sel_hi:[1,0]"))
    for g in range(4):
        for q, dw in enumerate((2 * g, 2 * g + 1, 8 + 2 * g, 9 + 2 * g)):
            a("v_cvt_pk_bf16_f32 v%d, v%d, v%d" % (16 + 4 * g + q, 64 + 2 * dw, 65 + 2 * dw))
    a("s_lshr_b32 s20, s2, 1"); a("s_lshl_b32 s20, s20, 15"); a("s_and_b32 s21, s2, 1"); a("s_lshl_b32 s21, s21, 7"); a("s_add_u32 s20, s20, s21")
    a("v_lshlrev_b32 v4, 10, v3"); a("v_lshl_add_u32 v4, v2, 4, v4"); a("v_add_u32 v4, s20, v4")
    for g in range(4):
        a("buffer_store_dwordx4 v[%d:%d], v4, s[8:11], 0 offen offset:%d %s" % (16 + 4 * g, 19 + 4 * g, g * 256, st_flags('k0')))
    make_srd(a, 12, 34, 131072, off=WS_CNT)
    a("s_lshl_b32 s21, s2, 8"); a("v_lshlrev_b32 v34, 16, v0"); a("v_add_u32 v34, s21, v34"); a("v_mov_b32 v35, 0")
    a("v_cmp_gt_u32 vcc, 2, v0"); a("s_and_saveexec_b64 s[40:41], vcc"); a("s_cbranch_execz K0_nz")
    a("buffer_store_dword v35, v34, s[12:15], 0 offen sc1")
    a.label("K0_nz")
    a("s_mov_b64 exec, s[40:41]")
    stamp(a, 1); stamp(a, 2)
    stamp_flush(a, 0, 3)
    a.label("K0_end")
    a("s_endpgm")
    return name, dict(grid=256, block=256, lds=1024, vgprs=128)

def map_share(mode):
    return {'8x4': (4, 8), '4x8': (8, 4), '2x16': (16, 2)}[mode]
def tile_map(a, mode):
    a("s_and_b32 s40, s2, 7"); a("s_lshr_b32 s41, s2, 3")
    sh = {'8x4': 3, '4x8': 2, '2x16': 1}[mode]
    a("s_lshr_b32 s66, s41, %d" % sh); a("s_and_b32 s67, s41, %d" % ((1 << sh) - 1))
    if mode == '8x4':
        a("s_and_b32 s42, s40, 1"); a("s_lshl_b32 s42, s42, 3"); a("s_and_b32 s43, s41, 7"); a("s_add_u32 s17, s42, s43")
        a("s_lshr_b32 s42, s40, 1"); a("s_lshl_b32 s42, s42, 2"); a("s_lshr_b32 s43, s41, 3"); a("s_add_u32 s18, s42, s43")
    elif mode == '4x8':
        a("s_and_b32 s42, s40, 3"); a("s_lshl_b32 s42, s42, 2"); a("s_and_b32 s43, s41, 3"); a("s_add_u32 s17, s42, s43")
        a("s_lshr_b32 s42, s40, 2"); a("s_lshl_b32 s42, s42, 3"); a("s_lshr_b32 s43, s41, 2"); a("s_add_u32 s18, s42, s43")
    elif mode == '2x16':
        a("s_lshl_b32 s42, s40, 1"); a("s_and_b32 s43, s41, 1"); a("s_add_u32 s17, s42, s43")
        a("s_lshr_b32 s18, s41, 1")

def exp4(a, P, E, T):
    MX = [T + 0, T + 2, T + 4, T + 6]; MN = [T + 8, T + 10, T + 12, T + 14]
    for i in range(4):
        p = P + 8 * i
        a("v_max3_f32 v%d, v%d, v%d, v%d" % (MX[i], p, p + 1, p + 2)); a("v_min3_f32 v%d, v%d, v%d, v%d" % (MN[i], p, p + 1, p + 2))
    for i in range(4):
        p = P + 8 * i
        a("v_max3_f32 v%d, v%d, v%d, v%d" % (MX[i], MX[i], p + 3, p + 4)); a("v_min3_f32 v%d, v%d, v%d, v%d" % (MN[i], MN[i], p + 3, p + 4))
    for i in range(4):
        p = P + 8 * i
        a("v_max3_f32 v%d, v%d, v%d, v%d" % (MX[i], MX[i], p + 5, p + 6)); a("v_min3_f32 v%d, v%d, v%d, v%d" % (MN[i], MN[i], p + 5, p + 6))
    for i in range(4):
        p = P + 8 * i
        a("v_max_f32 v%d, v%d, v%d" % (MX[i], MX[i], p + 7)); a("v_min_f32 v%d, v%d, v%d" % (MN[i], MN[i], p + 7))
    interleave(a, lambda b: allreduce4(b, "v_max_f32", MX, None), lambda b: allreduce4(b, "v_min_f32", MN, None))
    for i in range(4):
        a("v_mul_f32 v%d, s46, v%d" % (MX[i], MX[i])); a("v_mul_f32 v%d, s46, v%d" % (MN[i], MN[i]))
    for i in range(4):
        for h in range(4):
            p = P + 8 * i + 2 * h; e = E + 8 * i + 2 * h
            a(pk("v_pk_fma_f32", e, p, "s[46:47]", MX[i], mods="op_sel_hi:[1,1,0] neg_lo:[0,0,1] neg_hi:[0,0,1]"))
            a(pk("v_pk_fma_f32", p, p, "s[46:47]", MN[i], mods="op_sel_hi:[1,1,0] neg_lo:[1,0,0] neg_hi:[1,0,0]"))
    for i in range(4):
        for q in range(8):
            a("v_exp_f32 v%d, v%d" % (E + 8 * i + q, E + 8 * i + q)); a("v_exp_f32 v%d, v%d" % (P + 8 * i + q, P + 8 * i + q))

def norm4(a, P, E, T):
    MX = [T + 0, T + 2, T + 4, T + 6]; MN = [T + 8, T + 10, T + 12, T + 14]
    for i in range(4):
        e = E + 8 * i; p = P + 8 * i
        a(pk("v_pk_add_f32", MX[i], e, e + 2)); a(pk("v_pk_add_f32", MN[i], p, p + 2))
    for i in range(4):
        e = E + 8 * i; p = P + 8 * i
        a(pk("v_pk_add_f32", MX[i], MX[i], e + 4)); a(pk("v_pk_add_f32", MN[i], MN[i], p + 4))
    for i in range(4):
        e = E + 8 * i; p = P + 8 * i
        a(pk("v_pk_add_f32", MX[i], MX[i], e + 6)); a(pk("v_pk_add_f32", MN[i], MN[i], p + 6))
    for i in range(4):
        a("v_add_f32 v%d, v%d, v%d" % (MX[i], MX[i], MX[i] + 1)); a("v_add_f32 v%d, v%d, v%d" % (MN[i], MN[i], MN[i] + 1))
    interleave(a, lambda b: allreduce4(b, "v_add_f32", MX, None), lambda b: allreduce4(b, "v_add_f32", MN, None))
    for i in range(4):
        a("v_rcp_f32 v%d, v%d" % (MX[i], MX[i])); a("v_rcp_f32 v%d, v%d" % (MN[i], MN[i]))
    for i in range(4):
        for h in range(4):
            p = P + 8 * i + 2 * h; e = E + 8 * i + 2 * h
            a(pk("v_pk_mul_f32", e, e, MX[i], mods="op_sel_hi:[1,0]")); a(pk("v_pk_mul_f32", p, p, MN[i], mods="op_sel_hi:[1,0]"))

def interleave(a, f, g):
    x = Asm(); y = Asm(); f(x); g(y)
    for i in range(max(len(x.lines), len(y.lines))):
        if i < len(x.lines): a.lines.append(x.lines[i])
        if i < len(y.lines): a.lines.append(y.lines[i])

def wphi_loads(a, WP, s_head, vtmp):
    a("s_lshl_b32 s41, s%d, 11" % s_head)
    a("v_lshrrev_b32 v%d, 4, v1" % vtmp); a("v_lshlrev_b32 v%d, 8, v%d" % (vtmp, vtmp))
    a("v_and_b32 v%d, 15, v1" % (vtmp + 1)); a("v_lshl_add_u32 v%d, v%d, 1, v%d" % (vtmp, vtmp + 1, vtmp)); a("v_add_u32 v%d, s41, v%d" % (vtmp, vtmp))
    for u in range(2):
        for j in range(8):
            d_off = (16 * (j >> 2) + (j & 3)) * 64 + u * 32
            a("buffer_load_ushort v%d, v%d, s[12:15], 0 offen offset:%d" % (WP + u * 8 + j, vtmp, d_off))
def wphi_pack(a, WP):
    for u in range(2):
        for p in range(4):
            a("v_lshl_or_b32 v%d, v%d, 16, v%d" % (WP + u * 4 + p, WP + u * 8 + 2 * p + 1, WP + u * 8 + 2 * p))

def spin_wait(a, lbl, srd, s_off, target, vtmp):
    a("s_mov_b32 s77, 0x40000")
    a("v_mov_b32 v%d, 0" % (vtmp + 1))
    a.label(lbl)
    a("buffer_load_dword v%d, v%d, s[%d:%d], s%d offen sc1" % (vtmp, vtmp + 1, srd, srd + 3, s_off))
    a("s_waitcnt vmcnt(0)")
    a("v_readfirstlane_b32 s78, v%d" % vtmp)
    a("s_cmp_ge_u32 s78, %d" % target); a("s_cbranch_scc1 %s_done" % lbl)
    a("s_sleep 1")
    a("s_sub_u32 s77, s77, 1"); a("s_cmp_lg_u32 s77, 0"); a("s_cbranch_scc1 %s" % lbl)
    a.label(lbl + "_done")

def signal(a, lbl, srd, s_off, vtmp):
    a("v_mov_b32 v%d, 1" % vtmp); a("v_mov_b32 v%d, 0" % (vtmp + 1))
    a("s_mov_b64 s[78:79], exec"); a("s_mov_b64 exec, 1")
    a("buffer_atomic_add v%d, v%d, s[%d:%d], s%d offen" % (vtmp, vtmp + 1, srd, srd + 3, s_off))
    a("s_mov_b64 exec, s[78:79]")

def allreduce2(a, op, r0, r1, t):
    a("v_permlane32_swap_b32 v%d, v%d" % (r0, r1)); a("%s v%d, v%d, v%d" % (op, r0, r0, r1))
    a("v_mov_b32 v%d, v%d" % (t, r0)); a("v_permlane16_swap_b32 v%d, v%d" % (r0, t)); a("%s v%d, v%d, v%d" % (op, r0, r0, t))
    a("v_mov_b32 v%d, v%d" % (r1, r0)); a("v_permlane32_swap_b32 v%d, v%d" % (r0, r1))

def gen_k1(a):
    name = "ka_kernel"; L = "K1"
    c = Cfg(MT=4, NT=6, K=1024, NS=3, nblk=3, ldb=6144, acc0=112, swap_tiles={4, 5})
    XCH = c.lds
    KVF = XCH + 16384
    FLG = c.lds + 32768
    lds_total = c.lds + 32768 + 256
    SW = 'sc1'
    LDF = OPT.get('ldf', '')
    kernel_header(a, name)
    a("s_cmp_ge_u32 s2, 256"); a("s_cbranch_scc1 K4_end")
    stamp(a, 0)
    ld_ptr(a, 34, 'ws'); ld_ptr(a, 32, 'wqkv'); ld_ptr(a, 36, 'wphi'); ld_ptr(a, 60, 'wo'); ld_ptr(a, 62, 'w2'); ld_ptr(a, 64, 'x'); ld_ptr(a, 68, 'w1')
    wave_lane(a)
    tile_map(a, '8x4')
    a("s_lshl_b32 s44, s17, 3")
    for b in range(3):
        a("s_lshl_b32 s%d, s18, 7" % (45 + b)); a("s_add_u32 s%d, s%d, %d" % (45 + b, 45 + b, b * 2048))
    a("s_waitcnt lgkmcnt(0)")
    make_srd(a, S_SRDA, 34, 4 * MB, off=WS_XN)
    make_srd(a, S_SRDB, 32, 1024 * 3072 * 2)
    a("s_cmp_ge_u32 s%d, 4" % S_WAVE); a("s_cbranch_scc1 K1_loader")
    vA = 2; vB = [3, 4]
    compute_setup(a, c, vA, vB, tmp=9)
    a("s_lshl_b32 s25, s39, 6"); a("v_xor_b32 v3, s25, v3"); a("v_xor_b32 v4, 32, v3")
    tm = [(vB[j & 1], c.blk_off[j >> 1]) for j in range(6)]
    make_srd(a, 12, 36, 32 * 32 * 32 * 2)
    a("s_lshl_b32 s45, s18, 1"); a("s_add_u32 s45, s45, s39")
    WP = 96
    wphi_loads(a, WP, 45, 9)
    def after_b0(a):
        stamp(a, 1)
        make_srd(a, 48, 60, 1024 * 1024 * 2)
        a("s_lshl_b32 s40, s2, 2"); a("s_add_u32 s40, s40, s%d" % S_WAVE); a("s_lshl_b32 s40, s40, 13")
        a("v_lshlrev_b32 v9, 7, v1")
        touch(a, 242, 9, 48, "s40")
    c.after_b0 = after_b0
    if OPT.get('mlppf', 1):
        a("s_lshl_b32 s70, s2, 2"); a("s_add_u32 s70, s70, s%d" % S_WAVE); a("s_lshl_b32 s70, s70, 13")
        a("v_lshlrev_b32 v244, 7, v1")
        make_srd(a, 52, 68, 1024 * 3584 * 2); make_srd(a, 56, 62, 3584 * 1024 * 2)
        a("s_mul_i32 s71, s%d, 3" % S_WAVE); a("s_sub_u32 s71, %d, s71" % (c.T - 3)); a("s_sub_u32 s72, s71, 1")
        c.once = [("s71", lambda a: touch(a, 243, 244, 52, "s70")), ("s72", lambda a: touch(a, 240, 244, 56, "s70"))]
    compute_loop(a, c, L, tm, vA)
    stamp(a, 2)
    def acc(i, j): return c.acc0 + (i * 6 + j) * 4
    F = 16
    for i in range(4):
        for jj in range(2):
            b = acc(i, 2 + jj)
            a("v_cvt_pk_bf16_f32 v%d, v%d, v%d" % (F + i * 4 + jj * 2, b, b + 1)); a("v_cvt_pk_bf16_f32 v%d, v%d, v%d" % (F + i * 4 + jj * 2 + 1, b + 2, b + 3))
    for ms in range(2):
        for dt in range(2):
            r = 32 + (ms * 2 + dt) * 4
            for h in range(2):
                b = acc(2 * ms + h, 4 + dt)
                a("v_cvt_pk_bf16_f32 v%d, v%d, v%d" % (r + 2 * h, b, b + 1)); a("v_cvt_pk_bf16_f32 v%d, v%d, v%d" % (r + 2 * h + 1, b + 2, b + 3))
    a("v_lshlrev_b32 v9, 4, v1"); a("s_lshl_b32 s41, s%d, 13" % S_WAVE); a("s_add_u32 s41, s41, %d" % XCH); a("v_add_u32 v9, s41, v9")
    for t in range(8): a("ds_write_b128 v9, v[%d:%d] offset:%d" % (F + t * 4, F + t * 4 + 3, t * 1024))
    for i in range(4):
        for jj in range(2):
            b = acc(i, jj)
            a("v_cvt_pk_bf16_f32 v%d, v%d, v%d" % (48 + i * 4 + jj * 2, b, b + 1)); a("v_cvt_pk_bf16_f32 v%d, v%d, v%d" % (48 + i * 4 + jj * 2 + 1, b + 2, b + 3))
    a("s_waitcnt lgkmcnt(0)"); a("s_barrier")
    a("s_waitcnt vmcnt(0)")
    wphi_pack(a, WP)
    def stage_wo():
        a("s_lshr_b32 s31, s2, 4")
        make_srd(a, 8, 60, 1024 * 1024 * 2)
        a("v_lshrrev_b32 v7, 3, v1"); a("v_lshlrev_b32 v7, 11, v7")
        a("v_bfe_u32 v8, v1, 4, 2"); a("v_lshlrev_b32 v8, 1, v8"); a("v_and_b32 v9, 7, v1"); a("v_xor_b32 v8, v8, v9"); a("v_lshl_add_u32 v7, v8, 4, v7")
        a("s_lshl_b32 s43, s%d, 15" % S_WAVE); a("s_lshl_b32 s41, s31, 7"); a("s_add_u32 s43, s43, s41"); a("v_add_u32 v7, s43, v7")
        a("v_add_u32 v8, %d, v7" % (8 * 2048 - 1024))
        a("s_lshl_b32 s41, s%d, 11" % S_WAVE); a("s_mov_b32 s43, %d" % (4 * 64 * 2048))
        for t in range(4, 15):
            a("s_add_u32 m0, s41, %d" % (t * 8192))
            a("buffer_load_dwordx4 v7, s[8:11], s43 offen lds")
            a("buffer_load_dwordx4 v8, s[8:11], s43 offen offset:1024 lds")
            if t < 14: a("s_add_u32 s43, s43, %d" % (64 * 2048))
    if OPT.get('bstage', 'early') == 'early': stage_wo()
    a("s_lshl_b32 s41, s%d, 2" % S_WAVE); a("s_add_u32 s41, s41, %d" % FLG); a("v_mov_b32 v14, s41"); a("s_mov_b32 s77, 0x100000")
    a.label("KA_qw")
    a("ds_read_b32 v15, v14"); a("s_waitcnt lgkmcnt(0)"); a("v_readfirstlane_b32 s78, v15")
    a("s_cmp_eq_u32 s78, 1"); a("s_cbranch_scc1 KA_qw_done")
    a("s_sleep 2")
    a("s_sub_u32 s77, s77, 1"); a("s_cmp_lg_u32 s77, 0"); a("s_cbranch_scc1 KA_qw")
    a.label("KA_qw_done")
    a("s_mov_b32 s46, 0x%x" % LOG2E); a("s_mov_b32 s47, 0x%x" % LOG2E)
    Pq = 112; Eq = 144; Tq = 176; PQ = 208
    for i in range(4):
        for u in range(2):
            a("%s v[%d:%d], v[%d:%d], v[%d:%d], 0" % (MF, Pq + i * 8 + u * 4, Pq + i * 8 + u * 4 + 3, WP + u * 4, WP + u * 4 + 3, 48 + i * 4, 48 + i * 4 + 3))
    exp4(a, Pq, Eq, Tq)
    for i in range(4):
        for q in range(4):
            a("v_cvt_pk_bf16_f32 v%d, v%d, v%d" % (PQ + i * 8 + q, Eq + 8 * i + 2 * q, Eq + 8 * i + 2 * q + 1))
            a("v_cvt_pk_bf16_f32 v%d, v%d, v%d" % (PQ + i * 8 + 4 + q, Pq + 8 * i + 2 * q, Pq + 8 * i + 2 * q + 1))
    if OPT.get('bstage', 'early') == 'late': stage_wo()
    a("s_branch KA_common")
    a.label("K1_loader")
    Ld = loader_setup(a, c, 44, ["s45", "s46", "s47"])
    a("s_sub_u32 s49, s%d, 4" % S_WAVE)
    WP = 96
    a("s_lshr_b32 s38, s49, 1"); a("s_and_b32 s39, s49, 1")
    make_srd(a, 12, 36, 32 * 32 * 32 * 2)
    a("s_lshl_b32 s48, s18, 1"); a("s_add_u32 s48, s48, s39")
    a("v_lshlrev_b32 v28, 2, v1"); a("v_add_u32 v28, %d, v28" % FLG); a("v_mov_b32 v29, 0")
    a("ds_write_b32 v28, v29"); a("s_waitcnt lgkmcnt(0)")
    def tail2(a):
        wphi_loads(a, WP, 48, 30)
    loader_loop(a, c, Ld, L, tail_loads=tail2, n_tail=16)
    a("s_mov_b32 s46, 0x%x" % LOG2E); a("s_mov_b32 s47, 0x%x" % LOG2E)
    make_srd(a, 52, 34, 8 * MB, off=WS_KVP)
    a("s_waitcnt vmcnt(0)")
    wphi_pack(a, WP)
    a("s_barrier")
    if OPT.get('kprio', 1): a("s_setprio 3")
    stamp(a, 0)
    a("v_lshlrev_b32 v9, 4, v1"); a("s_lshl_b32 s41, s49, 13"); a("s_add_u32 s41, s41, %d" % XCH); a("v_add_u32 v9, s41, v9")
    for t in range(4): a("ds_read_b128 v[%d:%d], v9 offset:%d" % (16 + t * 4, 19 + t * 4, t * 1024))
    a("s_waitcnt lgkmcnt(0)")
    Pk = 112; Ek = 144; Tk = 176
    for i in range(4):
        for u in range(2):
            a("%s v[%d:%d], v[%d:%d], v[%d:%d], 0" % (MF, Pk + i * 8 + u * 4, Pk + i * 8 + u * 4 + 3, WP + u * 4, WP + u * 4 + 3, 16 + i * 4, 16 + i * 4 + 3))
    a("v_and_b32 v9, 15, v1"); a("v_lshlrev_b32 v10, 7, v9")
    a("v_bfe_u32 v11, v1, 1, 2"); a("v_lshlrev_b32 v11, 1, v11")
    a("v_lshrrev_b32 v12, 5, v1"); a("v_xor_b32 v11, v11, v12"); a("v_lshl_add_u32 v10, v11, 4, v10")
    a("v_bfe_u32 v11, v1, 4, 1"); a("v_lshl_add_u32 v10, v11, 3, v10")
    a("s_lshl_b32 s41, s39, 14"); a("s_lshl_b32 s42, s38, 13"); a("s_add_u32 s41, s41, s42"); a("v_add_u32 v10, s41, v10")
    for k in range(1, 4): a("v_xor_b32 v%d, %d, v10" % (10 + k, k * 32))
    exp4(a, Pk, Ek, Tk)
    norm4(a, Pk, Ek, Tk)
    for i in range(4):
        r = 16 + i * 8
        for q in range(4):
            a("v_cvt_pk_bf16_f32 v%d, v%d, v%d" % (r + q, Ek + 8 * i + 2 * q, Ek + 8 * i + 2 * q + 1))
            a("v_cvt_pk_bf16_f32 v%d, v%d, v%d" % (r + 4 + q, Pk + 8 * i + 2 * q, Pk + 8 * i + 2 * q + 1))
        a("ds_write_b64 v10, v[%d:%d] offset:%d" % (r, r + 1, i * 2048)); a("ds_write_b64 v11, v[%d:%d] offset:%d" % (r + 2, r + 3, i * 2048))
        a("ds_write_b64 v12, v[%d:%d] offset:%d" % (r + 4, r + 5, i * 2048)); a("ds_write_b64 v13, v[%d:%d] offset:%d" % (r + 6, r + 7, i * 2048))
    tr_pattern(a, 3, 14)
    a("s_lshl_b32 s41, s39, 14"); a("v_add_u32 v3, s41, v3")
    a("s_lshl_b32 s41, s38, 6"); a("v_xor_b32 v3, s41, v3"); a("v_xor_b32 v4, 32, v3")
    a("v_lshlrev_b32 v9, 4, v1"); a("s_lshl_b32 s41, s39, 13"); a("s_add_u32 s41, s41, %d" % (XCH + 4096)); a("v_add_u32 v9, s41, v9")
    for wmp in range(2):
        for t in range(4): a("ds_read_b128 v[%d:%d], v9 offset:%d" % (48 + (wmp * 4 + t) * 4, 51 + (wmp * 4 + t) * 4, wmp * 16384 + t * 1024))
    for q in range(4): a("v_mov_b32 v%d, 0x3f803f80" % (88 + q))
    stamp(a, 1)
    a("s_waitcnt lgkmcnt(0)")
    a("s_lshl_b32 s41, s49, 2"); a("s_add_u32 s41, s41, %d" % FLG); a("v_mov_b32 v14, s41"); a("v_mov_b32 v15, 1")
    a("ds_write_b32 v14, v15")
    a("v_xor_b32 v14, 8, v14")
    a("s_mov_b32 s77, 0x100000")
    a.label("KA_pair")
    a("ds_read_b32 v15, v14"); a("s_waitcnt lgkmcnt(0)"); a("v_readfirstlane_b32 s78, v15")
    a("s_cmp_eq_u32 s78, 1"); a("s_cbranch_scc1 KA_pair_done")
    a("s_sub_u32 s77, s77, 1"); a("s_cmp_lg_u32 s77, 0"); a("s_cbranch_scc1 KA_pair")
    a.label("KA_pair_done")
    stamp(a, 2)
    for ms in range(4):
        for ftl in range(2):
            r = 16 + (ms * 2 + ftl) * 4
            a("ds_read_b64_tr_b16 v[%d:%d], v%d offset:%d" % (r, r + 1, 3 + ftl, ms * 4096))
            a("ds_read_b64_tr_b16 v[%d:%d], v%d offset:%d" % (r + 2, r + 3, 3 + ftl, ms * 4096 + 2048))
    KV = 112
    for ms in range(4):
        a("s_waitcnt lgkmcnt(%d)" % (12 - 4 * ms))
        for ftl in range(2):
            for dt in range(3):
                d = KV + (ftl * 3 + dt) * 4
                B = (48 + (ms * 2 + dt) * 4) if dt < 2 else 88
                A = 16 + (ms * 2 + ftl) * 4
                cin = "0" if ms == 0 else "v[%d:%d]" % (d, d + 3)
                a("%s v[%d:%d], v[%d:%d], v[%d:%d], %s" % (MF, d, d + 3, A, A + 3, B, B + 3, cin))
    a("s_lshl_b32 s41, s48, 4"); a("s_add_u32 s41, s41, s17"); a("s_mul_i32 s41, s41, %d" % KVP_STRIDE)
    a("s_lshl_b32 s42, s38, 11"); a("s_add_u32 s42, s42, s41")
    a("v_lshlrev_b32 v9, 4, v1"); a("v_add_u32 v9, s42, v9")
    for ftl in range(2):
        for dt in range(3):
            d = KV + (ftl * 3 + dt) * 4
            o = 16 + ftl * 8 + dt * 2
            a("v_cvt_pk_bf16_f32 v%d, v%d, v%d" % (o, d, d + 1)); a("v_cvt_pk_bf16_f32 v%d, v%d, v%d" % (o + 1, d + 2, d + 3))
        a("buffer_store_dwordx4 v[%d:%d], v9, s[52:55], 0 offen offset:%d %s" % (16 + ftl * 8, 19 + ftl * 8, ftl * 1024, SW))
    a("v_lshrrev_b32 v9, 4, v1"); a("v_lshlrev_b32 v9, 3, v9"); a("s_lshl_b32 s42, s38, 6"); a("s_add_u32 s41, s41, s42"); a("s_add_u32 s41, s41, 4096"); a("v_add_u32 v9, s41, v9")
    a("v_and_b32 v10, 15, v1"); a("v_cmp_eq_u32 vcc, 0, v10"); a("s_and_saveexec_b64 s[40:41], vcc")
    for ftl in range(2):
        a("buffer_store_dwordx2 v[%d:%d], v9, s[52:55], 0 offen offset:%d %s" % (20 + ftl * 8, 21 + ftl * 8, ftl * 32, SW))
    a("s_mov_b64 exec, s[40:41]")
    if STAMP['on']:
        a("s_memrealtime s[98:99]"); a("s_waitcnt lgkmcnt(0)")
    a("s_waitcnt vmcnt(0)")
    if STAMP['on']:
        a("s_memrealtime s[100:101]"); a("s_waitcnt lgkmcnt(0)")
    a("v_mov_b32 v14, %d" % (FLG + 16)); a("v_mov_b32 v15, 1")
    a("s_mov_b64 s[78:79], exec"); a("s_mov_b64 exec, 1"); a("ds_add_u32 v14, v15"); a("s_mov_b64 exec, s[78:79]")
    a("s_waitcnt lgkmcnt(0)")
    if OPT.get('kprio', 1): a("s_setprio 0")
    a.label("KA_common")
    stamp(a, 3)
    a("s_and_b32 s30, s2, 7"); a("s_lshl_b32 s30, s30, 1"); a("s_bfe_u32 s31, s2, 0x10003"); a("s_add_u32 s30, s30, s31"); a("s_lshr_b32 s31, s2, 4")
    make_srd(a, 52, 34, 8 * MB, off=WS_KVP)
    make_srd(a, 56, 34, 65536, off=WS_CNT)
    a("s_lshl_b32 s50, s18, 8")
    a("s_lshl_b32 s51, s17, 8"); a("s_add_u32 s51, s51, 4096")
    a("s_lshl_b32 s29, s30, 8"); a("s_add_u32 s29, s29, 4096")
    a("v_lshlrev_b32 v2, 4, v1")
    a("s_cmp_lt_u32 s%d, 4" % S_WAVE); a("s_cbranch_scc1 KA_redc")
    a("s_cmp_lg_u32 s%d, 4" % S_WAVE); a("s_cbranch_scc1 KA_nopoll1")
    a("v_mov_b32 v14, %d" % (FLG + 16)); a("s_mov_b32 s77, 0x100000")
    a.label("KA_dr")
    a("ds_read_b32 v15, v14"); a("s_waitcnt lgkmcnt(0)"); a("v_readfirstlane_b32 s78, v15")
    a("s_cmp_eq_u32 s78, 4"); a("s_cbranch_scc1 KA_dr_done")
    a("s_sub_u32 s77, s77, 1"); a("s_cmp_lg_u32 s77, 0"); a("s_cbranch_scc1 KA_dr")
    a.label("KA_dr_done")
    signal(a, "KA_s1", 56, 50, 40)
    spin_wait(a, "KA_p1", 56, 50, 16, 40)
    a("v_mov_b32 v14, %d" % (FLG + 20)); a("v_mov_b32 v15, 1"); a("ds_write_b32 v14, v15"); a("s_waitcnt lgkmcnt(0)")
    a("s_branch KA_kvready")
    a.label("KA_nopoll1")
    a("v_mov_b32 v14, %d" % (FLG + 20)); a("s_mov_b32 s77, 0x400000")
    a.label("KA_kw")
    a("ds_read_b32 v15, v14"); a("s_waitcnt lgkmcnt(0)"); a("v_readfirstlane_b32 s78, v15")
    a("s_cmp_eq_u32 s78, 1"); a("s_cbranch_scc1 KA_kvready")
    a("s_sleep 1")
    a("s_sub_u32 s77, s77, 1"); a("s_cmp_lg_u32 s77, 0"); a("s_cbranch_scc1 KA_kw")
    a.label("KA_kvready")
    stamp(a, 4)
    a("s_and_b32 s40, s49, 1"); a("s_lshr_b32 s41, s49, 1")
    a("s_lshl_b32 s42, s18, 1"); a("s_add_u32 s42, s42, s40"); a("s_mul_i32 s42, s42, %d" % (16 * KVP_STRIDE))
    a("s_lshl_b32 s43, s41, 10"); a("s_add_u32 s43, s43, s42"); a("v_add_u32 v3, s43, v2")
    a("v_lshrrev_b32 v4, 2, v1"); a("s_mov_b32 s43, %d" % KVP_STRIDE); a("v_mul_lo_u32 v4, v4, s43"); a("v_and_b32 v6, 3, v1"); a("v_lshl_add_u32 v4, v6, 3, v4")
    a("s_lshl_b32 s43, s41, 5"); a("s_add_u32 s43, s43, s42"); a("s_add_u32 s43, s43, 4096"); a("v_add_u32 v4, s43, v4")
    a("buffer_load_dwordx2 v[10:11], v4, s[52:55], 0 offen %s" % LDF)
    a("buffer_load_dwordx2 v[12:13], v4, s[52:55], 0 offen offset:64 %s" % LDF)
    a("s_mov_b32 s43, 0")
    for p in range(16):
        a("buffer_load_dwordx4 v[%d:%d], v3, s[52:55], s43 offen %s" % (32 + p * 8, 35 + p * 8, LDF))
        a("buffer_load_dwordx4 v[%d:%d], v3, s[52:55], s43 offen offset:2048 %s" % (36 + p * 8, 39 + p * 8, LDF))
        if p < 15: a("s_add_u32 s43, s43, %d" % KVP_STRIDE)
    a("v_lshrrev_b32 v5, 4, v1"); a("v_bfe_u32 v6, v1, 2, 2"); a("v_cmp_eq_u32 vcc, v5, v6")
    a("v_and_b32 v5, 1, v1"); a("v_lshlrev_b32 v5, 4, v5"); a("v_mov_b32 v6, 0x3f80"); a("v_lshlrev_b32 v6, v5, v6"); a("v_cndmask_b32 v6, 0, v6, vcc")
    a("v_and_b32 v5, 2, v1"); a("v_cmp_eq_u32 vcc, 0, v5")
    a("v_cndmask_b32 v160, 0, v6, vcc"); a("v_cndmask_b32 v161, v6, 0, vcc") if False else None
    a("v_mov_b32 v7, 0")
    a("v_cndmask_b32 v160, v7, v6, vcc"); a("v_cndmask_b32 v161, v6, v7, vcc")
    a("v_mov_b32 v162, 0"); a("v_mov_b32 v163, 0"); a("v_mov_b32 v164, 0"); a("v_mov_b32 v165, 0"); a("v_mov_b32 v166, v160"); a("v_mov_b32 v167, v161")
    a("s_waitcnt vmcnt(32)")
    for b in (0, 1):
        src = 10 + 2 * b; d = 16 + 4 * b
        a("v_lshlrev_b32 v%d, 16, v%d" % (d, src)); a("v_and_b32 v%d, 0xffff0000, v%d" % (d + 1, src)); a("v_lshlrev_b32 v%d, 16, v%d" % (d + 2, src + 1)); a("v_and_b32 v%d, 0xffff0000, v%d" % (d + 3, src + 1))
    for sh in (4, 8):
        for q in range(8): a("v_add_f32_dpp v%d, v%d, v%d row_ror:%d row_mask:0xf bank_mask:0xf" % (16 + q, 16 + q, 16 + q, sh))
    allreduce4(a, "v_add_f32", [16, 17, 18, 19], None); allreduce4(a, "v_add_f32", [20, 21, 22, 23], None)
    a("v_cvt_pk_bf16_f32 v10, v16, v17"); a("v_cvt_pk_bf16_f32 v11, v18, v19"); a("v_cvt_pk_bf16_f32 v12, v20, v21"); a("v_cvt_pk_bf16_f32 v13, v22, v23")
    a("v_and_b32 v6, 3, v1"); a("v_lshlrev_b32 v6, 3, v6"); a("s_lshl_b32 s43, s41, 5"); a("s_lshl_b32 s45, s40, 13"); a("s_add_u32 s43, s43, s45"); a("s_add_u32 s43, s43, %d" % (KVF + 4096)); a("v_add_u32 v6, s43, v6")
    a("ds_write_b64 v6, v[10:11]"); a("ds_write_b64 v6, v[12:13] offset:64")
    for p in range(16):
        if p % 2 == 0: a("s_waitcnt vmcnt(%d)" % (28 - 2 * p))
        for b in (0, 1):
            for hf in (0, 1):
                d = 168 + b * 8 + hf * 4
                cin = "0" if p == 0 else "v[%d:%d]" % (d, d + 3)
                a("%s v[%d:%d], v[%d:%d], v[%d:%d], %s" % (MF, d, d + 3, 160 + hf * 4, 163 + hf * 4, 32 + p * 8 + b * 4, 35 + p * 8 + b * 4, cin))
    a("v_lshlrev_b32 v6, 3, v1"); a("s_lshl_b32 s43, s41, 9"); a("s_add_u32 s43, s43, s45"); a("s_add_u32 s43, s43, %d" % KVF); a("v_add_u32 v7, s43, v6")
    for b in (0, 1):
        for dt in (0, 1):
            d = 168 + b * 8 + dt * 4
            a("v_cvt_pk_bf16_f32 v28, v%d, v%d" % (d, d + 1)); a("v_cvt_pk_bf16_f32 v29, v%d, v%d" % (d + 2, d + 3))
            a("ds_write_b64 v7, v[28:29] offset:%d" % (dt * 2048 + b * 1024))
    stamp(a, 5)
    a("s_waitcnt lgkmcnt(0)"); a("s_barrier")
    make_srd(a, 8, 60, 1024 * 1024 * 2)
    a("v_lshrrev_b32 v7, 3, v1"); a("v_lshlrev_b32 v7, 11, v7")
    a("v_bfe_u32 v8, v1, 4, 2"); a("v_lshlrev_b32 v8, 1, v8"); a("v_and_b32 v9, 7, v1"); a("v_xor_b32 v8, v8, v9"); a("v_lshl_add_u32 v7, v8, 4, v7")
    a("s_lshl_b32 s43, s49, 15"); a("s_lshl_b32 s45, s31, 7"); a("s_add_u32 s43, s43, s45"); a("v_add_u32 v7, s43, v7")
    a("v_add_u32 v8, %d, v7" % (8 * 2048 - 1024))
    a("s_lshl_b32 s45, s49, 11")
    for t in (0, 1, 2, 3, 15):
        a("s_mov_b32 s43, %d" % (t * 64 * 2048))
        a("s_add_u32 m0, s45, %d" % (t * 8192))
        a("buffer_load_dwordx4 v7, s[8:11], s43 offen lds")
        a("buffer_load_dwordx4 v8, s[8:11], s43 offen offset:1024 lds")
    a("s_waitcnt vmcnt(0)")
    make_srd(a, 12, 34, 4 * MB, off=WS_O)
    a("s_barrier")
    a("s_branch KA_pre7")
    a.label("KA_redc")
    a("s_barrier")
    stamp(a, 4); stamp(a, 5)
    a("v_lshlrev_b32 v6, 3, v1"); a("s_lshl_b32 s43, s39, 13"); a("s_add_u32 s43, s43, %d" % KVF); a("v_add_u32 v6, s43, v6")
    for dt in range(2):
        for fs in range(2):
            r = 32 + (dt * 2 + fs) * 4
            a("ds_read_b64 v[%d:%d], v6 offset:%d" % (r, r + 1, dt * 2048 + (2 * fs) * 512))
            a("ds_read_b64 v[%d:%d], v6 offset:%d" % (r + 2, r + 3, dt * 2048 + (2 * fs + 1) * 512))
    a("v_lshrrev_b32 v7, 4, v1"); a("v_lshlrev_b32 v7, 3, v7"); a("v_add_u32 v7, s43, v7")
    for fs in range(2):
        a("ds_read_b64 v[%d:%d], v7 offset:%d" % (48 + fs * 4, 49 + fs * 4, 4096 + (2 * fs) * 32))
        a("ds_read_b64 v[%d:%d], v7 offset:%d" % (50 + fs * 4, 51 + fs * 4, 4096 + (2 * fs + 1) * 32))
    for q in range(4): a("v_mov_b32 v%d, 0x3f803f80" % (56 + q))
    a("s_waitcnt lgkmcnt(0)")
    RB = 64
    for i in range(4):
        R = RB + i * 32
        for fs in range(2):
            B = PQ + (i * 2 + fs) * 4
            for dt in range(2):
                d = R + (fs * 2 + dt) * 4; A = 32 + (dt * 2 + fs) * 4
                a("%s v[%d:%d], v[%d:%d], v[%d:%d], 0" % (MF, d, d + 3, A, A + 3, B, B + 3))
            a("%s v[%d:%d], v[%d:%d], v[%d:%d], 0" % (MF, R + 16 + fs * 4, R + 19 + fs * 4, 48 + fs * 4, 51 + fs * 4, B, B + 3))
            a("%s v[%d:%d], v[56:59], v[%d:%d], 0" % (MF, R + 24 + fs * 4, R + 27 + fs * 4, B, B + 3))
    make_srd(a, 12, 34, 4 * MB, off=WS_O)
    a("s_lshl_b32 s40, s38, 2"); a("s_add_u32 s40, s40, s44"); a("s_lshl_b32 s40, s40, 5"); a("s_lshl_b32 s41, s18, 1"); a("s_add_u32 s41, s41, s39"); a("s_add_u32 s40, s40, s41"); a("s_lshl_b32 s40, s40, 10")
    a("v_add_u32 v5, s40, v2"); a("v_xor_b32 v8, 1024, v5")
    for i in range(4):
        R = RB + i * 32
        a("v_rcp_f32 v%d, v%d" % (R + 24, R + 24)); a("v_rcp_f32 v%d, v%d" % (R + 28, R + 28))
    for i in range(4):
        R = RB + i * 32
        a("v_mul_f32 v%d, v%d, v%d" % (R + 16, R + 16, R + 24)); a("v_fma_f32 v%d, v%d, v%d, v%d" % (R + 16, R + 20, R + 28, R + 16))
        a("v_add_f32 v%d, 0x358637bd, v%d" % (R + 16, R + 16))
    for i in range(4):
        R = RB + i * 32
        a("v_rcp_f32 v%d, v%d" % (R + 16, R + 16))
    for i in range(4):
        R = RB + i * 32
        a("v_mul_f32 v%d, v%d, v%d" % (R + 24, R + 24, R + 16)); a("v_mul_f32 v%d, v%d, v%d" % (R + 28, R + 28, R + 16))
    a("s_mov_b32 s43, 0")
    for i in range(4):
        R = RB + i * 32
        for h in range(4): a(pk("v_pk_mul_f32", R + 2 * h, R + 2 * h, R + 24, mods="op_sel_hi:[1,0]"))
        for h in range(4): a(pk("v_pk_fma_f32", R + 2 * h, R + 8 + 2 * h, R + 28, R + 2 * h, mods="op_sel_hi:[1,0,1]"))
        for h in range(4): a("v_cvt_pk_bf16_f32 v%d, v%d, v%d" % (16 + i * 4 + h, R + 2 * h, R + 2 * h + 1))
        a("buffer_store_dwordx4 v[%d:%d], v%d, s[12:15], s43 offen %s" % (16 + i * 4, 19 + i * 4, 5 if i % 2 == 0 else 8, SW))
        if i < 3: a("s_add_u32 s43, s43, %d" % (32 * 1024))
    if STAMP['on']:
        a("s_memrealtime s[98:99]"); a("s_waitcnt lgkmcnt(0)")
    a("s_waitcnt vmcnt(0)")
    a("s_barrier")
    if STAMP['on']:
        a("s_memrealtime s[100:101]"); a("s_waitcnt lgkmcnt(0)")
    a.label("KA_pre7")
    a("s_mov_b32 s17, s30"); a("s_mov_b32 s18, s31"); a("s_lshl_b32 s44, s30, 3")
    a("s_and_b32 s38, s%d, 3" % S_WAVE); a("s_lshr_b32 s39, s%d, 2" % S_WAVE)
    a("s_lshl_b32 s46, s38, 1"); a("s_add_u32 s46, s46, s39")
    make_srd(a, 8, 64, 2048 * 1024 * 2)
    a("s_lshl_b32 s40, s17, 7"); a("s_lshl_b32 s41, s46, 4"); a("s_add_u32 s40, s40, s41")
    a("v_and_b32 v9, 15, v1"); a("v_add_u32 v241, s40, v9"); a("v_lshlrev_b32 v9, 11, v241")
    a("s_lshl_b32 s41, s18, 7"); a("v_lshrrev_b32 v10, 4, v1"); a("v_lshl_add_u32 v9, v10, 3, v9"); a("v_add_u32 v9, s41, v9")
    a("s_cmp_lg_u32 s%d, 0" % S_WAVE); a("s_cbranch_scc1 KA_nopoll2")
    signal(a, "KA_s2", 56, 51, 40)
    spin_wait(a, "KA_p2", 56, 29, 16, 40)
    a.label("KA_nopoll2")
    a("s_barrier")
    stamp(a, 6)
    D = OPT.get('gd', 4); AR = 16; BR = 80; AC = 176
    if OPT.get('dbg_xn'): make_srd(a, 12, 34, 4 * MB, off=WS_XN)
    a("s_lshl_b32 s40, s38, 1"); a("s_add_u32 s40, s40, s44"); a("s_lshl_b32 s40, s40, 15")
    a("v_add_u32 v3, s40, v2"); a("v_add_u32 v4, 32768, v3")
    tr_pattern(a, 5, 14)
    for t in range(1, 4): a("v_xor_b32 v%d, %d, v5" % (5 + t, t * 32))
    def aload(k):
        a("buffer_load_dwordx4 v[%d:%d], v3, s[12:15], s43 offen %s" % (AR + k * 8, AR + k * 8 + 3, LDF))
        a("buffer_load_dwordx4 v[%d:%d], v4, s[12:15], s42 offen %s" % (AR + k * 8 + 4, AR + k * 8 + 7, LDF))
        a("s_add_u32 s43, s43, 1024"); a("s_and_b32 s43, s43, 0x7fff"); a("s_xor_b32 s42, s43, 1024")
    a("s_and_b32 s43, s18, 3"); a("s_lshl_b32 s43, s43, 3"); a("s_lshl_b32 s41, s39, 4"); a("s_add_u32 s43, s43, s41"); a("s_and_b32 s43, s43, 31"); a("s_lshl_b32 s43, s43, 10")
    a("s_lshl_b32 s41, s43, 2")
    for t in range(4): a("v_add_u32 v%d, s41, v%d" % (5 + t, 5 + t))
    a("s_xor_b32 s42, s43, 1024")
    for k in range(D): aload(k)
    for q in range(32): a("v_mov_b32 v%d, 0" % (AC + q))
    sch = LgkmSched(a)
    def bread_list(setb, k):
        return [("ds_read_b64_tr_b16 v[%d:%d], v%d offset:%d" % (setb + j * 4 + jj * 2, setb + j * 4 + jj * 2 + 1, 5 + j, k * 4096 + jj * 2048), (setb, j)) for j in range(4) for jj in range(2)]
    def body(last, extra=0):
        for k in range(D):
            cur = BR + (k & 1) * 16; nxt = BR + ((k + 1) & 1) * 16
            if k < D - 1: rd = bread_list(nxt, k + 1)
            elif not last:
                for t in range(4): a("v_add_u32 v%d, %d, v%d" % (5 + t, D * 4096, 5 + t)); a("v_and_b32 v%d, 0x1ffff, v%d" % (5 + t, 5 + t))
                rd = bread_list(nxt, 0)
            else: rd = []
            a("s_waitcnt vmcnt(%d)" % ((2 * (D - 1) if not last else 2 * (D - 1 - k)) + extra))
            m = 0
            for j in range(4):
                sch.need({(cur, j)})
                for i in range(2):
                    d = AC + (i * 4 + j) * 4
                    a("%s v[%d:%d], v[%d:%d], v[%d:%d], v[%d:%d]" % (MF, d, d + 3, cur + j * 4, cur + j * 4 + 3, AR + k * 8 + i * 4, AR + k * 8 + i * 4 + 3, d, d + 3))
                    if m < len(rd): sch.issue(*rd[m])
                    m += 1
            if not last: aload(k)
    for t_ in bread_list(BR, 0): sch.issue(*t_)
    q0 = list(sch.q)
    nb = 16 // D
    a("s_mov_b32 s47, %d" % (nb - 1))
    a.label("KA_gloop")
    body(False)
    assert sch.q == q0
    a("s_sub_u32 s47, s47, 1"); a("s_cmp_lg_u32 s47, 0"); a("s_cbranch_scc1 KA_gloop")
    for j in range(4):
        a("buffer_load_dwordx2 v[%d:%d], v9, s[8:11], 0 offen offset:%d" % (208 + j * 2, 209 + j * 2, j * 32))
    body(True, 4)
    a("s_barrier")
    a("s_lshl_b32 s41, s%d, 12" % S_WAVE); a("v_add_u32 v6, s41, v2")
    a("s_xor_b32 s41, s41, 16384"); a("v_add_u32 v7, s41, v2")
    a("s_cmp_eq_u32 s39, 0"); a("s_cbranch_scc0 KA_x1")
    for j in range(4): a("ds_write_b128 v6, v[%d:%d] offset:%d" % (AC + 16 + j * 4, AC + 19 + j * 4, j * 1024))
    a("s_branch KA_x2")
    a.label("KA_x1")
    for j in range(4): a("ds_write_b128 v6, v[%d:%d] offset:%d" % (AC + j * 4, AC + 3 + j * 4, j * 1024))
    for q in range(16): a("v_mov_b32 v%d, v%d" % (AC + q, AC + 16 + q))
    a.label("KA_x2")
    a("s_waitcnt lgkmcnt(0)"); a("s_barrier")
    for j in range(4): a("ds_read_b128 v[%d:%d], v7 offset:%d" % (32 + j * 4, 35 + j * 4, j * 1024))
    a("s_waitcnt lgkmcnt(0)")
    for q in range(8): a(pk("v_pk_add_f32", AC + 2 * q, AC + 2 * q, 32 + 2 * q))
    a("s_add_u32 s40, s46, s44"); a("s_lshl_b32 s40, s40, 15")
    stamp(a, 7)
    a("s_waitcnt vmcnt(0)")
    make_srd(a, 48, 34, 4 * MB, off=WS_H)
    make_srd(a, 52, 34, 1 * MB, off=WS_STATS)
    for j in range(4):
        for h in range(2):
            a("v_lshlrev_b32 v%d, 16, v%d" % (16 + j * 4 + 2 * h, 208 + j * 2 + h)); a("v_and_b32 v%d, 0xffff0000, v%d" % (17 + j * 4 + 2 * h, 208 + j * 2 + h))
    for q in range(8): a(pk("v_pk_add_f32", AC + 2 * q, AC + 2 * q, 16 + 2 * q))
    a("s_lshl_b32 s41, s18, 11"); a("s_add_u32 s40, s40, s41"); a("v_add_u32 v14, s40, v2")
    for jp in range(2):
        d = 48 + jp * 4
        for q in range(4): a("v_cvt_pk_bf16_f32 v%d, v%d, v%d" % (d + q, AC + jp * 8 + 2 * q, AC + jp * 8 + 2 * q + 1))
        a("buffer_store_dwordx4 v[%d:%d], v14, s[48:51], 0 offen offset:%d %s" % (d, d + 3, jp * 1024, st_flags('h')))
    a(pk("v_pk_add_f32", 16, AC, AC + 2)); a(pk("v_pk_add_f32", 18, AC + 4, AC + 6)); a(pk("v_pk_add_f32", 20, AC + 8, AC + 10)); a(pk("v_pk_add_f32", 22, AC + 12, AC + 14))
    a(pk("v_pk_add_f32", 16, 16, 18)); a(pk("v_pk_add_f32", 20, 20, 22)); a(pk("v_pk_add_f32", 16, 16, 20)); a("v_add_f32 v16, v16, v17")
    def xl(r, t):
        a("v_mov_b32 v%d, v%d" % (t, r)); a("v_permlane32_swap_b32 v%d, v%d" % (r, t)); a("v_add_f32 v%d, v%d, v%d" % (r, r, t))
        a("v_mov_b32 v%d, v%d" % (t, r)); a("v_permlane16_swap_b32 v%d, v%d" % (r, t)); a("v_add_f32 v%d, v%d, v%d" % (r, r, t))
    xl(16, 24)
    a("v_mul_f32 v16, 0x3c800000, v16")
    for q in range(8): a(pk("v_pk_add_f32", AC + 2 * q, AC + 2 * q, 16, mods="op_sel_hi:[1,0] neg_lo:[0,1] neg_hi:[0,1]"))
    a(pk("v_pk_mul_f32", 20, AC, AC)); a(pk("v_pk_mul_f32", 22, AC + 2, AC + 2))
    for q in range(2, 8): a(pk("v_pk_fma_f32", 20 + 2 * (q & 1), AC + 2 * q, AC + 2 * q, 20 + 2 * (q & 1)))
    a(pk("v_pk_add_f32", 20, 20, 22)); a("v_add_f32 v17, v20, v21")
    xl(17, 24)
    a("v_lshlrev_b32 v13, 7, v241"); a("s_lshl_b32 s41, s18, 3"); a("v_add_u32 v13, s41, v13")
    a("v_cmp_gt_u32 vcc, 16, v1"); a("s_and_saveexec_b64 s[56:57], vcc")
    a("buffer_store_dwordx2 v[16:17], v13, s[52:55], 0 offen %s" % st_flags('h'))
    a("s_mov_b64 exec, s[56:57]")
    if STAMP['on']:
        lbl = "ST_skip_ka"
        a("s_waitcnt vmcnt(0)")
        a("s_memrealtime s[96:97]"); a("s_waitcnt lgkmcnt(0)")
        a("s_load_dwordx2 s[70:71], s[0:1], %d" % KERNARG['ws']); a("s_waitcnt lgkmcnt(0)")
        make_srd(a, 72, 70, 1 * MB, off=WS_STAMP + 896 * 1024)
        a("s_lshl_b32 s76, s2, 5"); a("s_lshl_b32 s77, s%d, 2" % S_WAVE); a("s_add_u32 s76, s76, s77"); a("v_mov_b32 v5, s76"); a("v_mov_b32 v4, s96")
        a("s_mov_b64 s[78:79], exec"); a("s_mov_b64 exec, 1"); a("buffer_store_dword v4, v5, s[72:75], 0 offen"); a("s_mov_b64 exec, s[78:79]")
        a("s_and_b32 s76, s%d, 3" % S_WAVE); a("s_cmp_lg_u32 s76, 0"); a("s_cbranch_scc1 %s" % lbl)
        a("s_load_dwordx2 s[70:71], s[0:1], %d" % KERNARG['ws']); a("s_waitcnt lgkmcnt(0)")
        make_srd(a, 72, 70, 1 * MB, off=WS_STAMP + 512 * 1024)
        a("s_lshl_b32 s76, s2, 6"); a("s_lshl_b32 s77, s%d, 16" % S_WAVE); a("s_add_u32 s76, s76, s77"); a("s_mov_b64 exec, 1"); a("v_mov_b32 v5, s76")
        for i in range(11):
            a("v_mov_b32 v4, s%d" % (80 + 2 * i)); a("buffer_store_dword v4, v5, s[72:75], 0 offen offset:%d" % (i * 4)); a("s_nop 1")
        a("s_mov_b64 exec, -1")
        a.label(lbl)
    a("s_waitcnt vmcnt(0)")
    a("s_barrier")
    a("s_cmp_lg_u32 s%d, 0" % S_WAVE); a("s_cbranch_scc1 KA_nosig")
    make_srd(a, 56, 34, 65536, off=WS_CNT)
    a("s_add_u32 s41, s30, 80"); a("s_lshl_b32 s41, s41, 8")
    signal(a, "KA_s3", 56, 41, 40)
    a.label("KA_nosig")
    return name, dict(grid=256, block=512, lds=lds_total, vgprs=256)

def gen_k3(a):
    name = "k3_kernel"; L = "K3"
    c = Cfg(MT=4, NT=7, K=1024, NS=3, nblk=4, ldb=7168, acc0=112)
    STL = c.lds
    CSL = c.lds + 1024
    B1F = 36
    stamp(a, 0)
    ld_ptr(a, 34, 'ws'); ld_ptr(a, 32, 'w1'); ld_ptr(a, 36, 'b1')
    tile_map(a, OPT.get('k3map', '8x4'))
    a("s_lshl_b32 s44, s17, 3")
    a("s_and_b32 s43, s18, 1")
    a("s_mul_i32 s45, s18, 448"); a("s_lshl_b32 s42, s43, 6"); a("s_sub_u32 s45, s45, s42")
    for b in range(1, 4): a("s_add_u32 s%d, s45, %d" % (45 + b, b * 128))
    a("s_waitcnt lgkmcnt(0)")
    make_srd(a, S_SRDA, 34, 4 * MB, off=WS_H)
    make_srd(a, S_SRDB, 32, 1024 * 3584 * 2)
    a("s_cmp_ge_u32 s%d, 4" % S_WAVE); a("s_cbranch_scc1 K3_loader")
    vA = 2; vB = [3, 4, 5, 6]
    compute_setup(a, c, vA, vB, tmp=9)
    if OPT.get('touch_k3', OPT.get('touch', 0)):
        nA, nB = map_share(OPT.get('k3map', '8x4'))
        touch_setup(a, c, nA, nB, 66, 67, 44, 45, 128, 252, 253, 12, 68, 69, 254, OPT.get('touch_k3', OPT.get('touch', 0)))
    a("s_mul_i32 s40, s39, 7"); a("s_lshl_b32 s41, s43, 1"); a("s_add_u32 s40, s40, s41")
    a("v_mov_b32 v9, v3")
    for j in range(4):
        a("s_add_u32 s41, s40, %d" % j); a("s_and_b32 s42, s41, 3"); a("s_lshl_b32 s42, s42, 5"); a("v_xor_b32 v%d, s42, v9" % (3 + j))
        a("s_lshr_b32 s42, s41, 2"); a("s_lshl_b32 s42, s42, 13"); a("v_add_u32 v%d, s42, v%d" % (3 + j, 3 + j))
    tm = [(vB[j & 3], c.blk_off[0] + (j >> 2) * 8192) for j in range(7)]
    make_srd(a, 48, 34, 2048 * 3584 * 2, off=WS_H1)
    make_srd(a, 56, 36, 3584 * 2)
    a("s_mul_i32 s40, s18, 224"); a("s_mul_i32 s41, s39, 112"); a("s_add_u32 s40, s40, s41")
    a("v_lshrrev_b32 v9, 4, v1"); a("v_lshlrev_b32 v9, 2, v9"); a("v_add_u32 v9, s40, v9")
    a("v_lshlrev_b32 v10, 2, v9"); a("v_lshlrev_b32 v11, 1, v9")
    def after_b0(a):
        stamp(a, 1)
        for j in range(7):
            a("buffer_load_dwordx2 v[%d:%d], v11, s[56:59], 0 offen offset:%d" % (224 + j * 2, 225 + j * 2, j * 32))
    c.after_b0 = after_b0
    a("s_lshl_b32 s40, s38, 2"); a("s_add_u32 s40, s40, s44"); a("s_mul_i32 s40, s40, 112")
    a("s_mul_i32 s41, s18, 7"); a("s_add_u32 s40, s40, s41")
    a("s_mul_i32 s41, s39, 3"); a("s_add_u32 s40, s40, s41")
    a("s_lshl_b32 s40, s40, 10")
    a("v_lshlrev_b32 v14, 4, v1"); a("v_add_u32 v14, s40, v14")
    compute_loop(a, c, L, tm, vA)
    stamp(a, 2)
    a("s_barrier")
    a("v_and_b32 v12, 15, v1"); a("v_lshlrev_b32 v12, 3, v12"); a("s_lshl_b32 s41, s38, 9"); a("s_add_u32 s41, s41, %d" % STL); a("v_add_u32 v12, s41, v12")
    for i in range(4): a("ds_read_b64 v[%d:%d], v12 offset:%d" % (16 + 2 * i, 17 + 2 * i, i * 128))
    a("s_mul_i32 s40, s39, 7"); a("s_lshl_b32 s41, s43, 1"); a("s_add_u32 s40, s40, s41"); a("s_lshl_b32 s40, s40, 6"); a("s_add_u32 s40, s40, %d" % CSL)
    a("v_lshrrev_b32 v12, 4, v1"); a("v_lshlrev_b32 v12, 4, v12"); a("v_add_u32 v12, s40, v12")
    for j in range(7): a("ds_read_b128 v[%d:%d], v12 offset:%d" % (100 - 0 + 0 if False else 64 + j * 4, 67 + j * 4, j * 64))
    a("s_waitcnt vmcnt(0) lgkmcnt(0)")
    for i in range(4): a("v_mov_b32 v%d, v%d" % (24 + 2 * i, 17 + 2 * i))
    for j in range(7):
        for h in range(2):
            a("v_lshlrev_b32 v%d, 16, v%d" % (B1F + j * 4 + 2 * h, 224 + j * 2 + h)); a("v_and_b32 v%d, 0xffff0000, v%d" % (B1F + j * 4 + 2 * h + 1, 224 + j * 2 + h))
    def acc(i, j): return c.acc0 + (i * 7 + j) * 4
    def tile_vals(i, j, dst, tmp):
        b = acc(i, j)
        for h in range(2):
            a(pk("v_pk_fma_f32", tmp + 2 * h, 64 + j * 4 + 2 * h, 24 + 2 * i, B1F + j * 4 + 2 * h, mods="op_sel_hi:[1,0,1] neg_lo:[0,1,0] neg_hi:[0,1,0]"))
        for h in range(2):
            a(pk("v_pk_fma_f32", b + 2 * h, b + 2 * h, 16 + 2 * i, tmp + 2 * h, mods="op_sel_hi:[1,0,1]"))
        for r in range(4): a("v_max_f32 v%d, 0, v%d" % (tmp + r, b + r))
        for h in range(2): a(pk("v_pk_mul_f32", b + 2 * h, b + 2 * h, tmp + 2 * h))
        a("v_cvt_pk_bf16_f32 v%d, v%d, v%d" % (dst, b, b + 1)); a("v_cvt_pk_bf16_f32 v%d, v%d, v%d" % (dst + 1, b + 2, b + 3))
    def pair(i, j0, dst):
        interleave(a, lambda x: tile_vals_on(x, i, j0, dst, 92), lambda x: tile_vals_on(x, i, j0 + 1, dst + 2, 96))
    def tile_vals_on(x, i, j, dst, tmp):
        nonlocal a
        sv = a; a = x
        tile_vals(i, j, dst, tmp)
        a = sv
    fl = st_flags('h1')
    a("s_mov_b32 s42, 0")
    a("s_cmp_eq_u32 s39, 0"); a("s_cbranch_scc0 K3_epi1")
    for i in range(4):
        for pr in range(3):
            d = 100 + ((i * 4 + pr) % 3) * 4
            pair(i, 2 * pr, d)
            a("buffer_store_dwordx4 v[%d:%d], v14, s[48:51], s42 offen offset:%d %s" % (d, d + 3, pr * 1024, fl))
        d = 100 + ((i * 4 + 3) % 3) * 4
        tile_vals(i, 6, d, 92)
        a("buffer_store_dwordx2 v[%d:%d], v14, s[48:51], s42 offen offset:3072 %s" % (d, d + 1, fl))
        if i < 3: a("s_add_u32 s42, s42, %d" % (112 * 1024))
    stamp_flush(a, 4, 3)
    a("s_branch K3_cend")
    a.label("K3_epi1")
    for i in range(4):
        d = 100
        tile_vals(i, 0, d, 92)
        a("buffer_store_dwordx2 v[%d:%d], v14, s[48:51], s42 offen offset:8 %s" % (d, d + 1, fl))
        for pr in range(3):
            d = 100 + ((pr + 1) % 3) * 4
            pair(i, 2 * pr + 1, d)
            a("buffer_store_dwordx4 v[%d:%d], v14, s[48:51], s42 offen offset:%d %s" % (d, d + 3, (pr + 1) * 1024, fl))
        if i < 3: a("s_add_u32 s42, s42, %d" % (112 * 1024))
    a.label("K3_cend")
    a("s_waitcnt vmcnt(0)")
    a("s_barrier")
    a("s_cmp_lg_u32 s%d, 0" % S_WAVE); a("s_cbranch_scc1 K3_end")
    make_srd(a, 56, 34, 65536, off=WS_CNT)
    a("s_lshl_b32 s41, s17, 1"); a("s_lshr_b32 s42, s18, 3"); a("s_add_u32 s41, s41, s42"); a("s_add_u32 s41, s41, 96"); a("s_lshl_b32 s41, s41, 8")
    signal(a, "K3_s2", 56, 41, 40)
    a("s_branch K3_end")
    a.label("K3_loader")
    Ld = loader_setup(a, c, 44, ["s45", "s46", "s47", "s48"])
    make_srd(a, 12, 34, 1 * MB, off=WS_STATS)
    make_srd(a, 52, 34, 16 * 16 * 1024, off=WS_CSP)
    make_srd(a, 56, 34, 65536, off=WS_CNT)
    a("s_sub_u32 s49, s%d, 4" % S_WAVE)
    a("s_lshl_b32 s40, s17, 7"); a("s_lshl_b32 s42, s49, 5"); a("s_add_u32 s40, s40, s42")
    a("v_and_b32 v30, 15, v1"); a("v_add_u32 v30, s40, v30"); a("v_lshlrev_b32 v30, 7, v30")
    a("v_lshrrev_b32 v31, 4, v1"); a("v_lshl_add_u32 v30, v31, 5, v30")
    a("s_add_u32 s50, s18, 64"); a("s_lshl_b32 s50, s50, 8")
    a("v_lshrrev_b32 v26, 3, v1"); a("s_mov_b32 s42, 7168"); a("v_mul_lo_u32 v26, v26, s42"); a("v_and_b32 v27, 7, v1"); a("v_lshl_add_u32 v26, v27, 4, v26")
    a("s_mul_i32 s40, s17, %d" % (64 * 7168)); a("s_lshl_b32 s42, s49, 7"); a("s_add_u32 s40, s40, s42"); a("s_add_u32 s40, s40, s45"); a("v_add_u32 v26, s40, v26")
    a("s_lshl_b32 s40, s18, 4"); a("s_add_u32 s40, s40, s17"); a("s_lshl_b32 s40, s40, 10"); a("s_lshl_b32 s42, s49, 8"); a("s_add_u32 s40, s40, s42")
    a("v_lshlrev_b32 v25, 5, v27"); a("v_add_u32 v25, s40, v25")
    a("s_lshl_b32 s40, s18, 14"); a("s_lshl_b32 s42, s49, 8"); a("s_add_u32 s40, s40, s42")
    a("v_lshlrev_b32 v29, 12, v31"); a("v_and_b32 v28, 15, v1"); a("v_lshl_add_u32 v29, v28, 4, v29"); a("v_add_u32 v29, s40, v29")
    def after_ramp(a):
        a("s_mov_b32 s42, 0")
        for i in range(8):
            a("buffer_load_dwordx4 v[%d:%d], v26, s[%d:%d], s42 offen" % (160 + i * 4, 163 + i * 4, S_SRDB, S_SRDB + 3))
            if i < 7: a("s_add_u32 s42, s42, %d" % (8 * 7168))
    def hook_sum(a):
        for q in range(8): a("v_mov_b32 v%d, 0" % (192 + q))
        for i in range(8):
            for dw in range(4):
                r = 160 + 4 * i + dw; t = 200 + 2 * (dw & 1)
                a("v_lshlrev_b32 v%d, 16, v%d" % (t, r)); a("v_and_b32 v%d, 0xffff0000, v%d" % (t + 1, r))
                a(pk("v_pk_add_f32", 192 + 2 * dw, 192 + 2 * dw, t))
        for q in range(8): a("v_add_f32_dpp v%d, v%d, v%d row_ror:8 row_mask:0xf bank_mask:0xf" % (192 + q, 192 + q, 192 + q))
        allreduce4(a, "v_add_f32", [192, 193, 194, 195], None); allreduce4(a, "v_add_f32", [196, 197, 198, 199], None)
        a("s_mov_b64 s[78:79], exec"); a("s_mov_b64 exec, 0xff")
        a("buffer_store_dwordx4 v[192:195], v25, s[52:55], 0 offen sc1"); a("buffer_store_dwordx4 v[196:199], v25, s[52:55], 0 offen offset:16 sc1")
        a("s_mov_b64 exec, s[78:79]")
    def hook_signal(a):
        a("s_cmp_lg_u32 s%d, 4" % S_WAVE); a("s_cbranch_scc1 K3_hookret")
        signal(a, "K3_s", 56, 50, 204)
    def hook_pollissue(a):
        a("v_mov_b32 v207, 0")
        a("buffer_load_dword v206, v207, s[56:59], s50 offen sc1")
    def hook_pollcheck(a):
        a("v_readfirstlane_b32 s78, v206")
        a("s_cmp_ge_u32 s78, 16"); a("s_cbranch_scc1 K3_hookret")
        spin_wait(a, "K3_sp", 56, 50, 16, 206)
    def tail(a):
        for i in range(2):
            for q in range(2):
                a("buffer_load_dwordx4 v[%d:%d], v30, s[12:15], 0 offen offset:%d" % (64 + i * 8 + q * 4, 67 + i * 8 + q * 4, i * 16 * 128 + q * 16))
        for i in range(4):
            a("buffer_load_dwordx4 v[%d:%d], v29, s[52:55], 0 offen offset:%d" % (96 + i * 4, 99 + i * 4, i * 1024))
    def gate3(a):
        a("s_add_u32 s41, s17, 80"); a("s_lshl_b32 s41, s41, 8")
        spin_wait(a, "K3_g", 56, 41, 16, 204)
    c.gate = gate3
    loader_loop(a, c, Ld, L, tail_loads=tail, n_tail=8, after_ramp=after_ramp, hooks={2: hook_sum, 5: hook_signal, 10: hook_pollissue, 12: hook_pollcheck})
    a("s_waitcnt vmcnt(0)")
    def xl2(r, t):
        a("v_mov_b32 v%d, v%d" % (t, r)); a("v_permlane32_swap_b32 v%d, v%d" % (r, t)); a("v_add_f32 v%d, v%d, v%d" % (r, r, t))
        a("v_mov_b32 v%d, v%d" % (t, r)); a("v_permlane16_swap_b32 v%d, v%d" % (r, t)); a("v_add_f32 v%d, v%d, v%d" % (r, r, t))
    for i in range(2):
        b = 64 + i * 8
        mean, var, t = 40 + i * 4, 41 + i * 4, 42 + i * 4
        a("v_add_f32 v%d, v%d, v%d" % (mean, b, b + 2))
        for q in range(2, 4): a("v_add_f32 v%d, v%d, v%d" % (mean, mean, b + 2 * q))
        xl2(mean, t)
        a("v_mul_f32 v%d, 0x3d800000, v%d" % (mean, mean))
        a("v_mov_b32 v%d, 0" % var)
        for q in range(4):
            a("v_sub_f32 v%d, v%d, v%d" % (t, b + 2 * q, mean)); a("v_mul_f32 v%d, v%d, v%d" % (t, t, t))
            a("v_fmac_f32 v%d, 0x42800000, v%d" % (var, t)); a("v_add_f32 v%d, v%d, v%d" % (var, var, b + 2 * q + 1))
        xl2(var, t)
        a("v_mul_f32 v%d, 0x3a800000, v%d" % (var, var))
        bf16_round(a, mean, mean); bf16_round(a, var, var)
        a("v_add_f32 v%d, 0x3727c5ac, v%d" % (var, var)); bf16_round(a, var, var)
        a("v_sqrt_f32 v%d, v%d" % (var, var)); bf16_round(a, var, var)
        a("v_rcp_f32 v%d, v%d" % (50 + 2 * i, var))
        a("v_mul_f32 v%d, v%d, v%d" % (51 + 2 * i, 50 + 2 * i, mean))
    for lv in (2, 1):
        for i in range(lv):
            for h in range(2): a(pk("v_pk_add_f32", 96 + i * 4 + 2 * h, 96 + i * 4 + 2 * h, 96 + (i + lv) * 4 + 2 * h))
    allreduce4(a, "v_add_f32", [96, 97, 98, 99], None)
    a("v_and_b32 v28, 15, v1"); a("v_lshlrev_b32 v28, 4, v28"); a("s_lshl_b32 s41, s49, 8"); a("s_add_u32 s41, s41, %d" % CSL); a("v_add_u32 v28, s41, v28")
    a("ds_write_b128 v28, v[96:99]")
    a("v_and_b32 v30, 15, v1"); a("v_lshlrev_b32 v30, 3, v30"); a("s_lshl_b32 s41, s49, 8"); a("s_add_u32 s41, s41, %d" % STL); a("v_add_u32 v30, s41, v30")
    a("ds_write_b64 v30, v[50:51]"); a("ds_write_b64 v30, v[52:53] offset:128")
    a("s_waitcnt lgkmcnt(0)"); a("s_barrier")
    a.label("K3_end")
    return name, dict(grid=256, block=512, lds=c.lds + 2048, vgprs=256)

def gen_k4(a):
    name = "k4_kernel"; L = "K4"
    c = Cfg(MT=4, NT=4, K=1792, NS=OPT.get('k4ns', 4), nblk=2, ldb=2048, acc0=112)
    c.Kstride = 3584; c.ka0 = "s46"; c.kb0 = "s47"
    stamp(a, 0)
    ld_ptr(a, 34, 'ws'); ld_ptr(a, 32, 'w2'); ld_ptr(a, 36, 'b2'); ld_ptr(a, 62, 'out')
    a("s_lshr_b32 s41, s2, 3")
    a("s_and_b32 s30, s2, 1")
    if OPT.get('k4map', '8x4') == '8x4':
        a("s_bfe_u32 s42, s2, 0x10001"); a("s_lshl_b32 s42, s42, 3"); a("s_and_b32 s43, s41, 7"); a("s_add_u32 s17, s42, s43")
        a("s_bfe_u32 s42, s2, 0x10002"); a("s_lshl_b32 s42, s42, 2"); a("s_lshr_b32 s43, s41, 3"); a("s_add_u32 s18, s42, s43")
    else:
        a("s_and_b32 s17, s41, 15")
        a("s_bfe_u32 s42, s2, 0x20001"); a("s_lshl_b32 s42, s42, 1"); a("s_lshr_b32 s43, s41, 4"); a("s_add_u32 s18, s42, s43")
    a("s_lshl_b32 s44, s17, 3")
    a("s_lshl_b32 s45, s18, 8")
    a("s_mul_i32 s46, s30, %d" % (56 * 1024)); a("s_mul_i32 s47, s30, %d" % (1792 * 2048))
    a("s_add_u32 s48, s45, 128")
    a("s_waitcnt lgkmcnt(0)")
    make_srd(a, S_SRDA, 34, 2048 * 3584 * 2, off=WS_H1)
    make_srd(a, S_SRDB, 32, 3584 * 1024 * 2)
    a("s_cmp_ge_u32 s%d, 4" % S_WAVE); a("s_cbranch_scc1 K4_loader")
    vA = 2; vB = [3, 4, 5, 6]
    compute_setup(a, c, vA, vB, tmp=9)
    a("s_lshl_b32 s25, s39, 13"); a("v_add_u32 v3, s25, v3")
    for t in range(1, 4): a("v_xor_b32 v%d, %d, v3" % (3 + t, t * 32))
    tm = [(vB[j], c.blk_off[0]) for j in range(4)]
    make_srd(a, 52, 62, 2048 * 1024 * 2)
    make_srd(a, 56, 36, 1024 * 2)
    make_srd(a, 48, 34, 4 * MB, off=WS_H)
    a("s_lshl_b32 s31, s18, 2"); a("s_lshl_b32 s41, s39, 1"); a("s_add_u32 s31, s31, s41"); a("s_add_u32 s31, s31, s30")
    a("s_lshl_b32 s40, s38, 2"); a("s_add_u32 s40, s40, s44"); a("s_lshl_b32 s40, s40, 5"); a("s_add_u32 s40, s40, s31"); a("s_lshl_b32 s40, s40, 10")
    a("v_lshlrev_b32 v14, 4, v1"); a("v_add_u32 v14, s40, v14")
    a("s_lshl_b32 s40, s31, 5")
    a("v_lshrrev_b32 v12, 4, v1"); a("v_lshlrev_b32 v12, 2, v12"); a("v_add_u32 v12, s40, v12"); a("v_lshlrev_b32 v12, 1, v12")
    def after_b0(a):
        stamp(a, 1)
        a("s_mov_b32 s42, 0")
        for i in range(4):
            a("buffer_load_dwordx4 v[%d:%d], v14, s[48:51], s42 offen" % (192 + i * 4, 195 + i * 4))
            if i < 3: a("s_add_u32 s42, s42, %d" % (32 * 1024))
        for j in range(2): a("buffer_load_dwordx2 v[%d:%d], v12, s[56:59], 0 offen offset:%d" % (208 + j * 2, 209 + j * 2, j * 32))
    c.after_b0 = after_b0
    a("s_lshl_b32 s40, s17, 7"); a("s_lshl_b32 s42, s38, 6"); a("s_add_u32 s40, s40, s42")
    a("v_and_b32 v9, 15, v1"); a("v_add_u32 v9, s40, v9"); a("v_lshlrev_b32 v9, 11, v9")
    a("v_bfe_u32 v10, v1, 4, 1"); a("v_lshl_add_u32 v9, v10, 5, v9")
    a("v_lshrrev_b32 v10, 5, v1"); a("v_lshl_add_u32 v9, v10, 4, v9")
    a("s_lshl_b32 s41, s31, 6"); a("v_add_u32 v9, s41, v9")
    if OPT.get('k4pf', 0):
        a("s_and_b32 s60, s17, 7"); a("s_lshl_b32 s60, s60, 2"); a("s_add_u32 s60, s60, s%d" % S_WAVE)
        a("s_mul_i32 s61, s60, %d" % (64 * 2048)); a("s_add_u32 s61, s61, s47"); a("s_add_u32 s61, s61, s45"); a("s_add_u32 s61, s61, 128")
        a("s_and_b32 s64, s18, 3"); a("s_cmp_eq_u32 s64, 1"); a("s_cselect_b32 s61, s61, 0x1000000")
        a("s_cmp_lt_u32 s60, 28"); a("s_cselect_b32 s61, s61, 0x1000000")
        a("v_lshlrev_b32 v250, 11, v1")
        a("s_cmp_lt_u32 s60, 14"); a("s_cselect_b32 s64, s61, 0x1000000"); a("s_cselect_b32 s65, 0x1000000, s61")
        a("buffer_load_dword v251, v250, s[%d:%d], s64 offen" % (S_SRDB, S_SRDB + 3))
        c.once = (c.T - 2 - 7, lambda a: a("buffer_load_dword v252, v250, s[%d:%d], s65 offen" % (S_SRDB, S_SRDB + 3)))
    compute_loop(a, c, L, tm, vA)
    stamp(a, 2)
    def acc(i, j): return c.acc0 + (i * 4 + j) * 4
    make_srd(a, 40, 34, 8 * MB, off=WS_P4)
    make_srd(a, 64, 34, 131072, off=WS_CNT)
    a("s_lshl_b32 s46, s17, 3"); a("s_add_u32 s46, s46, s18"); a("s_lshl_b32 s46, s46, 1")
    a("s_xor_b32 s47, s30, 1"); a("s_add_u32 s47, s47, s46")
    a("s_add_u32 s46, s46, s30")
    a("s_lshl_b32 s60, s47, 2"); a("s_add_u32 s60, s60, s%d" % S_WAVE); a("s_lshl_b32 s60, s60, 13")
    a("s_lshl_b32 s61, s46, 2"); a("s_add_u32 s61, s61, s%d" % S_WAVE); a("s_lshl_b32 s61, s61, 13")
    a("v_lshlrev_b32 v11, 4, v1"); a("v_add_u32 v13, s61, v11"); a("v_add_u32 v11, s60, v11")
    a("s_add_u32 s47, s47, 128"); a("s_lshl_b32 s47, s47, 8"); a("s_add_u32 s46, s46, 128"); a("s_lshl_b32 s46, s46, 8")
    a("s_cmp_eq_u32 s30, 0"); a("s_cbranch_scc0 K4_kh1")
    def send_keep(sendj, keepj):
        n = 0
        for i in range(4):
            for jj in range(2):
                b = acc(i, sendj + jj)
                if n == 4: a("v_add_u32 v11, 4096, v11")
                a("buffer_store_dwordx4 v[%d:%d], v11, s[40:43], 0 offen offset:%d sc1" % (b, b + 3, (n & 3) * 1024))
                n += 1
        for i in range(4):
            for jj in range(2):
                b = acc(i, keepj + jj)
                for h in range(2): a("v_mov_b32 v%d, v%d" % (16 + i * 8 + jj * 4 + 2 * h, b + 2 * h)); a("v_mov_b32 v%d, v%d" % (17 + i * 8 + jj * 4 + 2 * h, b + 2 * h + 1))
    send_keep(2, 0)
    a("s_branch K4_sent")
    a.label("K4_kh1")
    send_keep(0, 2)
    a.label("K4_sent")
    a("s_waitcnt vmcnt(8)")
    for j in range(2):
        for h in range(2):
            a("v_lshlrev_b32 v%d, 16, v%d" % (212 + j * 4 + 2 * h, 208 + j * 2 + h)); a("v_and_b32 v%d, 0xffff0000, v%d" % (213 + j * 4 + 2 * h, 208 + j * 2 + h))
    for i in range(4):
        for q in range(4):
            a("v_lshlrev_b32 v%d, 16, v%d" % (48 + i * 8 + 2 * q, 192 + i * 4 + q)); a("v_and_b32 v%d, 0xffff0000, v%d" % (49 + i * 8 + 2 * q, 192 + i * 4 + q))
    for i in range(4):
        for q in range(4): a(pk("v_pk_add_f32", 16 + i * 8 + 2 * q, 16 + i * 8 + 2 * q, 212 + 2 * q))
    for i in range(4):
        for q in range(4): a(pk("v_pk_add_f32", 16 + i * 8 + 2 * q, 16 + i * 8 + 2 * q, 48 + i * 8 + 2 * q))
    a("s_waitcnt vmcnt(0)")
    a("s_barrier")
    a("s_cmp_lg_u32 s%d, 0" % S_WAVE); a("s_cbranch_scc1 K4_nopoll")
    signal(a, "K4_s", 64, 47, 80)
    spin_wait(a, "K4_p", 64, 46, 1, 80)
    a.label("K4_nopoll")
    a("s_barrier")
    if STAMP['on']:
        a("s_memrealtime s[98:99]"); a("s_waitcnt lgkmcnt(0)")
    for n in range(8):
        if n == 4: a("v_add_u32 v13, 4096, v13")
        a("buffer_load_dwordx4 v[%d:%d], v13, s[40:43], 0 offen offset:%d %s" % (48 + n * 4, 51 + n * 4, (n & 3) * 1024, OPT.get('xldf', 'sc1')))
    a("s_mov_b32 s45, 0")
    for i in range(4):
        a("s_waitcnt vmcnt(%d)" % (6 - i))
        for q in range(4): a(pk("v_pk_add_f32", 16 + i * 8 + 2 * q, 16 + i * 8 + 2 * q, 48 + i * 8 + 2 * q))
        d = 112 + i * 4
        for q in range(4): a("v_cvt_pk_bf16_f32 v%d, v%d, v%d" % (d + q, 16 + i * 8 + 2 * q, 17 + i * 8 + 2 * q))
        a("v_permlane16_swap_b32 v%d, v%d" % (d, d + 2)); a("v_permlane16_swap_b32 v%d, v%d" % (d + 1, d + 3))
        a("buffer_store_dwordx4 v[%d:%d], v9, s[52:55], s45 offen %s" % (d, d + 3, st_flags('out')))
        if i < 3: a("s_add_u32 s45, s45, %d" % (16 * 2048))
    stamp_flush(a, 5, 3)
    a("s_branch K4_end")
    a.label("K4_loader")
    Ld = loader_setup(a, c, 44, ["s45", "s48"])
    make_srd(a, 56, 34, 65536, off=WS_CNT)
    def gate4(a):
        a("s_barrier")
        a("s_lshl_b32 s41, s17, 1"); a("s_add_u32 s41, s41, s30"); a("s_add_u32 s41, s41, 96"); a("s_lshl_b32 s41, s41, 8")
        spin_wait(a, "K4_g", 56, 41, 8, 204)
    c.gate = gate4
    loader_loop(a, c, Ld, L)
    a.label("K4_end")
    a("s_endpgm")
    a.label("CODE_END")
    return name, dict(grid=256, block=512, lds=c.lds, vgprs=256)

def build(opt):
    OPT.clear(); OPT.update(opt)
    STAMP['on'] = opt.get('stamp', False)
    hdr = open("cdna_kernels/%s.s.ref" % NAME).read().split("; Override launch")[0]
    kernels = []
    body = []
    a = Asm(); name, info = gen_k0(a); lines, n = hazard.fix(a.lines); body.append("\n".join(lines) + "\n"); kernels.append((name, info))
    a = Asm(); name, info = gen_k1(a); lds = info['lds']
    _, i3 = gen_k3(a); _, i4 = gen_k4(a)
    info['lds'] = max(lds, i3['lds'], i4['lds'])
    lines, n = hazard.fix(a.lines); body.append("\n".join(lines) + "\n"); kernels.append((name, info))
    txt = hdr
    for k, i in kernels:
        txt += "; @launch kernel=%s grid=(%d,1,1) block=(%d,1,1) lds=%d\n" % (k, i['grid'], i['block'], i['lds'])
    txt += '.amdgcn_target "amdgcn-amd-amdhsa--gfx950"\n.text\n' + "".join(body)
    txt += '.section .rodata,"a"\n'
    for k, i in kernels:
        txt += ".p2align 6\n" + kernel_desc(k, i['vgprs'])
    return txt

if __name__ == "__main__":
    opt = json.loads(sys.argv[2]) if len(sys.argv) > 2 else {}
    open(sys.argv[1], "w").write(build(opt))
```
